```python
import torch

def _softmax(x, axis=-1):
    return torch.softmax(x, dim=axis)

def _gelu(x):
    return torch.nn.functional.gelu(x, approximate='tanh')

def _silu(x):
    return torch.nn.functional.silu(x)

def _sigmoid(x):
    return torch.sigmoid(x)

def _layernorm(x, axis=-1, eps=1e-05):
    m = x.mean(dim=axis, keepdim=True)
    v = x.var(dim=axis, keepdim=True, unbiased=False)
    return (x - m) / torch.sqrt(v + eps)

def _scatter_add(tgt, idx, src, axis=0):
    return tgt.clone().index_add_(axis, idx, src)

def _segment_sum(src, seg, n):
    out = torch.zeros((n,) + src.shape[1:], dtype=src.dtype)
    return out.index_add_(0, seg, src)

def _pad(x, pw):
    flat = tuple((v for pair in reversed(pw) for v in pair))
    return torch.nn.functional.pad(x, flat)
kernel_name = 'sequential_preLN__memory_aug_recurrent_mem_tr__swiglu_ffn__prompt'

def setup_inputs():

    _w = lambda a: (lambda t: t.to(torch.bfloat16) if t.is_floating_point() else t)(torch.as_tensor(a))

    def _A_setup():
        B, S, Dm = (1, 2048, 576)
        H, Dh = (32, 128)
        M, seg = (8, 32)
        seg = min(seg, S)
        S = S // seg * seg
        return {'x': _w((lambda *s: torch.randn(*s, dtype=torch.bfloat16) * 0.05)(B, S, Dm)), 'mem0': _w((lambda *s: torch.randn(*s, dtype=torch.bfloat16) * 0.2)(B, M, Dm)), 'Wq': _w((lambda *s: torch.randn(*s, dtype=torch.bfloat16) * 1.6)(Dm, H, Dh) * Dm ** (-0.5)), 'Wk': _w((lambda *s: torch.randn(*s, dtype=torch.bfloat16) * 1.6)(Dm, H, Dh) * Dm ** (-0.5)), 'Wv': _w((lambda *s: torch.randn(*s, dtype=torch.bfloat16) * 0.2)(Dm, H, Dh) * Dm ** (-0.5)), 'Wo': _w((lambda *s: torch.randn(*s, dtype=torch.bfloat16) * 0.2)(H, Dh, Dm) * (H * Dh) ** (-0.5)), 'seg_len': seg}
    _A_in = _A_setup()

    def _B_setup():
        B, S, D, F = (1, 2048, 576, 4608)
        return {'x': _w((lambda *s: torch.randn(*s, dtype=torch.bfloat16) * 0.05)(B, S, D)), 'w_gate': _w((lambda *s: torch.randn(*s, dtype=torch.bfloat16) * 0.05)(D, F)), 'w_up': _w((lambda *s: torch.randn(*s, dtype=torch.bfloat16) * 0.05)(D, F)), 'w_down': _w((lambda *s: torch.randn(*s, dtype=torch.bfloat16) * 0.05)(F, D))}
    _B_in = _B_setup()
    return {'A_x': _A_in['x'], 'A_mem0': _A_in['mem0'], 'A_Wq': _A_in['Wq'], 'A_Wk': _A_in['Wk'], 'A_Wv': _A_in['Wv'], 'A_Wo': _A_in['Wo'], 'A_seg_len': _A_in['seg_len'], 'B_x': _B_in['x'], 'B_w_gate': _B_in['w_gate'], 'B_w_up': _B_in['w_up'], 'B_w_down': _B_in['w_down']}

def reference(A_x, A_mem0, A_Wq, A_Wk, A_Wv, A_Wo, A_seg_len, B_x, B_w_gate, B_w_up, B_w_down):

    def _A_ref(x, mem0, Wq, Wk, Wv, Wo, seg_len):
        B, S, Dm = x.shape
        H, Dh = (Wq.shape[1], Wq.shape[2])
        M = mem0.shape[1]
        scale = Dh ** (-0.5)
        n_seg = S // seg_len
        L = M + seg_len
        idx = torch.arange(L)
        mask = (idx[:, None] < M) | (idx[:, None] >= idx[None, :])
        mem = mem0
        outs = []
        for s in range(n_seg):
            xs = x[:, s * seg_len:(s + 1) * seg_len, :].clone()
            h = torch.concatenate([mem, xs], axis=1)
            q = torch.einsum('btd,dhe->bhte', h, Wq)
            k = torch.einsum('btd,dhe->bhte', h, Wk)
            v = torch.einsum('btd,dhe->bhte', h, Wv)
            scores = torch.einsum('bhqe,bhke->bhqk', q, k) * scale
            scores = torch.where(mask[None, None], scores, -1000000000.0)
            p = _softmax(scores, axis=-1)
            o = torch.einsum('bhqk,bhke->bhqe', p, v)
            o = torch.einsum('bhte,hed->btd', o, Wo)
            mem = o[:, :M, :].clone()
            outs.append(o[:, M:, :])
        return torch.concatenate(outs, axis=1)

    def _B_ref(x, w_gate, w_up, w_down):
        g = _silu(x @ w_gate)
        u = x @ w_up
        return g * u @ w_down
    x = A_x
    h = x + _A_ref(_layernorm(x, axis=-1), A_mem0, A_Wq, A_Wk, A_Wv, A_Wo, A_seg_len)
    h2 = h + _B_ref(_layernorm(h, axis=-1), B_w_gate, B_w_up, B_w_down)
    return h2
```

```python
import re

REG_RE = re.compile(r'^(v|a|s)(?:(\d+)|\[(\d+):(\d+)\])$')
TRANS = ('v_exp_', 'v_log_', 'v_rcp_', 'v_rsq_', 'v_sqrt_', 'v_sin_', 'v_cos_')


def regs_of(tok):
    tok = tok.strip()
    if tok.startswith('-'):
        tok = tok[1:]
    if tok.startswith('|') and tok.endswith('|'):
        tok = tok[1:-1]
    if tok == 'vcc':
        return {('s', 106), ('s', 107)}
    if tok == 'vcc_lo':
        return {('s', 106)}
    if tok == 'vcc_hi':
        return {('s', 107)}
    if tok == 'exec':
        return {('s', 126), ('s', 127)}
    if tok == 'exec_lo':
        return {('s', 126)}
    if tok == 'exec_hi':
        return {('s', 127)}
    if tok == 'm0':
        return {('s', 124)}
    m = REG_RE.match(tok)
    if not m:
        return set()
    k = m.group(1)
    if m.group(2) is not None:
        return {(k, int(m.group(2)))}
    return {(k, i) for i in range(int(m.group(3)), int(m.group(4)) + 1)}


EXEC = {('s', 126), ('s', 127)}
VCC = {('s', 106), ('s', 107)}
M0 = {('s', 124)}


def vec(rs):
    return {r for r in rs if r[0] in 'va'}


def sca(rs):
    return {r for r in rs if r[0] == 's'}


class Ins:
    def __init__(self, text):
        self.text = text
        t = text.split(';')[0].strip()
        self.label = None
        self.kind = 'other'
        self.w = set()
        self.r = set()
        self.states = 1
        self.target = None
        self.uncond = False
        if t.endswith(':'):
            self.label = t[:-1]
            self.kind = 'label'
            self.states = 0
            return
        if not t or t.startswith('.'):
            self.kind = 'dir'
            self.states = 0
            return
        parts = t.split(None, 1)
        op = parts[0]
        self.op = op
        rest = parts[1] if len(parts) > 1 else ''
        ops = []
        for i, x in enumerate(rest.split(',')):
            x = x.strip()
            ops.append(x)
        mods = ''
        if ops:
            sp = ops[-1].split(None, 1)
            if sp:
                ops[-1] = sp[0]
                mods = sp[1] if len(sp) > 1 else ''
        full = rest
        self.mods = full
        R = [regs_of(x.split()[0]) if x else set() for x in ops]
        self.dpp = ('row_' in full or 'quad_perm' in full or 'wave_' in full or op.endswith('_dpp'))
        if op.startswith('v_mfma') or op.startswith('v_smfmac'):
            self.kind = 'mfma'
            self.passes = 8 if '32x32' in op else 4
            self.D = R[0]
            self.w = set(R[0])
            if op.startswith('v_smfmac'):
                self.C = R[0]
                self.AB = R[1] | R[2] | R[3]
            else:
                self.C = R[3]
                self.AB = R[1] | R[2]
            self.r = self.C | self.AB
        elif op.startswith('v_'):
            self.kind = 'valu'
            self.trans = op.startswith(TRANS)
            if op.startswith('v_permlane') or op.startswith('v_swap'):
                self.w = R[0] | R[1]
                self.r = R[0] | R[1]
            elif op.startswith('v_cmpx'):
                self.w = set(EXEC) | R[0]
                self.r = set().union(*R[1:])
            elif op.startswith(('v_add_co', 'v_sub_co', 'v_addc_co', 'v_subb_co', 'v_subrev_co', 'v_div_scale')):
                self.w = R[0] | R[1]
                self.r = set().union(*R[2:])
            elif op == 'v_nop':
                pass
            else:
                self.w = set(R[0])
                self.r = set().union(*R[1:]) if len(R) > 1 else set()
                if op.startswith(('v_fmac', 'v_mac', 'v_dot2c', 'v_writelane', 'v_pk_fmac')) or self.dpp:
                    self.r |= R[0]
        elif op.startswith(('buffer_', 'global_')):
            self.kind = 'vmem'
            allr = set().union(*R) if R else set()
            self.lds = bool(re.search(r'\blds\b', full)) or '_lds_' in op
            self.wide = set()
            if 'load' in op and not self.lds:
                self.w = set(R[0])
                self.r = set().union(*R[1:])
            elif 'atomic' in op:
                self.r = allr
                if re.search(r'\bsc0\b', full):
                    self.w = set(R[0])
            else:
                self.r = allr
                if 'store' in op and ('x4' in op or 'x3' in op):
                    self.wide = R[0] if op.startswith('buffer_') else R[1]
            if self.lds:
                self.r |= M0
        elif op.startswith('ds_'):
            self.kind = 'ds'
            if op.startswith(('ds_read', 'ds_bpermute', 'ds_permute', 'ds_swizzle')) or '_rtn' in op:
                self.w = set(R[0])
                self.r = set().union(*R[1:])
            else:
                self.r = set().union(*R)
        elif op.startswith('s_'):
            self.kind = 'salu'
            if op == 's_nop':
                self.states = int(ops[0], 0) + 1
            elif op.startswith('s_cbranch') or op == 's_branch':
                self.target = ops[0]
                self.uncond = op == 's_branch'
            elif op == 's_endpgm':
                self.uncond = True
            elif op.startswith(('s_cmp', 's_waitcnt', 's_barrier', 's_setprio', 's_sleep', 's_bitcmp')):
                self.r = set().union(*R) if R else set()
            else:
                self.w = set(R[0]) if R else set()
                self.r = set().union(*R[1:]) if len(R) > 1 else set()
                if 'saveexec' in op:
                    self.w |= EXEC
        else:
            raise ValueError('unknown instr: ' + t)


def need(p, c):
    n = 0
    if p.kind == 'valu':
        pw_v = vec(p.w)
        pw_s = sca(p.w)
        if c.kind == 'mfma':
            if pw_v & c.r:
                n = max(n, 2)
            if pw_s & EXEC:
                n = max(n, 4)
        elif c.kind == 'valu':
            if c.dpp and (pw_v & c.r):
                n = max(n, 2)
            if c.dpp and (pw_s & EXEC):
                n = max(n, 5)
            if c.op.startswith('v_permlane'):
                if pw_v & c.r:
                    n = max(n, 2)
                if pw_s & EXEC:
                    n = max(n, 4)
            if c.op.startswith(('v_readlane', 'v_readfirstlane', 'v_writelane')):
                if pw_v & c.r:
                    n = max(n, 1)
                if pw_s & sca(c.r):
                    n = max(n, 4)
                if pw_s & EXEC:
                    n = max(n, 4)
            if p.trans and (pw_v & c.r):
                n = max(n, 1)
            if pw_s & sca(c.r):
                n = max(n, 2)
            if 'op_sel' in p.mods or 'sdwa' in p.op:
                if pw_v & (c.r | c.w):
                    n = max(n, 1)
            if c.op.startswith('v_div_fmas') and (pw_s & VCC):
                n = max(n, 4)
        elif c.kind == 'vmem':
            if pw_s & sca(c.r):
                n = max(n, 5)
    elif p.kind == 'mfma':
        big = p.passes == 8
        if c.kind == 'mfma':
            if p.D & c.C:
                if not (p.D == c.C and p.op == c.op):
                    n = max(n, 10 if big else 6)
            if p.D & c.AB:
                n = max(n, 12 if big else 8)
            if (p.D & c.D) and not (p.D & c.C):
                n = max(n, 10 if big else 6)
        elif c.kind in ('valu', 'vmem', 'ds'):
            if p.D & (c.r | c.w):
                n = max(n, 12 if big else 8)
            if c.kind == 'valu' and (p.C & c.w):
                n = max(n, 7 if big else 3)
    elif p.kind == 'vmem':
        if p.wide:
            if c.kind == 'valu' and (p.wide & c.w):
                n = max(n, 2)
            elif c.kind in ('mfma', 'vmem', 'ds') and (p.wide & c.w):
                n = max(n, 1)
    elif p.kind == 'salu':
        if (p.w & M0) and c.kind == 'vmem' and c.lds:
            n = max(n, 1)
    return n


MAXW = 12


def fix_hazards(lines):
    ins = [Ins(l) for l in lines]
    prev = None
    for x in ins:
        x.prev = prev
        prev = x
    labels = {x.label: x for x in ins if x.kind == 'label'}
    srcs = {}
    for x in ins:
        if x.target is not None:
            srcs.setdefault(id(labels[x.target]), []).append(x)
    out = []
    total = 0
    for c in ins:
        if c.kind in ('valu', 'mfma', 'vmem', 'ds'):
            worst = 0
            stack = [(c.prev, 0, None)]
            seen = set()
            while stack:
                p, dist, md = stack.pop()
                while p is not None and dist < MAXW:
                    if (id(p), dist, md) in seen:
                        break
                    seen.add((id(p), dist, md))
                    if p.kind == 'mfma':
                        if md is not None:
                            dist = max(dist, md + p.passes)
                        md = dist
                    if p.kind == 'label':
                        for sx in srcs.get(id(p), ()):
                            stack.append((sx, dist, md))
                        k = p.prev
                        while k is not None and k.kind == 'dir':
                            k = k.prev
                        if k is not None and k.uncond:
                            break
                        p = p.prev
                        continue
                    if p.kind == 'dir':
                        p = p.prev
                        continue
                    nd = need(p, c)
                    if nd - dist > worst:
                        worst = nd - dist
                    dist += p.states
                    p = p.prev
            if worst > 0:
                nop = Ins('s_nop %d' % (worst - 1))
                nop.prev = c.prev
                c.prev = nop
                out.append(nop)
                total += worst
        out.append(c)
    return [x.text for x in out], total


class Asm:
    def __init__(self):
        self.lines = []
        self.uid = 0

    def __call__(self, text):
        for l in text.split('\n'):
            l = l.strip()
            if l:
                self.lines.append(l)

    def label(self, name):
        self.lines.append(name + ':')

    def newlabel(self, base='L'):
        self.uid += 1
        return '%s_%d' % (base, self.uid)


def vr(b, n=1, k='v'):
    return '%s%d' % (k, b) if n == 1 else '%s[%d:%d]' % (k, b, b + n - 1)


def ar(b, n=1):
    return vr(b, n, 'a')


def sr(b, n=1):
    return vr(b, n, 's')
```

```python
import math
from asmlib import *
from layout import *

SMF = 'v_smfmac_f32_16x16x64_bf16'
M16 = 'v_mfma_f32_16x16x16_bf16'
M32 = 'v_mfma_f32_16x16x32_bf16'
XB = 147456
WREG = 36864
L16, IDX, SEL, XMR, OX, PST, MST = 0, 1, 2, 4, 5, 6, 7
MF = 8
Q0, Q1, K0, K1, AV0, AV1, KX0, KX1, T = 44, 48, 52, 56, 60, 64, 68, 72, 76
LO, HI = 's[40:41]', 's[42:43]'
S_STEP, S_MR, S_MW, S_MZ, S_PW, S_PR, S_KV, S_KVM = ['s%d' % i for i in range(32, 40)]
S_SC, S_SENT, S_RED, S_WB = 's44', 's45', 's46', 's47'
NVR = 4
WO_LDS = [0, 1, 4, 5]


def FR(n, sub=None):
    k, b = ('a', 8 * n) if n < 32 else ('v', 80 + 8 * (n - 32))
    return vr(b, 8, k) if sub is None else vr(b + 2 * sub, 2, k)


class Q:
    def __init__(self, A, name):
        self.A, self.name, self.q = A, name, []

    def op(self, tag, text):
        self.A(text)
        self.q.append(tag)

    def wait(self, tag):
        if tag not in self.q:
            return
        i = len(self.q) - 1 - self.q[::-1].index(tag)
        self.A('s_waitcnt %s(%d)' % (self.name, len(self.q) - 1 - i))
        del self.q[:i + 1]

    def all(self):
        self.A('s_waitcnt %s(0)' % self.name)
        self.q = []


def role_chain(G):
    A, WS, DBG, OPT = G.A, G.WS, G.DBG, G.OPT
    S_W, S_T = G.S_W, G.S_T
    stamps = []

    def stamp(name):
        if OPT['ts']:
            i = len(stamps)
            stamps.append(name)
            A('s_memtime s[%d:%d]' % (64 + 2 * i, 65 + 2 * i))

    G.srd(12, G.P_WQ, 576 * 8192)
    G.srd(16, G.P_WK, 576 * 8192)
    G.srd(20, G.P_WV, 576 * 8192)
    G.srd(92, G.P_WO, 4096 * 1152)
    G.srd(96, G.P_MEM, 8 * 1152)
    A('s_mov_b32 s40, 0x00ff00ff')
    A('s_mov_b32 s41, 0x00ff00ff')
    A('s_mov_b32 s42, 0xff00ff00')
    A('s_mov_b32 s43, 0xff00ff00')
    A('s_mov_b32 %s, %s' % (S_SC, G.fbits(G.LOG2E / math.sqrt(128.0))))
    A('s_mov_b32 %s, 0x%x' % (S_SENT, SENT))
    A('s_mul_i32 %s, %s, %d' % (S_WB, S_W, WREG))
    if OPT['ts']:
        A('v_mov_b32 v79, v2')
        G.V_TS = 'v79'
    A('v_mov_b32 v60, v1')
    LN = 'v60'
    A('v_and_b32 v61, 15, v60')
    A('v_lshrrev_b32 v62, 4, v60')
    A('v_lshlrev_b32 v0, 4, v60')
    A('v_add_u32 v%d, %d, v0' % (XMR, XB))
    A('v_add_u32 v0, %s, v0' % S_WB)
    A('v_bfe_u32 v63, v60, 3, 1')
    A('v_lshl_add_u32 v%d, v63, 3, v%d' % (XMR, XMR))
    A('v_mov_b32 v1, 0x4444')
    A('v_mov_b32 v64, 0xeeee')
    A('v_cndmask_b32 v1, v1, v64, %s' % HI)
    A('v_and_b32 v64, 7, v60')
    A('v_lshlrev_b32 v%d, 4, v64' % OX)
    A('v_lshl_add_u32 v%d, v62, 7, v%d' % (OX, OX))
    A('v_add_u32 v%d, %d, v%d' % (OX, XB + 8192, OX))
    A('v_lshrrev_b32 v65, 5, v60')
    A('v_lshl_add_u32 v66, v65, 1, v63')
    A('v_mul_u32_u24 v%d, %d, v66' % (PST, P_TASK))
    A('v_bfe_u32 v66, v60, 4, 1')
    A('v_lshl_add_u32 v%d, v66, 6, v%d' % (PST, PST))
    A('v_lshl_add_u32 v%d, v64, 3, v%d' % (PST, PST))
    A('v_and_b32 v67, 3, v60')
    A('v_lshl_add_u32 v67, v66, 2, v67')
    A('v_bfe_u32 v68, v60, 2, 1')
    A('v_lshlrev_b32 v%d, 4, v67' % MST)
    A('v_lshl_add_u32 v%d, v68, 3, v%d' % (MST, MST))
    A('v_lshl_add_u32 v%d, v65, 2, v%d' % (MST, MST))
    A('v_lshlrev_b32 v69, 2, v66')
    A('v_sub_u32 v69, v64, v69')
    A('v_mov_b32 v70, 0x3f80')
    A('v_mov_b32 v71, 0x3f800000')
    for i in range(2):
        A('v_mov_b32 v%d, 0' % (SEL + i))
        A('v_cmp_eq_u32 vcc, %d, v69' % (2 * i))
        A('v_cndmask_b32 v%d, v%d, v70, vcc' % (SEL + i, SEL + i))
        A('v_cmp_eq_u32 vcc, %d, v69' % (2 * i + 1))
        A('v_cndmask_b32 v%d, v%d, v71, vcc' % (SEL + i, SEL + i))
    A('s_lshl_b32 s48, %s, 5' % S_W)
    A('s_add_u32 s48, s48, %s' % S_T)
    A('s_cmp_lt_u32 s48, 72')
    A('s_cselect_b32 %s, 1, 0' % S_RED)
    A('s_min_u32 s48, s48, 71')
    A('s_mul_i32 %s, s48, %d' % (S_PR, P_TASK))
    A('s_add_u32 %s, %s, 0x%x' % (S_PR, S_PR, W_CP))
    A('s_sub_u32 %s, %s, %s' % (S_PR, S_PR, S_WB))
    A('s_lshl_b32 %s, s48, 7' % S_MZ)
    A('s_add_u32 %s, %s, 0x%x' % (S_MZ, S_MZ, W_CM))
    A('s_add_u32 %s, %s, 0x4000' % (S_MW, S_MZ))
    A('s_sub_u32 %s, 0x%x, %s' % (S_MR, W_CM, S_WB))
    A('s_mul_i32 %s, %s, %d' % (S_PW, S_W, 4 * P_TASK))
    A('s_lshl_b32 s49, %s, 7' % S_T)
    A('s_add_u32 %s, %s, s49' % (S_PW, S_PW))
    A('s_add_u32 %s, %s, 0x%x' % (S_PW, S_PW, W_CP))
    A('s_lshl_b32 s49, %s, 2' % S_T)
    A('s_add_u32 s49, s49, %s' % S_W)
    A('s_mul_i32 %s, %s, 24576' % (S_KV, S_T))
    A('s_lshl_b32 s51, %s, 12' % S_W)
    A('s_add_u32 %s, %s, s51' % (S_KV, S_KV))
    A('s_add_u32 %s, %s, 0x%x' % (S_KV, S_KV, W_QKV + 8192))
    A('s_sub_u32 %s, %s, %s' % (S_KV, S_KV, S_WB))
    A('s_lshl_b32 %s, s49, 11' % S_KVM)
    A('s_add_u32 %s, %s, 0x%x' % (S_KVM, S_KVM, W_KVM))
    A('s_sub_u32 %s, %s, %s' % (S_KVM, S_KVM, S_WB))
    A('s_add_u32 s50, s49, %d' % F_CH)
    A('s_lshl_b32 s50, s50, 2')
    A('s_cmp_eq_u32 %s, 0' % S_RED)
    A('s_cbranch_scc1 C_NOINIT')
    A('v_mul_u32_u24 v70, 1152, v67')
    A('v_lshl_add_u32 v70, v65, 3, v70')
    A('v_lshl_add_u32 v70, v68, 1, v70')
    A('s_lshl_b32 s51, s48, 4')
    A('buffer_load_ushort v71, v70, s[96:99], s51 offen')
    A('buffer_load_ushort v72, v70, s[96:99], s51 offen offset:4')
    for i in range(4):
        A('v_mov_b32 v%d, %s' % (8 + i, S_SENT))
    for sl in range(2):
        A('s_add_u32 s51, %s, 0x%x' % (S_PR, sl * 0x80000))
        for i in range(4):
            A('buffer_store_dwordx4 v[8:11], v0, %s, s51 offen offset:%d sc1' % (WS, i * 1024))
    A('s_mov_b64 exec, %s' % LO)
    for sl in range(1, 4):
        A('s_add_u32 s51, %s, 0x%x' % (S_MZ, sl * 0x4000))
        A('buffer_store_dword v8, v%d, %s, s51 offen sc1' % (MST, WS))
    A('s_waitcnt vmcnt(11)')
    A('v_lshl_or_b32 v71, v72, 16, v71')
    A('buffer_store_dword v71, v%d, %s, %s offen sc1' % (MST, WS, S_MZ))
    A('s_mov_b64 exec, -1')
    A.label('C_NOINIT')
    A('v_lshrrev_b32 v73, 2, v60')
    A('v_and_b32 v74, 3, v60')
    A('v_lshlrev_b32 v70, 13, v73')
    A('v_lshl_add_u32 v70, v74, 4, v70')
    A('s_lshl_b32 s51, s49, 6')
    A('v_add_u32 v70, s51, v70')
    A('v_mul_u32_u24 v71, 1152, v73')
    A('v_lshl_add_u32 v71, v74, 4, v71')
    A('s_mul_i32 s51, %s, %d' % (S_T, 128 * 1152))
    A('s_lshl_b32 s52, %s, 6' % S_W)
    A('s_add_u32 s52, s52, s51')
    A('v_add_u32 v71, s52, v71')
    A('v_lshrrev_b32 v73, 1, v60')
    A('v_mul_u32_u24 v72, 1152, v73')
    A('v_and_b32 v73, 1, v60')
    A('v_lshl_add_u32 v72, v73, 4, v72')
    A('s_lshl_b32 s52, %s, 5' % S_W)
    A('s_add_u32 s52, s52, s51')
    A('s_add_u32 s52, s52, 1024')
    A('v_add_u32 v72, s52, v72')
    A('v_bfe_u32 v61, v60, 2, 1')
    A('v_and_b32 v62, 3, v60')
    A('v_lshlrev_b32 v62, 3, v62')
    A('v_add_u32 v62, %s, v62' % S_WB)
    A('v_lshl_add_u32 v73, v65, 4, v66')
    A('v_lshl_add_u32 v73, v63, 3, v73')
    A('v_lshl_add_u32 v73, v61, 1, v73')
    A('v_lshl_add_u32 v73, v73, 6, v62')
    A('v_lshl_add_u32 v75, v66, 4, v61')
    A('v_lshl_add_u32 v75, v65, 2, v75')
    A('v_lshl_add_u32 v74, v75, 6, v62')
    A('v_lshl_add_u32 v74, v63, 5, v74')
    A('v_lshl_add_u32 v75, v63, 5, v75')
    A('v_lshl_add_u32 v75, v75, 5, v62')
    units = []
    for f in range(9):
        units.append(('q', f, 4 * f))
        units.append(('k', f, 4 * f + 2))
    for f in range(NVR):
        units.append(('v', f, 36 + 2 * f))
    nxt = 36 + 2 * NVR
    wo_reg = {}
    for u in range(9):
        if u not in WO_LDS:
            units.append(('o', u, nxt))
            wo_reg[u] = nxt
            nxt += 2
    assert nxt == 54 and len(units) == 27
    lds_slot = {}
    for f in range(NVR, 9):
        lds_slot['v', f] = len(units) % 9
        units.append(('v', f, None))
    for u in WO_LDS:
        lds_slot['o', u] = len(units) % 9
        units.append(('o', u, None))
    VQ = Q(A, 'vmcnt')

    def dma(n):
        kind, a, _ = units[n]
        for i in range(4):
            A('s_add_u32 m0, %s, %d' % (S_WB, (n % 9) * 4096 + i * 1024))
            if kind in 'qkv':
                A('s_mov_b32 s51, %d' % ((64 * a + 16 * i) * 8192))
                VQ.op(n, 'buffer_load_dwordx4 v70, %s, s51 offen lds' % {'q': 's[12:15]', 'k': 's[16:19]', 'v': 's[20:23]'}[kind])
            elif a < 8:
                A('s_mov_b32 s51, %d' % ((64 * (a & 1) + 16 * i) * 1152 + (a >> 1) * 256))
                VQ.op(n, 'buffer_load_dwordx4 v71, s[92:95], s51 offen lds')
            else:
                A('s_mov_b32 s51, %d' % (32 * i * 1152))
                VQ.op(n, 'buffer_load_dwordx4 v72, s[92:95], s51 offen lds')
    for n in range(9):
        dma(n)
    for n, (kind, a, dst) in enumerate(units):
        VQ.wait(n)
        if n == 0:
            A('s_cmp_eq_u32 s28, 0')
            A('s_cselect_b32 s51, 1, 0x10001')
            A('v_mov_b32 v8, s51')
            A('v_mov_b32 v9, %d' % (D_CBAR * 4))
            A('s_mov_b64 exec, 1')
            VQ.op('arr', 'buffer_atomic_add v8, v9, %s, 0 offen sc1' % DBG)
            A('s_mov_b64 exec, -1')
        base = (n % 9) * 4096
        for t in range(2):
            for z in range(2):
                for u in range(2):
                    d = FR(dst + t, 2 * z + u) if dst is not None else vr(16 + 8 * t + 4 * z + 2 * u, 2)
                    if kind in 'qkv':
                        A('ds_read_b64_tr_b16 %s, v73 offset:%d' % (d, base + z * 2048 + u * 256 + t * 32))
                    elif a < 8:
                        A('ds_read_b64_tr_b16 %s, v74 offset:%d' % (d, base + t * 2048 + z * 512 + u * 128))
                    else:
                        A('ds_read_b64_tr_b16 %s, v75 offset:%d' % (d, base + t * 2048 + z * 256 + u * 64))
        A('s_waitcnt lgkmcnt(0)')
        if dst is None:
            for i in range(4):
                A('ds_write_b128 v0, %s offset:%d' % (vr(16 + 4 * i, 4), base + i * 1024))
            A('s_waitcnt lgkmcnt(0)')
        if n + 9 < len(units):
            dma(n + 9)
    G.ts()
    G.wait_ready('v8', 'v9')
    A('v_mov_b32 v8, %d' % (D_CBAR * 4))
    L = A.newlabel('CB')
    A('s_mov_b32 s27, 0')
    A.label(L)
    A('buffer_load_dword v9, v8, %s, 0 offen sc1' % DBG)
    A('s_waitcnt vmcnt(0)')
    A('v_readfirstlane_b32 s51, v9')
    A('s_and_b32 s52, s51, 0xffff')
    A('s_cmp_ge_u32 s52, 128')
    A('s_cbranch_scc1 %s_ok' % L)
    A('s_add_u32 s27, s27, 1')
    A('s_cmp_lt_u32 s27, %d' % G.SPIN_MAX)
    A('s_cbranch_scc1 %s' % L)
    A('s_movk_i32 s27, 8')
    A('s_branch FAIL')
    A.label(L + '_ok')
    A('v_and_b32 v8, 7, v60')
    A('s_lshl_b32 s52, %s, 3' % S_T)
    A('s_add_u32 s52, s52, %d' % F_QKV)
    A('s_lshl_b32 s53, s52, 2')
    A('v_lshlrev_b32 v8, 2, v8')
    G.spin('v8', 'v12', '2', 9, WS, 's53')
    A('s_sub_u32 s53, s53, %d' % (3 * WREG // 4))
    for sl in range(2):
        A('s_add_u32 s52, %s, 0x%x' % (S_PR, sl * 0x80000))
        for i in range(4):
            A('buffer_load_dwordx4 v[8:11], v0, %s, s52 offen offset:%d sc1' % (WS, i * 1024))
    for sl in range(4):
        A('s_add_u32 s52, %s, 0x%x' % (S_MZ, sl * 0x4000))
        A('buffer_load_dword v8, v%d, %s, s52 offen sc1' % (MST, WS))
    A('s_add_u32 s52, %s, %d' % (S_KV, SEG_QKV))
    for i in range(4):
        A('buffer_load_dwordx4 v[8:11], v0, %s, %s offen offset:%d sc1' % (WS, S_KV, i * 1024))
        A('buffer_load_dwordx4 v[8:11], v0, %s, s52 offen offset:%d sc1' % (WS, i * 1024))
    A('s_waitcnt vmcnt(0)')
    A('s_cmp_lg_u32 %s, 3' % S_W)
    A('s_cbranch_scc1 C_N3')
    A('v_mov_b32 v%d, v12' % MST)
    A.label('C_N3')
    G.ts()
    if OPT['ts']:
        G.dump_ts('v60')
        A('s_waitcnt vmcnt(0)')
        A('s_memtime s[56:57]')
        A('s_memrealtime s[58:59]')
    A('s_mov_b32 %s, 0' % S_STEP)
    A('s_mov_b32 s27, 0')
    A('s_lshr_b32 s51, s51, 16')
    A('s_cmp_lg_u32 s51, 0')
    A('s_cbranch_scc1 C_MIXED')
    for mixed in (0, 1):
        if mixed:
            A.label('C_MIXED')
        del stamps[:]
        loop(G, ' sc1' if mixed else '', 'CM' if mixed else 'CF', wo_reg, lds_slot, stamp)
        A('s_branch C_END')
    A.label('C_END')
    if OPT['ts']:
        A('s_memtime s[60:61]')
        A('s_memrealtime s[62:63]')
        A('s_waitcnt lgkmcnt(0)')
        A('s_sub_u32 s60, s60, s56')
        A('v_mov_b32 v8, 0')
        A('v_writelane_b32 v8, s60, 0')
        A('v_writelane_b32 v8, s58, 1')
        A('v_writelane_b32 v8, s62, 2')
        for i in range(len(stamps)):
            A('v_writelane_b32 v8, s%d, %d' % (64 + 2 * i, 4 + i))
        A('s_lshl_b32 s60, %s, 2' % S_T)
        A('s_add_u32 s60, s60, %s' % S_W)
        A('s_lshl_b32 s60, s60, 8')
        A('s_add_u32 s60, s60, 0x%x' % (W_TS + 128))
        A('v_subrev_u32 v9, %s, v0' % S_WB)
        A('v_lshrrev_b32 v9, 2, v9')
        A('s_mov_b64 exec, 0xffffffff')
        A('buffer_store_dword v8, v9, %s, s60 offen' % WS)
        open('stamps.txt', 'w').write(' '.join(stamps))
    A('s_endpgm')


def loop(G, sc, P, wo_reg, lds_slot, stamp):
    A, WS, S_W = G.A, G.WS, G.S_W
    LQ = Q(A, 'lgkmcnt')
    ool = []

    def mload(f):
        if f < 4:
            A('buffer_load_dwordx4 %s, v0, %s, %s offen offset:%d sc1' % (vr(MF + 4 * f, 4), WS, S_MR, f * 1024))
        else:
            A('buffer_load_dwordx4 %s, v0, %s, s%d offen offset:%d sc1' % (vr(MF + 4 * f, 4), WS, 53 + f // 4, (f % 4) * 1024))

    def kxload():
        for i in range(2):
            A('buffer_load_dwordx4 %s, v0, %s, %s offen offset:%d sc1' % (vr(KX0 + 4 * i, 4), WS, S_KV, i * 1024))

    def zero(regs):
        for r in regs:
            A('v_mov_b32 v%d, 0' % r)

    def exact(regs, okl):
        A('v_cmp_eq_u32 vcc, %s, v%d' % (S_SENT, regs[0]))
        for r in regs[1:]:
            A('v_cmp_eq_u32 s[48:49], %s, v%d' % (S_SENT, r))
            A('s_or_b64 vcc, vcc, s[48:49]')
        A('s_cbranch_vccz %s' % okl)
        A('s_add_u32 s27, s27, 1')
        A('s_cmp_ge_u32 s27, %d' % (4 * G.SPIN_MAX))
        A('s_cbranch_scc1 FAIL')

    def stage(tag, key, t, dst):
        off = lds_slot[key] * 4096 + t * 2048
        for z in range(2):
            LQ.op(tag, 'ds_read_b128 %s, v0 offset:%d' % (vr(dst + 4 * z, 4), off + z * 1024))

    SA, SB = 8, 16

    def V(n):
        f, t = n >> 1, n & 1
        if f < NVR:
            b = FR(36 + n)
        else:
            LQ.wait('V%d' % n)
            b = vr((SA, SB)[t], 8)
        A('%s %s, %s, %s, v%d' % (SMF, vr((AV0, AV1)[t], 4), vr(MF + 4 * f, 4), b, IDX))
        if n == 3:
            stage('V8', ('v', 4), 0, SA)
        elif n == 7:
            stage('V9', ('v', 4), 1, SB)
        elif n >= 8 and n + 2 < 18:
            stage('V%d' % (n + 2), ('v', (n + 2) >> 1), t, (SA, SB)[t])

    def cvt(d, s):
        A('v_cvt_pk_bf16_f32 v%d, v%d, v%d' % (d, s, s + 1))

    kxload()
    A.label(P + '_TOP')
    A('s_add_u32 s54, %s, 4096' % S_MR)
    A('s_add_u32 s55, %s, 8192' % S_MR)
    for f in range(3):
        mload(f)
    zero(range(Q0, AV1 + 4))
    stamp('top')
    for f in range(9):
        m = MF + 4 * f
        last = min(f + 2, 8)
        A.label('%s_W%d' % (P, f))
        A('s_waitcnt vmcnt(%d)' % (last - f))
        A('v_maximum3_f32 v%d, v%d, v%d, v%d' % (T, m, m + 1, m + 2))
        A('v_cmp_u_f32 vcc, v%d, v%d' % (T, m + 3))
        A('s_cbranch_vccnz %s_F%d' % (P, f))
        A.label('%s_C%d' % (P, f))

        def fail(f=f, m=m, last=last):
            A.label('%s_F%d' % (P, f))
            exact(range(m, m + 4), '%s_C%d' % (P, f))
            if f == 0:
                A.label(P + '_F0b')
                mload(0)
                A('s_waitcnt vmcnt(0)')
                exact(range(m, m + 4), P + '_F0c')
                A('s_branch %s_F0b' % P)
                A.label(P + '_F0c')
                mload(1)
                mload(2)
                A('s_branch %s_C0' % P)
            else:
                for x in range(f, last + 1):
                    mload(x)
                A('s_branch %s_W%d' % (P, f))
        ool.append(fail)
        if f == 0:
            stamp('m0')
        for i, d in enumerate((Q0, Q1, K0, K1)):
            A('%s %s, %s, %s, v%d' % (SMF, vr(d, 4), vr(m, 4), FR(4 * f + i), IDX))
            if i == 0 and f + 3 < 9:
                mload(f + 3)
    stamp('qk')
    A('v_mov_b32 v%d, s50' % (T + 1))
    A('v_mov_b32 v%d, %s' % (T + 2, S_STEP))
    A('s_mov_b64 exec, 1')
    A('buffer_store_dword v%d, v%d, %s, 0 offen sc1' % (T + 2, T + 1, WS))
    A('s_mov_b64 exec, -1')
    for d in (Q0, Q1):
        cvt(d, d)
        cvt(d + 1, d + 2)
    V(0)
    for d in (Q0, Q1):
        A('%s %s, %s, %s, 0' % (M16, vr(d, 4), vr(d, 2), vr(SEL, 2)))
    for d in (K0, K1):
        cvt(d, d)
        cvt(d + 1, d + 2)
    for d in (K0, K1):
        A('%s %s, %s, %s, 0' % (M16, vr(d, 4), vr(d, 2), vr(SEL, 2)))
    V(1)
    cvt(Q0, Q0)
    cvt(Q0 + 1, Q0 + 2)
    cvt(Q0 + 2, Q1)
    cvt(Q0 + 3, Q1 + 2)
    V(2)
    for d in (KX0, KX1):
        A('%s %s, %s, %s, 0' % (M32, vr(d, 4), vr(d, 4), vr(Q0, 4)))
    cvt(K0, K0)
    cvt(K0 + 1, K0 + 2)
    cvt(K0 + 2, K1)
    cvt(K0 + 3, K1 + 2)
    V(3)
    A('%s %s, %s, %s, 0' % (M32, vr(Q0, 4), vr(K0, 4), vr(Q0, 4)))
    A('buffer_load_dwordx4 %s, v0, %s, %s offen offset:2048 sc1' % (vr(Q1, 4), WS, S_KV))
    A('buffer_load_dwordx4 %s, v0, %s, %s offen offset:3072 sc1' % (vr(K1, 4), WS, S_KV))
    V(4)
    A('buffer_store_dwordx4 %s, v0, %s, %s offen sc1' % (vr(K0, 4), WS, S_KVM))
    A('v_and_b32 v%d, -9, v%d' % (T, XMR))
    A('s_lshl_b32 s48, %s, 11' % S_W)
    A('v_add_u32 v%d, s48, v%d' % (T + 1, T))
    V(5)
    A('s_mov_b64 exec, %s' % LO)
    LQ.op('w', 'ds_write_b128 v%d, %s' % (T + 1, vr(KX0, 4)))
    A('s_mov_b64 exec, %s' % HI)
    LQ.op('w', 'ds_write_b128 v%d, %s' % (T + 1, vr(KX1, 4)))
    A('s_mov_b64 exec, -1')
    LQ.op('w', 'ds_write_b128 v%d, %s offset:1024' % (T + 1, vr(Q0, 4)))
    V(6)
    V(7)
    V(8)
    LQ.wait('w')
    A('s_barrier')
    stamp('b1')
    XR = (KX0, KX1, Q0, K0)
    for w in range(4):
        LQ.op('x%d' % w, 'ds_read_b128 %s, v%d offset:%d' % (vr(XR[w], 4), T, w * 2048))
    V(9)
    LQ.op('xm0', 'ds_read_b64 v[24:25], v%d offset:1024' % XMR)
    LQ.op('xm1', 'ds_read_b64 v[26:27], v%d offset:%d' % (XMR, 1024 + 2048))
    LQ.op('xm2', 'ds_read_b64 %s, v%d offset:%d' % (vr(T, 2), XMR, 1024 + 4096))
    LQ.op('xm3', 'ds_read_b64 %s, v%d offset:%d' % (vr(T + 2, 2), XMR, 1024 + 6144))
    V(10)
    LQ.wait('x1')
    for i in range(2):
        A('v_pk_add_f32 %s, %s, %s' % (vr(KX0 + 2 * i, 2), vr(KX0 + 2 * i, 2), vr(KX1 + 2 * i, 2)))
    LQ.wait('x3')
    for i in range(2):
        A('v_pk_add_f32 %s, %s, %s' % (vr(Q0 + 2 * i, 2), vr(Q0 + 2 * i, 2), vr(K0 + 2 * i, 2)))
    V(11)
    for i in range(2):
        A('v_pk_add_f32 %s, %s, %s' % (vr(KX0 + 2 * i, 2), vr(KX0 + 2 * i, 2), vr(Q0 + 2 * i, 2)))
    LQ.wait('xm3')
    A('v_pk_add_f32 v[24:25], v[24:25], v[26:27]')
    A('v_pk_add_f32 %s, %s, %s' % (vr(T, 2), vr(T, 2), vr(T + 2, 2)))
    A('v_max3_f32 v26, v%d, v%d, v%d' % (KX0, KX0 + 1, KX0 + 2))
    A('v_pk_add_f32 v[24:25], v[24:25], %s' % vr(T, 2))
    V(12)
    A('v_max_f32 v26, v26, v%d' % (KX0 + 3))
    A('v_max3_f32 v26, v26, v24, v25')
    V(13)
    A('v_max_f32_dpp v26, v26, v26 row_ror:8 row_mask:0xf bank_mask:0xf')
    A('v_mov_b32 v27, v26')
    A('v_permlane16_swap_b32 v26, v27')
    A('v_max_f32 v26, v26, v27')
    A('v_mov_b32 v27, v26')
    V(14)
    A('v_permlane32_swap_b32 v26, v27')
    A('v_max_f32 v26, v26, v27')
    A('v_mul_f32 v26, %s, v26' % S_SC)
    V(15)
    sc6 = [KX0, KX0 + 1, KX0 + 2, KX0 + 3, 24, 25]
    for r in sc6:
        A('v_fma_f32 v%d, v%d, %s, -v26' % (r, r, S_SC))
    for i, r in enumerate(sc6):
        A('v_exp_f32 v%d, v%d' % (r, r))
        if i == 1:
            V(16)
        if i == 3:
            V(17)
    cvt(KX1, KX0)
    cvt(KX1 + 1, KX0 + 2)
    cvt(26, 24)
    W0, W1, W2, W3 = 8, 16, 32, 24
    stage('O0', ('o', WO_LDS[0]), 0, W0)
    A('v_mov_b32_dpp v%d, v%d row_ror:8 row_mask:0xf bank_mask:0xf' % (KX1 + 2, KX1))
    A('v_mov_b32_dpp v%d, v%d row_ror:8 row_mask:0xf bank_mask:0xf' % (KX1 + 3, KX1 + 1))
    A('v_mov_b32_dpp v27, v26 row_ror:8 row_mask:0xf bank_mask:0xf')
    A('s_waitcnt vmcnt(1)')
    stamp('p')
    A('%s %s, %s, %s, 0' % (M32, vr(Q0, 4), vr(Q1, 4), vr(KX1, 4)))
    cvt(AV0, AV0)
    cvt(AV0 + 1, AV0 + 2)
    A('%s %s, %s, %s, 0' % (M32, vr(K0, 4), vr(K1, 4), vr(KX1, 4)))
    cvt(AV0 + 2, AV1)
    cvt(AV0 + 3, AV1 + 2)
    A('%s %s, %s, v[26:27], %s' % (M16, vr(Q0, 4), vr(AV0, 2), vr(Q0, 4)))
    for i in range(4):
        A('v_mov_b32 v%d, 0x3f803f80' % (KX0 + i))
    A('%s %s, %s, v[26:27], %s' % (M16, vr(K0, 4), vr(AV0 + 2, 2), vr(K0, 4)))
    A('v_mov_b32 v28, 0x3f003f00')
    A('v_mov_b32 v29, 0x3f003f00')
    A('buffer_store_dwordx4 %s, v0, %s, %s offen offset:1024 sc1' % (vr(AV0, 4), WS, S_KVM))
    A('s_cmp_eq_u32 %s, 63' % S_STEP)
    A('s_cbranch_scc1 %s_LAST' % P)
    A('%s %s, %s, %s, 0' % (M32, vr(AV1, 4), vr(KX1, 4), vr(KX0, 4)))
    A('s_lshl_b32 s48, %s, 9' % S_W)
    A('v_add_u32 v%d, s48, v%d' % (T, OX))
    cvt(Q0, Q0)
    cvt(Q0 + 1, Q0 + 2)
    A('%s %s, v[26:27], v[28:29], %s' % (M16, vr(AV1, 4), vr(AV1, 4)))
    cvt(Q0 + 2, K0)
    cvt(Q0 + 3, K0 + 2)
    A('s_mov_b64 exec, %s' % LO)
    LQ.op('w', 'ds_write_b128 v%d, %s' % (T, vr(Q0, 4)))
    A('s_mov_b64 exec, -1')
    stage('O1', ('o', WO_LDS[0]), 1, W1)
    stage('O2', ('o', WO_LDS[1]), 0, W2)
    DS = (KX0, KX1, AV0, 40, T)
    zero(range(KX0, KX0 + 8))
    LQ.wait('w')
    A('s_barrier')
    stamp('b2')
    AF = (Q0, Q1, K0, K1)
    for u in range(4):
        LQ.op('a%d' % u, 'ds_read_b128 %s, v%d offset:%d' % (vr(AF[u], 4), OX, u * 512))
    stage('O3', ('o', WO_LDS[1]), 1, W3)
    A('s_cmp_lg_u32 %s, 3' % S_W)
    A('s_cbranch_scc1 %s_NP' % P)
    A('s_cmp_ge_u32 %s, 62' % S_STEP)
    A('s_cbranch_scc1 %s_NP' % P)
    prefetch(G, P)
    A.label(P + '_NP')
    zero(list(range(AV0, AV0 + 4)) + list(range(40, 44)) + list(range(T, T + 4)))
    for i in range(4):
        A('v_rcp_f32 v%d, v%d' % (AV1 + i, AV1 + i))
    WB = (W0, W1, W2, W3)
    nl = 0
    pend = []

    def epi(i):
        d = DS[i]
        A('v_pk_mul_f32 %s, %s, %s' % (vr(d, 2), vr(d, 2), vr(AV1, 2)))
        A('v_pk_mul_f32 %s, %s, %s' % (vr(d + 2, 2), vr(d + 2, 2), vr(AV1 + 2, 2)))
        cvt(d, d)
        cvt(d + 1, d + 2)
        A('s_add_u32 s48, %s, %d' % (S_PW, i * 16 * P_TASK))
        A('buffer_store_dwordx2 %s, v%d, %s, s48 offen%s' % (vr(d, 2), PST, WS, sc))
    for p in range(18):
        un, t = p >> 1, p & 1
        if p < 16:
            LQ.wait('a%d' % (p & 3))
            a = vr(AF[p & 3], 4)
        else:
            a = vr(W0 + 4 * t, 4)
        if un in WO_LDS:
            k = WO_LDS.index(un) * 2 + t
            LQ.wait('O%d' % k)
            b = vr(WB[k & 3], 8)
        else:
            k = None
            b = FR(wo_reg[un] + t)
        A('%s %s, %s, %s, v%d' % (SMF, vr(DS[p >> 2], 4), a, b, IDX))
        if k is not None and k < 4:
            stage('O%d' % (k + 4), ('o', WO_LDS[(k + 4) >> 1]), t, WB[k])
        if p >= 5 and (p & 3) == 1:
            epi((p >> 2) - 1)
        if p == 12 or p == 13:
            y = p - 12
            for i in range(4):
                A('v_cndmask_b32 v%d, v%d, v%d, %s' % (W0 + 4 * y + i, AF[2 * y] + i, AF[2 * y + 1] + i, HI))
        if p == 14:
            A('v_cmp_lt_u32 vcc, %d, v%d' % (2 * P_TASK - 1, PST))
            A('v_subrev_u32 v16, %d, v%d' % (2 * P_TASK - 4, PST))
            A('v_cndmask_b32 v16, v%d, v16, vcc' % PST)
            A('s_mul_i32 s49, %s, %d' % (S_W, 2 * P_TASK))
            A('s_sub_u32 s49, %s, s49' % S_PW)
            A('s_add_u32 s49, s49, %d' % (64 * P_TASK))
    A('s_add_u32 %s, %s, %d' % (S_KV, S_KV, SEG_QKV))
    A('s_add_u32 %s, %s, %d' % (S_KVM, S_KVM, SEG_O))
    A('v_pk_mul_f32 %s, %s, %s' % (vr(T, 2), vr(T, 2), vr(AV1, 2)))
    A('v_pk_mul_f32 %s, %s, %s' % (vr(T + 2, 2), vr(T + 2, 2), vr(AV1 + 2, 2)))
    A('v_permlane32_swap_b32 v%d, v%d' % (T, T + 2))
    A('v_permlane32_swap_b32 v%d, v%d' % (T + 1, T + 3))
    A('v_pk_add_f32 %s, %s, %s' % (vr(T, 2), vr(T, 2), vr(T + 2, 2)))
    cvt(T, T)
    A('buffer_store_dword v%d, v16, %s, s49 offen%s' % (T, WS, sc))
    stamp('wo')
    A('s_xor_b32 %s, %s, 0x80000' % (S_PW, S_PW))
    A('s_add_u32 %s, %s, 1' % (S_STEP, S_STEP))
    A('s_and_b32 s48, %s, 3' % S_STEP)
    A('s_lshl_b32 s48, s48, 14')
    A('s_sub_u32 %s, 0x%x, %s' % (S_MR, W_CM, S_WB))
    A('s_add_u32 %s, %s, s48' % (S_MR, S_MR))
    A('s_cmp_eq_u32 %s, 0' % S_RED)
    A('s_cbranch_scc1 %s_NR' % P)
    A.label(P + '_R')
    for i in range(4):
        A('buffer_load_dwordx4 %s, v0, %s, %s offen offset:%d sc1' % (vr(28 + 4 * i, 4), WS, S_PR, i * 1024))
    A('v_bfe_u32 v20, v%d, 4, 3' % OX)
    A('v_and_b32 v21, 1, v20')
    A('v_lshlrev_b32 v21, 4, v21')
    A('v_mov_b32 v22, 0x3f80')
    A('v_lshlrev_b32 v21, v21, v22')
    A('v_lshrrev_b32 v20, 1, v20')
    for i in range(4):
        A('v_cmp_eq_u32 vcc, %d, v20' % i)
        A('v_cndmask_b32 v%d, 0, v21, vcc' % (24 + i))
    for i in range(4):
        A('s_waitcnt vmcnt(%d)' % (3 - i))
        A('%s %s, %s, v[24:27], %s' % (M32, vr(T, 4), vr(28 + 4 * i, 4), '0' if i == 0 else vr(T, 4)))
    A('v_permlane32_swap_b32 v%d, v%d' % (T, T + 2))
    A('v_permlane32_swap_b32 v%d, v%d' % (T + 1, T + 3))
    A('v_pk_add_f32 %s, %s, %s' % (vr(T, 2), vr(T, 2), vr(T + 2, 2)))
    A('v_cmp_u_f32 vcc, v%d, v%d' % (T, T + 1))
    cvt(T, T)
    A('s_cbranch_vccnz %s_RF' % P)
    A.label(P + '_RC')
    A('s_mov_b64 exec, %s' % LO)
    A('buffer_store_dword v%d, v%d, %s, %s offen%s' % (T, MST, WS, S_MW, sc))
    stamp('red')
    for i in range(4):
        A('v_mov_b32 v%d, %s' % (20 + i, S_SENT))
    A('buffer_store_dword v20, v%d, %s, %s offen%s' % (MST, WS, S_MZ, sc))
    A('s_mov_b64 exec, -1')
    for i in range(4):
        A('v_mov_b32 v%d, %s' % (20 + i, S_SENT))
    for i in range(4):
        A('buffer_store_dwordx4 v[20:23], v0, %s, %s offen offset:%d%s' % (WS, S_PR, i * 1024, sc))
    A('s_mov_b32 %s, %s' % (S_MZ, S_MW))
    A('s_add_u32 %s, %s, 0x4000' % (S_MW, S_MW))
    A('s_and_b32 %s, %s, 0x%x' % (S_MW, S_MW, 0xfffeffff))
    A('s_add_u32 %s, %s, %s' % (S_PR, S_PR, S_WB))
    A('s_xor_b32 %s, %s, 0x80000' % (S_PR, S_PR))
    A('s_sub_u32 %s, %s, %s' % (S_PR, S_PR, S_WB))
    A.label(P + '_NR')
    kxload()
    A('s_branch %s_TOP' % P)
    A.label(P + '_RF')
    exact(range(28, 44), P + '_RC')
    A('s_branch %s_R' % P)
    for f in ool:
        f()
    prefetch_slow(G, P)
    A.label(P + '_LAST')
    A('s_waitcnt vmcnt(0)')
    A('v_mov_b32 v%d, s50' % (T + 1))
    A('v_mov_b32 v%d, 64' % (T + 2))
    A('s_mov_b64 exec, 1')
    A('buffer_store_dword v%d, v%d, %s, 0 offen sc1' % (T + 2, T + 1, WS))
    A('s_mov_b64 exec, -1')


def prefetch(G, P):
    A, WS = G.A, G.WS
    A('s_add_u32 s30, %s, 2' % S_STEP)
    A('v_lshrrev_b32 v41, 2, v0')
    A.label(P + '_PFL')
    A('v_cmp_ge_u32 vcc, s30, v%d' % MST)
    A('v_lshlrev_b32 v40, 3, v0')
    A('s_and_b32 s48, vcc_lo, 255')
    A('s_cbranch_scc1 %s_PFW' % P)
    A('s_add_u32 s48, %s, %d' % (S_KV, 2 * SEG_QKV - 7 * 3 * WREG - 3 * 4096))
    A('s_add_u32 s49, s48, 8192')
    A('buffer_load_dword v%d, v40, %s, s48 offen sc1' % (MST, WS))
    A('buffer_load_dword v%d, v40, %s, s49 offen sc1' % (MST, WS))
    A('s_mov_b64 exec, 0xff')
    A('buffer_load_dword v%d, v41, %s, s53 offen sc1' % (MST, WS))
    A('s_mov_b64 exec, -1')


def prefetch_slow(G, P):
    A, WS = G.A, G.WS
    A.label(P + '_PFW')
    A('s_mov_b64 exec, 0xff')
    A('buffer_load_dword v%d, v41, %s, s53 offen sc1' % (MST, WS))
    A('s_mov_b64 exec, -1')
    A('s_waitcnt vmcnt(0)')
    A('s_add_u32 s27, s27, 1')
    A('s_cmp_ge_u32 s27, %d' % (4 * G.SPIN_MAX))
    A('s_cbranch_scc1 FAIL')
    A('s_branch %s_PFL' % P)
```

```python
NAME = 'sequential_preLN__memory_aug_recurrent_mem_tr__swiglu_ffn__prompt'
WS_SIZE = 268435456
NSEG = 64
W_FLAGS = 0x8000
W_TS = 0x10000
W_CM = 0x100000
W_CP = 0x200000
W_XN = 0x400000
W_HB = 0x800000
W_HN = 0xC00000
W_QKV = 0x1000000
W_KVM = 0x4000000
W_O = 0x5000000
W_ACT = 0x6000000
W_PW = 0x8000000
W_PF = 0x9000000
SEG_XN = 36 * 1024
SEG_QKV = 768 * 1024
SEG_O = 256 * 1024
SEG_ACT = 288 * 1024
NPW, NPF = 4, 6
SEG_PW = NPW * 36 * 1024
SEG_PF = NPF * 36 * 1024
P_TASK = 4224
F_XN = 0x2000 + 0
F_QKV = 0x2000 + 256
F_CH = 0x2000 + 512
F_ATT = 0x2000 + 640
F_WO = 0x2000 + 768
F_LN2 = 0x2000 + 896
F_F1 = 0x2000 + 1024
F_F2 = 0x2000 + 1408
D_READY, D_CBAR, D_ERR = 8, 9, 11
SENT = 0xFF81FF81
```

```python
import math
from asmlib import *
from layout import *
from chain import Q

M16 = 'v_mfma_f32_16x16x16_bf16'
M32 = 'v_mfma_f32_16x16x32_bf16'


def roles(G):
    A, WS, OPT = G.A, G.WS, G.OPT
    S_W, S_X, S_T = G.S_W, G.S_X, G.S_T

    def cvt(d, s, s2=None):
        A('v_cvt_pk_bf16_f32 v%d, v%d, v%d' % (d, s, s + 1 if s2 is None else s2))

    def publish(soff, sval, q=None):
        A('v_mov_b32 v7, %s' % sval)
        A('s_mov_b64 exec, 1')
        t = 'buffer_store_dword v7, off, %s, %s sc1' % (WS, soff)
        if q is None:
            A(t)
        else:
            q.op('pub', t)
        A('s_mov_b64 exec, -1')

    def wreg(f, nf, sub=None):
        k, b = ('a', 4 * f) if f < 64 else ('v', 256 - 4 * (nf - f))
        return vr(b, 4, k) if sub is None else vr(b + 2 * sub, 2, k)

    def load_weights(units, nf, stride, krow):
        NS = 20
        VQ = Q(A, 'vmcnt')
        A('s_mul_i32 s30, %s, %d' % (S_W, NS * 2048))

        def dma(n):
            sd, vo, col, k, _ = units[n]
            for i in range(2):
                A('s_add_u32 m0, s30, %d' % ((n % NS) * 2048 + i * 1024))
                A('s_mov_b32 s31, %d' % ((32 * k + 16 * i) * stride + col))
                VQ.op(n, 'buffer_load_dwordx4 %s, %s, s31 offen lds' % (vo, sd))
        for n in range(min(NS, len(units))):
            dma(n)
        GR = 3
        usep = 256 if krow == 'N' else 1024
        for n0 in range(0, len(units), GR):
            ns = list(range(n0, min(n0 + GR, len(units))))
            VQ.wait(ns[-1])
            for n in ns:
                for f, va, off in units[n][4]:
                    for u in range(2):
                        A('ds_read_b64_tr_b16 %s, %s offset:%d' % (wreg(f, nf, u), va, (n % NS) * 2048 + u * usep + off))
            A('s_waitcnt lgkmcnt(0)')
            for n in ns:
                if n + NS < len(units):
                    dma(n + NS)

    def w_lane(stride, krow, ccol):
        A('v_lshrrev_b32 v7, 2, v1')
        A('v_mul_u32_u24 v8, %d, v7' % stride)
        A('v_and_b32 v6, 3, v1')
        A('v_lshl_add_u32 v8, v6, 4, v8')
        A('v_lshrrev_b32 v5, 4, v1')
        A('v_and_b32 v7, 3, v7')
        A('v_lshl_add_u32 v7, v5, %d, v7' % (3 if krow == 'N' else 2))
        A('v_lshlrev_b32 v10, 6, v7')
        A('v_lshl_add_u32 v10, v6, %d, v10' % (4 if ccol == 'N' else 3))
        A('s_mul_i32 s30, %s, %d' % (S_W, 20 * 2048))
        A('v_add_u32 v10, s30, v10')

    S_U, S_DST, S_SRC, S_LDS, S_NEED, S_FLG, S_PUB = ['s%d' % i for i in range(40, 47)]

    def gemm(name, KS, NT, TS, ND, WPART, BUF, STEP, dsrc, ddst, checks, pubk, NB, PF, swaps, epi, mid=None, late=None):
        NF = KS * TS
        nf = KS * NT
        ACC = 8
        RING = ACC + 4 * NT * TS
        always = not checks
        A('v_lshlrev_b32 v0, 4, v1')
        A('v_mov_b32 v3, v0')
        A('v_mov_b32 v5, 0')
        A('s_mul_i32 %s, %s, %d' % (S_LDS, S_W, WPART))
        A('s_mov_b32 %s, 0' % S_PUB)
        A('s_barrier')

        def dma(i, VQ):
            if i % 4 == 0:
                A('s_add_u32 m0, %s, %d' % (S_LDS, i * 1024))
                if i:
                    A('s_add_u32 s47, %s, %d' % (S_SRC, i * 1024))
            VQ.op('dma', 'buffer_load_dwordx4 v0, %s, %s offen offset:%d sc1 lds' % (WS, 's47' if i >= 4 else S_SRC, (i % 4) * 1024))
            if i == ND - 1:
                A('s_add_u32 %s, %s, %d' % (S_SRC, S_SRC, dsrc))
                A('s_xor_b32 %s, %s, %d' % (S_LDS, S_LDS, BUF))

        def poll(VQ):
            VQ.op('poll', 'buffer_load_dword v5, v4, %s, 0 offen sc1' % WS)

        def body(j0, VQ, LQ, issued, nst):
            pieces = {}
            if issued is not None:
                gap = max(1, min(3, (NF - 1 - j0) // ND))
                for i in range(ND):
                    pieces.setdefault(min(j0 + i * gap, NF - 1), []).append(i)
                pollk = max(max(pieces) + 1, NF - (700 // (16 * NT)))
            for j in range(j0, NF):
                T, k = divmod(j, KS)
                if issued is None and j in (checks or [0]) and (j > j0 or j == 0):
                    if always:
                        A('s_cmp_lt_u32 %s, 64' % S_NEED)
                        A('s_cbranch_scc1 %s_V%d' % (name, j))
                    else:
                        A('s_cbranch_vccz %s_V%d' % (name, j))
                    variants.append((j, list(VQ.q), list(LQ.q)))
                    if not always:
                        poll(VQ)
                LQ.wait('f%d' % j)
                b = vr(RING + 4 * (j % NB), 4)
                fill = []
                if j + PF < NF:
                    fill.append(lambda j=j: LQ.op('f%d' % (j + PF), 'ds_read_b128 %s, v3 offset:%d' % (vr(RING + 4 * ((j + PF) % NB), 4), (j + PF) * 1024)))
                for i in pieces.get(j, ()):
                    fill.append(lambda i=i: dma(i, VQ))
                if j == pubk:
                    def pub():
                        L = A.newlabel('NP')
                        A('s_cmp_eq_u32 %s, 0' % S_PUB)
                        A('s_cbranch_scc1 %s' % L)
                        VQ.wait('st')
                        publish(S_FLG, S_U)
                        A('s_mov_b32 %s, 0' % S_PUB)
                        A.label(L)
                        VQ.q.append('pub?')
                    fill.append(pub)
                if issued is not None and not always and j == pollk:
                    fill.append(lambda: poll(VQ))
                if mid:
                    fill += mid(j, VQ)
                if issued is None and (j + 1) in checks:
                    fill.append(lambda: A('v_cmp_ge_u32 vcc, %s, v5' % S_NEED))
                for t in range(NT):
                    d = vr(ACC + 4 * (T * NT + t), 4)
                    w = wreg(k * NT + t, nf)
                    x, y = (b, w) if t in swaps else (w, b)
                    A('%s %s, %s, %s, %s' % (M32, d, x, y, '0' if k == 0 else d))
                    n = 1 if t < NT - 1 else len(fill)
                    for f in fill[:n]:
                        f()
                    fill = fill[n:]
            A('v_xor_b32 v3, %d, v3' % BUF)
            epi(VQ)
            A('s_add_u32 %s, %s, %d' % (S_DST, S_DST, ddst))
            A('s_add_u32 %s, %s, %d' % (S_U, S_U, STEP))

        def strict(VQ, tag):
            VQ.q = [x for x in VQ.q if x != 'pub?']
            VQ.wait(tag)

        variants = []
        A.label(name + '_S')
        if not always:
            A('s_add_u32 s48, %s, 1' % S_U)
            G.spin('v4', 'v5', 's48', 20)
        VQ = Q(A, 'vmcnt')
        for i in range(ND):
            dma(i, VQ)
        A('s_waitcnt vmcnt(0)')
        A.label(name + '_L')
        A('s_barrier')
        if OPT['ts']:
            L = A.newlabel('TS')
            if STEP == 1:
                A('s_cmp_lt_u32 %s, %d' % (S_U, OPT['ts0']))
                A('s_cbranch_scc1 %s' % L)
            G.ts()
            A.label(L)
        LQ = Q(A, 'lgkmcnt')
        for j in range(PF):
            LQ.op('f%d' % j, 'ds_read_b128 %s, v3 offset:%d' % (vr(RING + 4 * (j % NB), 4), j * 1024))
        A('s_add_u32 %s, %s, %d' % (S_NEED, S_U, STEP))
        if not always:
            A('s_cmp_lt_u32 %s, 64' % S_NEED)
            A('s_cselect_b32 %s, %s, -1' % (S_NEED, S_NEED))
            A('v_cmp_ge_u32 vcc, %s, v5' % S_NEED)
        VQ = Q(A, 'vmcnt')
        VQ.q = ['st']
        body(0, VQ, LQ, None, 0)
        if not always:
            poll(VQ)
        strict(VQ, 'st')
        publish(S_FLG, S_U)
        A('s_cmp_ge_u32 %s, 64' % S_U)
        A('s_cbranch_scc1 %s_E' % name)
        A('s_branch %s_S' % name)
        for j, vq, lq in variants:
            A.label('%s_V%d' % (name, j))
            VQ = Q(A, 'vmcnt')
            VQ.q = vq
            LQ = Q(A, 'lgkmcnt')
            LQ.q = lq
            body(j, VQ, LQ, j, 0)
            if late is not None and j >= late:
                A('s_waitcnt vmcnt(0)')
                publish(S_FLG, S_U)
            else:
                strict(VQ, 'dma')
                A('s_mov_b32 %s, 1' % S_PUB)
            A('s_branch %s_L' % name)
        A.label(name + '_E')
        G.ts()

    def red(r, t):
        A('v_add_f32_dpp v%d, v%d, v%d row_ror:8 row_mask:0xf bank_mask:0xf' % (r, r, r))
        A('v_mov_b32 v%d, v%d' % (t, r))
        A('v_permlane16_swap_b32 v%d, v%d' % (r, t))
        A('v_add_f32 v%d, v%d, v%d' % (r, r, t))
        A('v_mov_b32 v%d, v%d' % (t, r))
        A('v_permlane32_swap_b32 v%d, v%d' % (r, t))
        A('v_add_f32 v%d, v%d, v%d' % (r, r, t))

    def oct_lanes(vrow, vfrag, vhalf=None):
        A('v_and_b32 v7, 7, v1')
        A('v_bfe_u32 v6, v1, 3, 1')
        A('v_lshrrev_b32 v5, 4, v1')
        A('v_mul_u32_u24 %s, 1152, v7' % vrow)
        A('v_lshl_add_u32 %s, v6, 6, %s' % (vrow, vrow))
        A('v_lshl_add_u32 %s, v5, 4, %s' % (vrow, vrow))
        A('v_lshl_add_u32 v7, v5, 4, v7')
        A('v_lshlrev_b32 v6, 10, v6')
        A('v_lshl_add_u32 %s, v7, 4, v6' % vfrag)
        if vhalf:
            A('v_lshl_add_u32 %s, v7, 3, v6' % vhalf)

    def ln1():
        G.srd(20, G.P_X, 2048 * 1152)
        oct_lanes('v3', 'v4')
        A('s_lshl_b32 s36, s35, 2')
        A('s_add_u32 s36, s36, %s' % S_W)
        A('s_mul_i32 s32, s36, %d' % (8 * 1152))
        A('s_lshr_b32 s33, s36, 1')
        A('s_mul_i32 s33, s33, 18432')
        A('s_and_b32 s34, %s, 1' % S_W)
        A('s_lshl_b32 s34, s34, 7')
        A('s_add_u32 s33, s33, s34')
        A('s_add_u32 s33, s33, 0x%x' % W_XN)
        X, F = 16, 52
        for i in range(9):
            A('buffer_load_dwordx4 %s, v3, s[20:23], s32 offen offset:%d' % (vr(X + 4 * i, 4), i * 128))
        for i in range(9):
            A('s_waitcnt vmcnt(%d)' % (8 - i))
            for j in range(4):
                r = X + 4 * i + j
                A('v_lshlrev_b32 v%d, 16, v%d' % (F + 2 * (4 * i + j), r))
                A('v_and_b32 v%d, 0xffff0000, v%d' % (F + 2 * (4 * i + j) + 1, r))
            for j in range(4):
                p = F + 2 * (4 * i + j)
                acc = 8 + 2 * (j & 1)
                if i == 0 and j < 2:
                    A('v_pk_add_f32 %s, %s, %s' % (vr(acc, 2), vr(p, 2), vr(p + 4, 2)))
                elif i > 0:
                    A('v_pk_add_f32 %s, %s, %s' % (vr(acc, 2), vr(acc, 2), vr(p, 2)))
        A('v_pk_add_f32 v[8:9], v[8:9], v[10:11]')
        A('v_add_f32 v8, v8, v9')
        red(8, 9)
        A('v_mul_f32 v12, %s, v8' % G.fbits(-1.0 / 576))
        A('v_mov_b32 v13, v12')
        for i in range(36):
            p = F + 2 * i
            A('v_pk_add_f32 %s, %s, v[12:13]' % (vr(p, 2), vr(p, 2)))
        for i in range(36):
            p = F + 2 * i
            acc = 8 + 2 * (i & 1)
            if i < 2:
                A('v_pk_mul_f32 %s, %s, %s' % (vr(acc, 2), vr(p, 2), vr(p, 2)))
            else:
                A('v_pk_fma_f32 %s, %s, %s, %s' % (vr(acc, 2), vr(p, 2), vr(p, 2), vr(acc, 2)))
        A('v_pk_add_f32 v[8:9], v[8:9], v[10:11]')
        A('v_add_f32 v8, v8, v9')
        red(8, 9)
        A('v_mov_b32 v9, %s' % G.fbits(1e-5))
        A('v_fmac_f32 v9, %s, v8' % G.fbits(1.0 / 576))
        A('v_rsq_f32 v12, v9')
        A('v_mov_b32 v13, v12')
        for i in range(9):
            for j in range(4):
                p = F + 2 * (4 * i + j)
                A('v_pk_mul_f32 %s, %s, v[12:13]' % (vr(p, 2), vr(p, 2)))
            for j in range(4):
                cvt(X + 4 * i + j, F + 2 * (4 * i + j))
            if i and i % 2 == 0:
                A('s_add_u32 s33, s33, 4096')
            A('buffer_store_dwordx4 %s, v4, %s, s33 offen offset:%d sc1' % (vr(X + 4 * i, 4), WS, (i & 1) * 2048))
        G.wait_ready('v6', 'v7')
        A('s_add_u32 s36, s36, %d' % F_XN)
        A('s_lshl_b32 s36, s36, 2')
        publish('s36', '1')
        G.ts()

    ID, RA, RB = 10, 12, 40

    def ident():
        A('v_and_b32 v7, 15, v1')
        A('v_lshrrev_b32 v6, 4, v1')
        A('v_lshlrev_b32 v6, 2, v6')
        A('v_sub_u32 v7, v7, v6')
        A('v_mov_b32 v5, 0x3f80')
        A('v_mov_b32 v6, 0x3f800000')
        for i in range(2):
            A('v_mov_b32 v%d, 0' % (ID + i))
            A('v_cmp_eq_u32 vcc, %d, v7' % (2 * i))
            A('v_cndmask_b32 v%d, v%d, v5, vcc' % (ID + i, ID + i))
            A('v_cmp_eq_u32 vcc, %d, v7' % (2 * i + 1))
            A('v_cndmask_b32 v%d, v%d, v6, vcc' % (ID + i, ID + i))

    def part_loads(VQ, np_, sbase):
        for n in range(np_):
            r = RB + 12 * (n + 1)
            if n:
                A('s_add_u32 %s, %s, 18432' % (sbase, sbase))
            for p in range(2):
                VQ.op((n + 1, p), 'buffer_load_dwordx4 %s, v8, %s, %s offen offset:%d sc1' % (vr(r + 4 * p, 4), WS, sbase, p * 2048))
            for i in range(2):
                VQ.op((n + 1, 2), 'buffer_load_dwordx2 %s, v9, %s, %s offen offset:%d sc1' % (vr(r + 8 + 2 * i, 2), WS, sbase, i * 512))

    def part_sum(VQ, np_):
        for n in range(np_ + 1):
            for p in range(3):
                VQ.wait((n, p))
                for i in range(2):
                    d = vr(RA + 8 * p + 4 * i, 4)
                    A('%s %s, %s, %s, %s' % (M16, d, vr(ID, 2), vr(RB + 12 * n + 4 * p + 2 * i, 2), '0' if n == 0 else d))

    def role_ln2():
        A('s_cmp_eq_u32 %s, 3' % S_W)
        A('s_cbranch_scc1 EXIT')
        G.srd(20, G.P_X, 2048 * 1152)
        ident()
        oct_lanes('v3', 'v8', 'v9')
        A('s_lshr_b32 s40, s35, 2')
        A('s_and_b32 s36, s35, 3')
        A('s_lshr_b32 s37, s36, 1')
        A('s_and_b32 s38, s36, 1')
        A('s_mul_i32 s32, s36, %d' % (8 * 1152))
        A('s_mul_i32 s33, %s, 384' % S_W)
        A('s_add_u32 s32, s32, s33')
        A('v_add_u32 v3, s32, v3')
        A('s_mul_i32 s33, %s, 6144' % S_W)
        A('s_lshl_b32 s34, s38, 7')
        A('s_add_u32 s34, s34, s33')
        A('v_add_u32 v8, s34, v8')
        A('s_lshl_b32 s34, s38, 6')
        A('s_add_u32 s34, s34, s33')
        A('s_add_u32 s34, s34, 4096')
        A('v_add_u32 v9, s34, v9')
        A('s_lshl_b32 s34, s37, 2')
        A('s_add_u32 s34, s34, %s' % S_W)
        A('s_lshl_b32 s34, s34, 4')
        A('s_add_u32 s34, s34, %d' % F_WO)
        A('v_and_b32 v4, 15, v1')
        A('v_add_u32 v4, s34, v4')
        A('v_lshlrev_b32 v4, 2, v4')
        A('s_lshl_b32 s45, s40, 1')
        A('s_add_u32 s45, s45, s38')
        A('s_mul_i32 s45, s45, 3')
        A('s_add_u32 s45, s45, %s' % S_W)
        A('s_lshl_b32 s34, s37, 5')
        A('s_add_u32 s45, s45, s34')
        A('s_add_u32 s45, s45, %d' % F_LN2)
        A('s_lshl_b32 s45, s45, 2')
        A('v_and_b32 v0, 7, v1')
        A('v_lshlrev_b32 v0, 3, v0')
        A('s_lshl_b32 s34, %s, 6' % S_W)
        A('s_mul_i32 s41, s37, %d' % (NPW * 18432))
        A('s_add_u32 s41, s41, 0x%x' % W_PW)
        A('s_mul_i32 s42, s37, 18432')
        G.wait_ready('v6', 'v7')
        A('v_add_u32 v6, s34, v0')
        A.label('LN2_L')
        VQ = Q(A, 'vmcnt')
        A('s_mul_i32 s43, s40, %d' % SEG_XN)
        for p in range(3):
            A('buffer_load_dwordx4 %s, v3, s[20:23], s43 offen offset:%d' % (vr(RB + 4 * p, 4), p * 128))
        A('s_mul_i32 s44, s40, %d' % SEG_PW)
        A('s_add_u32 s44, s44, s41')
        A('s_add_u32 s48, s40, 1')
        G.spin('v4', 'v5', 's48', 21)
        G.ts()
        part_loads(VQ, NPW, 's44')
        part_sum(VQ, NPW)
        A('s_add_u32 s43, s43, s42')
        A('s_add_u32 s44, s43, 0x%x' % W_HB)
        A('s_add_u32 s43, s43, 0x%x' % W_HN)
        A('s_add_u32 s46, s44, 4096')
        A('s_add_u32 s47, s43, 4096')
        t = RB + 12
        for i in range(3):
            A('v_pk_add_f32 %s, %s, %s' % (vr(t + 2 * i, 2), vr(RA + 2 * i, 2), vr(RA + 6 + 2 * i, 2)))
        for i in range(6):
            A('v_pk_add_f32 %s, %s, %s' % (vr(t + 2 * (i % 3), 2), vr(t + 2 * (i % 3), 2), vr(RA + 12 + 2 * i, 2)))
        A('v_pk_add_f32 %s, %s, %s' % (vr(t, 2), vr(t, 2), vr(t + 2, 2)))
        A('v_pk_add_f32 %s, %s, %s' % (vr(t, 2), vr(t, 2), vr(t + 4, 2)))
        A('v_add_f32 v%d, v%d, v%d' % (t, t, t + 1))
        for i in range(12):
            cvt(RB + i, RA + 2 * i)
        red(t, t + 1)
        A('v_mul_f32 v%d, %s, v%d' % (t + 8, G.fbits(1.0 / 192), t))
        A('v_mul_f32 v%d, %s, v%d' % (t + 6, G.fbits(-1.0 / 192), t))
        A('v_mov_b32 v%d, v%d' % (t + 7, t + 6))
        for i in range(12):
            A('v_pk_add_f32 %s, %s, %s' % (vr(RA + 2 * i, 2), vr(RA + 2 * i, 2), vr(t + 6, 2)))
        for i in range(12):
            a = vr(t + 2 * (i % 3), 2)
            p = vr(RA + 2 * i, 2)
            if i < 3:
                A('v_pk_mul_f32 %s, %s, %s' % (a, p, p))
            else:
                A('v_pk_fma_f32 %s, %s, %s, %s' % (a, p, p, a))
        A('v_pk_add_f32 %s, %s, %s' % (vr(t, 2), vr(t, 2), vr(t + 2, 2)))
        A('v_pk_add_f32 %s, %s, %s' % (vr(t, 2), vr(t, 2), vr(t + 4, 2)))
        A('v_add_f32 v%d, v%d, v%d' % (t + 9, t, t + 1))
        red(t + 9, t + 1)
        A('ds_write_b64 v6, %s' % vr(t + 8, 2))
        for p in range(3):
            A('buffer_store_dwordx4 %s, v8, %s, %s offen offset:%d sc1' % (vr(RB + 4 * p, 4), WS, 's44' if p < 2 else 's46', (p & 1) * 2048))
        A('s_waitcnt lgkmcnt(0)')
        A('s_barrier')
        for j in range(3):
            A('ds_read_b64 %s, v0 offset:%d' % (vr(t + 2 * j, 2), j * 64))
        A('v_xor_b32 v0, 256, v0')
        A('v_xor_b32 v6, 256, v6')
        A('s_waitcnt lgkmcnt(0)')
        m, v = t + 10, t + 11
        A('v_add_f32 v%d, v%d, v%d' % (m, t, t + 2))
        A('v_add_f32 v%d, v%d, v%d' % (v, t + 1, t + 3))
        A('v_add_f32 v%d, v%d, v%d' % (m, m, t + 4))
        A('v_add_f32 v%d, v%d, v%d' % (v, v, t + 5))
        A('v_mul_f32 v%d, %s, v%d' % (m, G.fbits(1.0 / 3), m))
        A('v_mul_f32 v%d, %s, v%d' % (v, G.fbits(1.0 / 192), v))
        for j in range(3):
            A('v_sub_f32 v%d, v%d, v%d' % (t + 2 * j, t + 2 * j, m))
        for j in range(3):
            A('v_fmac_f32 v%d, v%d, v%d' % (v, t + 2 * j, t + 2 * j))
        A('v_mov_b32 v%d, %s' % (t, G.fbits(1e-5)))
        A('v_fmac_f32 v%d, %s, v%d' % (t, G.fbits(1.0 / 3), v))
        A('v_rsq_f32 v%d, v%d' % (t, t))
        A('v_sub_f32 v%d, v%d, v%d' % (t + 2, t + 8, m))
        A('v_mov_b32 v%d, v%d' % (t + 1, t))
        A('v_mul_f32 v%d, v%d, v%d' % (t + 2, t + 2, t))
        A('v_mov_b32 v%d, v%d' % (t + 3, t + 2))
        H = RB + 24
        for p in range(3):
            for i in range(4):
                a = vr(RA + 8 * p + 2 * i, 2)
                A('v_pk_fma_f32 %s, %s, %s, %s' % (a, a, vr(t, 2), vr(t + 2, 2)))
            for i in range(4):
                cvt(H + 4 * p + i, RA + 8 * p + 2 * i)
            A('buffer_store_dwordx4 %s, v8, %s, %s offen offset:%d sc1' % (vr(H + 4 * p, 4), WS, 's43' if p < 2 else 's47', (p & 1) * 2048))
        A('s_add_u32 s40, s40, 3')
        A('s_waitcnt vmcnt(0)')
        publish('s45', 's40')
        G.ts()
        A('s_cmp_lt_u32 s40, 64')
        A('s_cbranch_scc1 LN2_L')

    def role_fin():
        G.srd(20, G.P_OUT, 2048 * 1152)
        ident()
        oct_lanes('v3', 'v0', 'v4')
        A('v_add_u32 v36, 4096, v4')
        A('v_min_u32 v4, 23, v1')
        A('v_lshlrev_b32 v4, 2, v4')
        A.label('FIN_L')
        A('s_mul_i32 s40, s35, 43691')
        A('s_lshr_b32 s40, s40, 19')
        A('s_mul_i32 s36, s40, 12')
        A('s_sub_u32 s36, s35, s36')
        A('s_and_b32 s37, s36, 3')
        A('s_lshr_b32 s36, s36, 2')
        A('s_lshr_b32 s38, s37, 1')
        A('s_and_b32 s39, s37, 1')
        A('s_mul_i32 s33, s36, 6144')
        A('s_lshl_b32 s34, s39, 7')
        A('s_add_u32 s34, s34, s33')
        A('v_add_u32 v8, s34, v0')
        A('s_lshl_b32 s34, s39, 6')
        A('s_add_u32 s34, s34, s33')
        A('v_add_u32 v9, s34, v36')
        A('s_lshl_b32 s34, s38, 2')
        A('s_add_u32 s34, s34, s36')
        A('s_lshl_b32 s34, s34, 7')
        A('s_add_u32 s34, s34, %d' % (F_F2 * 4))
        A('s_lshl_b32 s41, s40, 1')
        A('s_add_u32 s41, s41, s38')
        A('s_mul_i32 s43, s41, 18432')
        A('s_add_u32 s43, s43, 0x%x' % W_HB)
        A('s_add_u32 s46, s43, 4096')
        A('s_mul_i32 s44, s41, %d' % (NPF * 18432))
        A('s_add_u32 s44, s44, 0x%x' % W_PF)
        A('s_add_u32 s48, s40, 1')
        G.spin('v4', 'v5', 's48', 22, WS, 's34')
        G.ts()
        VQ = Q(A, 'vmcnt')
        for p in range(3):
            VQ.op((0, p), 'buffer_load_dwordx4 %s, v8, %s, %s offen offset:%d sc1' % (vr(RB + 4 * p, 4), WS, 's43' if p < 2 else 's46', (p & 1) * 2048))
        part_loads(VQ, NPF, 's44')
        A('s_lshl_b32 s41, s40, 2')
        A('s_add_u32 s41, s41, s37')
        A('s_mul_i32 s41, s41, %d' % (8 * 1152))
        A('s_mul_i32 s33, s36, 384')
        A('s_add_u32 s41, s41, s33')
        part_sum(VQ, NPF)
        for p in range(3):
            for i in range(4):
                cvt(RB + 4 * p + i, RA + 8 * p + 2 * i)
            A('buffer_store_dwordx4 %s, v3, s[20:23], s41 offen offset:%d' % (vr(RB + 4 * p, 4), p * 128))
        A('s_add_u32 s35, s35, 256')
        A('s_cmp_lt_u32 s35, 768')
        A('s_cbranch_scc1 FIN_L')

    def role_qkv():
        G.srd(12, G.P_WQ, 576 * 8192)
        G.srd(16, G.P_WK, 576 * 8192)
        G.srd(20, G.P_WV, 576 * 8192)
        w_lane(8192, 'N', 'D')
        A('s_lshl_b32 s34, s36, 2')
        A('s_add_u32 s34, s34, %s' % S_W)
        A('s_lshl_b32 s33, s34, 6')
        A('v_add_u32 v8, s33, v8')
        units = []
        for k in range(18):
            for m in range(3):
                units.append((sr(12 + 4 * m, 4), 'v8', 0, k, [(k * 6 + 2 * m + t, 'v10', 32 * t) for t in range(2)]))
        load_weights(units, 108, 8192, 'N')
        G.ts()
        G.wait_ready('v6', 'v7')
        A('v_lshlrev_b32 v4, 2, v1')
        for i in range(4):
            A('s_mov_b32 s48, %d' % (F_XN * 4 + i * 256))
            G.spin('v4', 'v5', '1', 23, WS, 's48')
        A('s_mov_b32 %s, s37' % S_U)
        A('s_mul_i32 %s, s37, %d' % (S_DST, SEG_QKV))
        A('s_mul_i32 s33, s36, 24576')
        A('s_add_u32 %s, %s, s33' % (S_DST, S_DST))
        A('s_lshl_b32 s50, %s, 11' % S_W)
        A('s_add_u32 %s, %s, s50' % (S_DST, S_DST))
        A('s_add_u32 %s, %s, 0x%x' % (S_DST, S_DST, W_QKV))
        A('s_add_u32 s50, s50, 8192')
        A('s_mul_i32 %s, s37, %d' % (S_SRC, SEG_XN))
        A('s_mul_i32 s33, %s, 9216' % S_W)
        A('s_add_u32 %s, %s, s33' % (S_SRC, S_SRC))
        A('s_add_u32 %s, %s, 0x%x' % (S_SRC, S_SRC, W_XN))
        A('s_lshl_b32 s35, s36, 1')
        A('s_add_u32 s35, s35, s37')
        A('s_lshl_b32 s35, s35, 2')
        A('s_add_u32 s35, s35, %s' % S_W)
        A('s_add_u32 %s, s35, %d' % (S_FLG, F_QKV))
        A('s_lshl_b32 %s, %s, 2' % (S_FLG, S_FLG))
        a, b = 8, 32

        def st(VQ, r, so, off):
            VQ.op('st', 'buffer_store_dwordx4 %s, v0, %s, %s offen offset:%d sc1' % (vr(r, 4), WS, so, off))

        def mid(j, VQ):
            if j == 19:
                return [lambda: [cvt(a + i, a + 2 * i) for i in range(2)], lambda: [cvt(a + i, a + 2 * i) for i in range(2, 4)],
                        lambda: st(VQ, a, S_DST, 0), lambda: A('s_add_u32 s49, %s, s50' % S_DST)]
            if j == 20:
                return [lambda: [cvt(a + 8 + i, a + 8 + 2 * i) for i in range(2)], lambda: [cvt(a + 8 + i, a + 8 + 2 * i) for i in range(2, 4)],
                        lambda: st(VQ, a + 8, 's49', 0)]
            if j == 22:
                return [lambda: [cvt(a + 16 + i, a + 16 + 2 * i) for i in range(2)], lambda: [cvt(a + 20 + i, a + 20 + 2 * i) for i in range(2)]]
            return []

        def epi(VQ):
            for m, so in ((0, S_DST), (8, 's49')):
                for i in range(4):
                    cvt(b + m + i, b + m + 2 * i)
                st(VQ, b + m, so, 1024)
            for t in range(2):
                for i in range(2):
                    cvt(a + 18 + 4 * t + i, b + 16 + 4 * t + 2 * i)
                st(VQ, a + 16 + 4 * t, 's49', 2048 + 1024 * t)
        gemm('QKV', 18, 6, 2, 9, 9216, 65536, 2, 2 * SEG_XN, 2 * SEG_QKV, [], 7, 6, 4, (4, 5), epi, mid)

    def role_f1():
        A('s_lshl_b32 s35, s36, 1')
        A('s_add_u32 s35, s35, s37')
        A('s_mov_b32 s38, s36')
        A('s_cmp_ge_u32 s35, 64')
        A('s_cbranch_scc1 F1_NL')
        ln1()
        A.label('F1_NL')
        G.srd(12, G.P_WG, 576 * 9216)
        G.srd(16, G.P_WU, 576 * 9216)
        w_lane(9216, 'N', 'N')
        A('s_lshl_b32 s34, s38, 2')
        A('s_add_u32 s34, s34, %s' % S_W)
        A('s_lshl_b32 s33, s34, 6')
        A('v_add_u32 v8, s33, v8')
        units = []
        for k in range(18):
            for m in range(2):
                units.append((sr(12 + 4 * m, 4), 'v8', 0, k, [(k * 4 + 2 * m + t, 'v10', 8 * t) for t in range(2)]))
        load_weights(units, 72, 9216, 'N')
        G.ts()
        G.wait_ready('v6', 'v7')
        A('s_mov_b32 %s, 0' % S_U)
        A('s_mul_i32 %s, s37, 144' % S_DST)
        A('s_add_u32 %s, %s, s34' % (S_DST, S_DST))
        A('s_lshl_b32 %s, %s, 10' % (S_DST, S_DST))
        A('s_add_u32 %s, %s, 0x%x' % (S_DST, S_DST, W_ACT))
        A('s_mul_i32 %s, s37, 18432' % S_SRC)
        A('s_mul_i32 s33, %s, 4480' % S_W)
        A('s_add_u32 %s, %s, s33' % (S_SRC, S_SRC))
        A('s_add_u32 %s, %s, 0x%x' % (S_SRC, S_SRC, W_HN))
        A('s_mul_i32 %s, s37, 160' % S_FLG)
        A('s_add_u32 %s, %s, s34' % (S_FLG, S_FLG))
        A('s_add_u32 %s, %s, %d' % (S_FLG, S_FLG, F_F1))
        A('s_lshl_b32 %s, %s, 2' % (S_FLG, S_FLG))
        A('s_lshl_b32 s33, s37, 5')
        A('s_add_u32 s33, s33, %d' % F_LN2)
        A('v_min_u32 v4, 17, v1')
        A('v_add_u32 v4, s33, v4')
        A('v_lshlrev_b32 v4, 2, v4')
        A('s_mov_b32 s50, %s' % G.fbits(-G.LOG2E))

        def epi(VQ):
            g, u, t = 8, 16, 60
            for i in range(8):
                A('v_mul_f32 v%d, s50, v%d' % (t + i, g + i))
            for i in range(8):
                A('v_exp_f32 v%d, v%d' % (t + i, t + i))
            for i in range(8):
                A('v_add_f32 v%d, 1.0, v%d' % (t + i, t + i))
            for i in range(8):
                A('v_rcp_f32 v%d, v%d' % (t + i, t + i))
            for i in range(4):
                A('v_pk_mul_f32 %s, %s, %s' % (vr(g + 2 * i, 2), vr(g + 2 * i, 2), vr(u + 2 * i, 2)))
            for i in range(4):
                A('v_pk_mul_f32 %s, %s, %s' % (vr(g + 2 * i, 2), vr(g + 2 * i, 2), vr(t + 2 * i, 2)))
            for i in range(4):
                cvt(t + 8 + i, g + 2 * i)
            VQ.op('st', 'buffer_store_dwordx4 %s, v0, %s, %s offen sc1' % (vr(t + 8, 4), WS, S_DST))
        gemm('F1', 18, 4, 1, 5, 4480, 32768, 1, SEG_XN, SEG_ACT, [0, 5, 10, 14], 8, 8, 5, (), epi, late=10)

    def role_part(name):
        wo = name == 'WO'
        KS, NP = (32, NPW) if wo else (24, NPF)
        G.srd(12, G.P_WO if wo else G.P_WD, NP * KS * 32 * 1152)
        krow = 'D' if wo else 'N'
        w_lane(1152, krow, 'N')
        A('s_mul_i32 s33, s36, %d' % (KS * 32 * 1152))
        A('s_mul_i32 s34, s38, 384')
        A('s_add_u32 s33, s33, s34')
        A('s_lshr_b32 s34, %s, 1' % S_W)
        A('s_lshl_b32 s34, s34, 6')
        A('s_add_u32 s34, s34, s33')
        A('v_add_u32 v9, s34, v8')
        A('s_lshl_b32 s34, %s, 6' % S_W)
        A('s_add_u32 s34, s34, s33')
        A('v_add_u32 v8, s34, v8')
        A('s_and_b32 s34, %s, 1' % S_W)
        A('s_lshl_b32 s34, s34, 3')
        A('v_add_u32 v11, s34, v10')
        units = []
        for k in range(KS):
            units.append(('s[12:15]', 'v8', 0, k, [(k * 3 + t, 'v10', 8 * t) for t in range(2)]))
            units.append(('s[12:15]', 'v9', 256, k, [(k * 3 + 2, 'v11', 0)]))
        load_weights(units, KS * 3, 1152, krow)
        G.ts()
        G.wait_ready('v6', 'v7')
        A('s_mov_b32 %s, 0' % S_U)
        A('s_mul_i32 s33, s37, %d' % NP)
        A('s_add_u32 s33, s33, s36')
        A('s_mul_i32 %s, s33, 18432' % S_DST)
        A('s_mul_i32 s34, s38, 6144')
        A('s_add_u32 %s, %s, s34' % (S_DST, S_DST))
        A('s_lshl_b32 s34, %s, 10' % S_W)
        A('s_add_u32 %s, %s, s34' % (S_DST, S_DST))
        A('s_add_u32 %s, %s, 0x%x' % (S_DST, S_DST, W_PW if wo else W_PF))
        A('s_lshl_b32 s34, %s, 9' % S_W)
        A('s_sub_u32 s34, 4096, s34')
        A('v_lshlrev_b32 v6, 3, v1')
        A('v_add_u32 v6, s34, v6')
        A('s_lshl_b32 s33, s33, 2')
        A('s_add_u32 s33, s33, %s' % S_W)
        A('s_mul_i32 %s, s33, %d' % (S_SRC, KS * 256))
        A('s_add_u32 %s, %s, 0x%x' % (S_SRC, S_SRC, W_O if wo else W_ACT))
        A('s_lshl_b32 s33, s36, 2')
        A('s_add_u32 s33, s33, %s' % S_W)
        A('s_lshl_b32 s34, s37, 2')
        A('s_add_u32 s34, s34, s38')
        A('s_lshl_b32 s34, s34, %d' % (4 if wo else 5))
        A('s_add_u32 %s, s34, s33' % S_FLG)
        A('s_add_u32 %s, %s, %d' % (S_FLG, S_FLG, F_WO if wo else F_F2))
        A('s_lshl_b32 %s, %s, 2' % (S_FLG, S_FLG))
        if wo:
            A('s_lshl_b32 s33, s33, 2')
            A('s_add_u32 s33, s33, %d' % F_ATT)
            A('v_and_b32 v4, 3, v1')
        else:
            A('s_mul_i32 s33, s33, 6')
            A('s_mul_i32 s34, s37, 160')
            A('s_add_u32 s33, s33, s34')
            A('s_add_u32 s33, s33, %d' % F_F1)
            A('v_min_u32 v4, 5, v1')
        A('v_add_u32 v4, s33, v4')
        A('v_lshlrev_b32 v4, 2, v4')

        def epi(VQ):
            for i in range(4):
                cvt(60 + i, 8 + 2 * i)
            VQ.op('st', 'buffer_store_dwordx4 v[60:63], v0, %s, %s offen sc1' % (WS, S_DST))
            for i in range(2):
                cvt(64 + i, 16 + 2 * i)
            VQ.op('st', 'buffer_store_dwordx2 v[64:65], v6, %s, %s offen sc1' % (WS, S_DST))
        if wo:
            gemm(name, 32, 3, 1, 8, 8192, 32768, 1, SEG_O, SEG_PW, [0, 8, 16, 24], 12, 8, 6, (), epi, late=16)
        else:
            gemm(name, 24, 3, 1, 6, 6144, 32768, 1, SEG_ACT, SEG_PF, [0, 6, 12, 18], 12, 8, 6, (), epi, late=12)

    def role_att():
        KM, VM, SX, SM, PB, PM, O, ST = 16, 32, 48, 60, 68, 76, 80, 144
        A('s_lshl_b32 s36, s35, 2')
        A('s_add_u32 s36, s36, %s' % S_W)
        A('s_lshr_b32 s37, s36, 1')
        A('s_and_b32 s40, s36, 1')
        A('v_lshlrev_b32 v0, 4, v1')
        A('v_and_b32 v7, 15, v1')
        A('v_lshrrev_b32 v6, 4, v1')
        A('v_lshlrev_b32 v6, 2, v6')
        A('v_sub_u32 v7, v7, v6')
        for r in range(4):
            A('v_cmp_le_i32 s[%d:%d], %d, v7' % (52 + 2 * r, 53 + 2 * r, r))
        A('v_mov_b32 v3, %s' % G.fbits(-1e9 * math.sqrt(128.0)))
        A('v_mov_b32 v%d, 0' % (PB + 2))
        A('v_mov_b32 v%d, 0' % (PB + 3))
        A('s_mov_b32 s50, %s' % G.fbits(G.LOG2E / math.sqrt(128.0)))
        A('s_add_u32 s45, s36, %d' % F_ATT)
        A('s_lshl_b32 s45, s45, 2')
        A('s_mul_i32 s41, s40, %d' % SEG_QKV)
        A('s_mul_i32 s33, s37, 24576')
        A('s_add_u32 s41, s41, s33')
        A('s_add_u32 s41, s41, 0x%x' % W_QKV)
        A('s_lshl_b32 s42, s40, 18')
        A('s_lshl_b32 s33, s37, 13')
        A('s_add_u32 s43, s42, s33')
        A('s_add_u32 s43, s43, 0x%x' % W_KVM)
        A('s_lshl_b32 s33, s37, 12')
        A('s_add_u32 s42, s42, s33')
        A('s_add_u32 s42, s42, 0x%x' % W_O)
        G.wait_ready('v6', 'v7')
        A('v_and_b32 v4, 7, v1')
        A('v_lshlrev_b32 v4, 2, v4')
        A('s_lshl_b32 s33, s37, 5')
        A('s_add_u32 s33, s33, %d' % (F_QKV * 4))
        G.spin('v4', 'v5', '2', 24, WS, 's33')
        A('v_and_b32 v4, 3, v1')
        A('s_lshl_b32 s33, s37, 2')
        A('s_add_u32 s33, s33, %d' % F_CH)
        A('v_add_u32 v4, s33, v4')
        A('v_lshlrev_b32 v4, 2, v4')
        A('v_mov_b32 v5, 0')

        def qf(z, w, T): return ar(96 * z + 4 * (2 * w + T), 4)
        def kf(z, w, T): return ar(96 * z + 32 + 4 * (2 * w + T), 4)
        def vf(z, w, t): return ar(96 * z + 64 + 4 * (2 * w + t), 4)

        def loads(z, VQ):
            for w in range(4):
                A('s_add_u32 s47, s41, %d' % (8192 + 4096 * w))
                for T in range(2):
                    VQ.op('k', 'buffer_load_dwordx4 %s, v0, %s, s47 offen offset:%d sc1' % (kf(z, w, T), WS, T * 1024))
                if w == 2:
                    A('s_add_u32 s46, s41, 4096')
                for T in range(2):
                    VQ.op('q', 'buffer_load_dwordx4 %s, v0, %s, %s offen offset:%d sc1' % (qf(z, w, T), WS, 's41' if w < 2 else 's46', (w & 1) * 2048 + T * 1024))
            for w in range(4):
                A('s_add_u32 s47, s41, %d' % (8192 + 4096 * w))
                for t in range(2):
                    VQ.op('v', 'buffer_load_dwordx4 %s, v0, %s, s47 offen offset:%d sc1' % (vf(z, w, t), WS, 2048 + t * 1024))
            A('s_add_u32 s41, s41, %d' % (2 * SEG_QKV))

        def xred(r, t, op):
            A('v_mov_b32 v%d, v%d' % (t, r))
            A('v_permlane16_swap_b32 v%d, v%d' % (r, t))
            A('%s v%d, v%d, v%d' % (op, r, r, t))

        def xred32(r, t, op):
            A('v_mov_b32 v%d, v%d' % (t, r))
            A('v_permlane32_swap_b32 v%d, v%d' % (r, t))
            A('%s v%d, v%d, v%d' % (op, r, r, t))

        def sx(z, VQ):
            VQ.wait('q')
            for w in range(4):
                for i, (tk, tq) in enumerate(((0, 0), (0, 1), (1, 1))):
                    d = vr(SX + 4 * i, 4)
                    A('%s %s, %s, %s, %s' % (M32, d, kf(z, w, tk), qf(z, w, tq), '0' if w == 0 else d))
            for b in (SX, SX + 8):
                for r in range(4):
                    A('v_cndmask_b32 v%d, v3, v%d, s[%d:%d]' % (b + r, b + r, 52 + 2 * r, 53 + 2 * r))
            A('v_max3_f32 v8, v%d, v%d, v%d' % (SX, SX + 1, SX + 2))
            A('v_max3_f32 v9, v%d, v%d, v%d' % (SX + 4, SX + 5, SX + 6))
            A('v_max_f32 v8, v8, v%d' % (SX + 3))
            A('v_max3_f32 v9, v9, v%d, v%d' % (SX + 7, SX + 8))
            A('v_max3_f32 v9, v9, v%d, v%d' % (SX + 9, SX + 10))
            A('v_max_f32 v9, v9, v%d' % (SX + 11))
            xred32(8, 10, 'v_max_f32')
            xred32(9, 11, 'v_max_f32')

        VQ = Q(A, 'vmcnt')
        loads(0, VQ)
        sx(0, VQ)
        A('s_waitcnt vmcnt(0)')
        A.label('ATT_L')
        for z in range(2):
            VQ = Q(A, 'vmcnt')
            A('v_cmp_ge_u32 vcc, s40, v5')
            A('s_add_u32 s48, s40, 1')
            A('s_cbranch_vccz ATT_G%d' % z)
            G.spin('v4', 'v5', 's48', 25)
            A.label('ATT_G%d' % z)
            G.ts()
            A('s_add_u32 s47, s43, 4096')
            for i, tag in ((0, 'km'), (1, 'vm')):
                for w in range(4):
                    VQ.op(tag + str(w), 'buffer_load_dwordx4 %s, v0, %s, %s offen offset:%d sc1' % (vr((KM, VM)[i] + 4 * w, 4), WS, 's43' if w < 2 else 's47', (w & 1) * 2048 + i * 1024))
            A('s_add_u32 s43, s43, %d' % (2 * SEG_O))
            loads(1 - z, VQ)
            for w in range(4):
                VQ.wait('km%d' % w)
                for T in range(2):
                    d = vr(SM + 4 * T, 4)
                    A('%s %s, %s, %s, %s' % (M32, d, vr(KM + 4 * w, 4), qf(z, w, T), '0' if w == 0 else d))
            A('s_add_u32 s47, s42, %d' % (128 * 1024))
            for T in range(2):
                A('v_max3_f32 v%d, v%d, v%d, v%d' % (8 + T, 8 + T, SM + 4 * T, SM + 4 * T + 1))
                A('v_max3_f32 v%d, v%d, v%d, v%d' % (8 + T, 8 + T, SM + 4 * T + 2, SM + 4 * T + 3))
            for T in range(2):
                xred(8 + T, 10 + T, 'v_max_f32')
            for T in range(2):
                A('v_mul_f32 v%d, s50, v%d' % (8 + T, 8 + T))
            grp = [list(range(SX, SX + 4)) + list(range(SM, SM + 4)), list(range(SX + 4, SX + 12)) + list(range(SM + 4, SM + 8))]

            def soft(T):
                ops = []
                for r in grp[T]:
                    ops.append('v_fma_f32 v%d, v%d, s50, -v%d' % (r, r, 8 + T))
                for r in grp[T]:
                    ops.append('v_exp_f32 v%d, v%d' % (r, r))
                x = grp[T][:-4]
                for i in range(len(x) // 2):
                    ops.append('v_cvt_pk_bf16_f32 v%d, v%d, v%d' % (PB + 4 * T + i, x[2 * i], x[2 * i + 1]))
                for i in range(2):
                    ops.append('v_cvt_pk_bf16_f32 v%d, v%d, v%d' % (PM + 2 * T + i, SM + 4 * T + 2 * i, SM + 4 * T + 2 * i + 1))
                return ops

            def rsum(T):
                x = grp[T][:-4]
                m = grp[T][-4:]
                s = 12 + T
                ops = ['v_add_f32 v%d, v%d, v%d' % (m[0], m[0], m[1]), 'v_add_f32 v%d, v%d, v%d' % (m[2], m[2], m[3]),
                       'v_add_f32 v%d, v%d, v%d' % (s, x[0], x[1]), 'v_add_f32 v%d, v%d, v%d' % (m[0], m[0], m[2])]
                for r in x[2:]:
                    ops.append('v_add_f32 v%d, v%d, v%d' % (s, s, r))
                ops.append('v_fmac_f32 v%d, 0.5, v%d' % (s, m[0]))
                for sw in ('v_permlane16_swap_b32', 'v_permlane32_swap_b32'):
                    ops += ['v_mov_b32 v14, v%d' % s, '%s v%d, v14' % (sw, s), 'v_add_f32 v%d, v%d, v14' % (s, s)]
                ops.append('v_rcp_f32 v%d, v%d' % (s, s))
                return ops

            def norm(T, w):
                o = O + 32 * T + 8 * w
                ops = ['v_mul_f32 v%d, v%d, v%d' % (o + i, 12 + T, o + i) for i in range(8)]
                d = ST + 16 * T + 4 * w
                ops += ['v_cvt_pk_bf16_f32 v%d, v%d, v%d' % (d + i, o + 2 * i, o + 2 * i + 1) for i in range(4)]
                ops.append(lambda: VQ.op('st', 'buffer_store_dwordx4 %s, v0, %s, %s offen offset:%d sc1' % (vr(d, 4), WS, 's42' if T == 0 else 's47', w * 1024)))
                return ops

            def run(ops, n):
                for o in ops[:n]:
                    o() if callable(o) else A(o)
                del ops[:n]
            run(soft(0), 99)
            for T in range(2):
                fill = soft(1) + rsum(0) if T == 0 else rsum(1) + sum((norm(0, w) for w in range(4)), [])
                for e in range(8):
                    A('%s %s, %s, %s, 0' % (M32, vr(O + 32 * T + 4 * e, 4), vf(z, e >> 1, e & 1), vr(PB + 4 * T, 4)))
                    run(fill, 2)
                for e in range(8):
                    VQ.wait('vm%d' % (e >> 1))
                    d = vr(O + 32 * T + 4 * e, 4)
                    A('%s %s, %s, %s, %s' % (M16, d, vr(VM + 2 * e, 2), vr(PM + 2 * T, 2), d))
                    run(fill, 2)
                run(fill, 99)
            for w in range(4):
                run(norm(1, w), 99)
            VQ.op('poll', 'buffer_load_dword v5, v4, %s, 0 offen sc1' % WS)
            A('s_add_u32 s42, s42, %d' % (2 * SEG_O))
            A('s_add_u32 s40, s40, 2')
            sx(1 - z, VQ)
            VQ.wait('st')
            publish('s45', 's40', VQ)
            VQ.wait('poll')
        A('s_cmp_lt_u32 s40, 64')
        A('s_cbranch_scc1 ATT_L')

    A('s_sub_u32 s32, %s, 1' % S_X)
    A('s_cmp_lt_u32 %s, 4' % S_T)
    A('s_cbranch_scc1 R_SMALL')
    A('s_cmp_lt_u32 %s, 13' % S_T)
    A('s_cbranch_scc1 R_TRIP')
    A('s_sub_u32 s33, %s, 13' % S_T)
    A('s_lshr_b32 s36, s33, 1')
    A('s_mul_i32 s36, s36, 7')
    A('s_add_u32 s36, s36, s32')
    A('s_and_b32 s37, s33, 1')
    A('s_cmp_lt_u32 s33, 18')
    A('s_cbranch_scc1 R_PAIR')
    A.label('R_SINGLE')
    A('s_lshr_b32 s36, s32, 1')
    A('s_add_u32 s36, s36, 63')
    A('s_and_b32 s37, s32, 1')
    A.label('R_PAIR')
    A('s_cmp_lt_u32 s36, 32')
    A('s_cbranch_scc1 R_QKV')
    A('s_sub_u32 s36, s36, 32')
    role_f1()
    G.finish()
    A.label('R_TRIP')
    A('s_sub_u32 s33, %s, 4' % S_T)
    A('s_mul_i32 s34, s33, 11')
    A('s_lshr_b32 s34, s34, 5')
    A('s_mul_i32 s38, s34, 3')
    A('s_sub_u32 s38, s33, s38')
    A('s_mul_i32 s34, s34, 7')
    A('s_add_u32 s34, s34, s32')
    A('s_add_u32 s32, s38, 7')
    A('s_cmp_eq_u32 s34, 20')
    A('s_cbranch_scc1 R_SINGLE')
    A('s_and_b32 s37, s34, 1')
    A('s_lshr_b32 s36, s34, 1')
    A('s_cmp_lt_u32 s34, 8')
    A('s_cbranch_scc1 R_WO')
    A('s_sub_u32 s36, s36, 4')
    role_part('F2')
    G.finish()
    A.label('R_WO')
    role_part('WO')
    G.finish()
    A.label('R_QKV')
    role_qkv()
    role_fin()
    G.finish()
    A.label('R_SMALL')
    A('s_mul_i32 s35, %s, 7' % S_T)
    A('s_add_u32 s35, s35, s32')
    A('s_cmp_lt_u32 s35, 16')
    A('s_cbranch_scc1 R_ATT')
    A('s_sub_u32 s35, s35, 16')
    role_ln2()
    G.finish()
    A.label('R_ATT')
    role_att()
    G.finish()
```

```python
import sys, math, struct
sys.path.insert(0, 'gen')
from asmlib import *
from layout import *

OPT = dict(ts=0, ts0=6, chain=1, only=0, mixed=0)
for a in sys.argv[2:]:
    k, v = a.split('=')
    OPT[k] = int(v)

A = Asm()
WS, DBG, SA, SB, SC = 's[4:7]', 's[8:11]', 's[12:15]', 's[16:19]', 's[20:23]'
S_W, S_X, S_T, S_SPIN = 's24', 's25', 's26', 's27'
P_X, P_MEM, P_WQ, P_WK, P_WV, P_WO, P_WG, P_WU, P_WD, P_OUT, P_DBG, P_WS = 64, 66, 68, 70, 72, 74, 80, 82, 84, 86, 88, 90
SPIN_MAX = 400000
LOG2E = 1.4426950408889634


def fbits(x):
    return '0x%08x' % struct.unpack('<I', struct.pack('<f', x))[0]


def srd(d, p, size):
    A('s_mov_b32 s%d, s%d' % (d, p))
    A('s_mov_b32 s%d, s%d' % (d + 1, p + 1))
    A('s_mov_b32 s%d, 0x%x' % (d + 2, size))
    A('s_mov_b32 s%d, 0x20000' % (d + 3))


V_TS = 'v2'


def ts_init():
    if OPT['ts']:
        A('v_mov_b32 %s, 0' % V_TS)
        A('s_mov_b32 s63, 0')


def ts(real=True):
    if OPT['ts']:
        A('%s s[60:61]' % ('s_memrealtime' if (real and OPT['ts'] == 1) else 's_memtime'))
        A('s_waitcnt lgkmcnt(0)')
        A('s_mov_b32 s62, m0')
        A('s_mov_b32 m0, s63')
        A('v_writelane_b32 %s, s60, m0' % V_TS)
        A('s_mov_b32 m0, s62')
        A('s_add_u32 s63, s63, 1')
        A('s_min_u32 s63, s63, 63')


def dump_ts(vlane):
    A('s_lshl_b32 s60, %s, 5' % S_X)
    A('s_add_u32 s60, s60, %s' % S_T)
    A('s_lshl_b32 s60, s60, 2')
    A('s_add_u32 s60, s60, %s' % S_W)
    A('s_lshl_b32 s60, s60, 8')
    A('s_add_u32 s60, s60, 0x%x' % W_TS)
    A('v_lshlrev_b32 v9, 2, %s' % vlane)
    A('buffer_store_dword %s, v9, %s, s60 offen' % (V_TS, WS))


def finish():
    if OPT['ts']:
        ts()
        dump_ts('v1')
    A('s_endpgm')


def spin(vaddr, vtmp, need, code, srdname=WS, soff='0'):
    L, D = A.newlabel('SP'), A.newlabel('SD')
    A('s_mov_b32 %s, 0' % S_SPIN)
    A.label(L)
    A('buffer_load_dword %s, %s, %s, %s offen sc1' % (vtmp, vaddr, srdname, soff))
    A('s_waitcnt vmcnt(0)')
    A('v_cmp_gt_u32 vcc, %s, %s' % (need, vtmp))
    A('s_cbranch_vccz %s' % D)
    A('s_add_u32 %s, %s, 1' % (S_SPIN, S_SPIN))
    A('s_cmp_lt_u32 %s, %d' % (S_SPIN, SPIN_MAX))
    A('s_cbranch_scc1 %s' % L)
    A('s_movk_i32 %s, %d' % (S_SPIN, code))
    A('s_branch FAIL')
    A.label(D)


def wait_ready(v0, v1):
    A('v_mov_b32 %s, %d' % (v0, D_READY * 4))
    spin(v0, v1, '1', 1, DBG)


def publish(vaddr, vtmp, sval):
    A('v_mov_b32 %s, %s' % (vtmp, sval))
    A('s_mov_b64 exec, 1')
    A('buffer_store_dword %s, %s, %s, 0 offen sc1' % (vtmp, vaddr, WS))
    A('s_mov_b64 exec, -1')


def role_chain_stub():
    wait_ready('v6', 'v7')
    A('s_lshl_b32 s34, %s, 2' % S_T)
    A('s_add_u32 s34, s34, %s' % S_W)
    A('s_add_u32 s34, s34, %d' % F_CH)
    A('s_lshl_b32 s34, s34, 2')
    A('v_mov_b32 v9, s34')
    publish('v9', 'v12', '64')


def prologue():
    A('s_cmp_ge_u32 s2, 256')
    A('s_cbranch_scc1 EXIT')
    A('s_load_dwordx16 s[64:79], s[0:1], 0')
    A('s_load_dwordx8 s[80:87], s[0:1], 64')
    A('s_load_dwordx4 s[88:91], s[0:1], 96')
    A('v_and_b32 v1, 63, v0')
    A('v_lshrrev_b32 v3, 6, v0')
    A('v_readfirstlane_b32 %s, v3' % S_W)
    A('s_getreg_b32 s28, hwreg(HW_REG_XCC_ID, 0, 4)')
    A('s_and_b32 s28, s28, 7')
    if OPT['mixed']:
        A('s_and_b32 s28, s2, 3')
    ts_init()
    A('s_waitcnt lgkmcnt(0)')
    srd(4, P_WS, WS_SIZE)
    srd(8, P_DBG, 256)
    ts()
    A('s_cmp_lg_u32 %s, 0' % S_W)
    A('s_cbranch_scc1 P_WAIT')
    A('s_mov_b32 s29, s28')
    A('s_mov_b32 s30, 0')
    A.label('P_TRY')
    A('s_lshl_b32 s31, s29, 2')
    A('v_mov_b32 v3, s31')
    A('v_mov_b32 v4, 1')
    A('s_mov_b64 exec, 1')
    A('buffer_atomic_add v4, v3, %s, 0 offen sc0 sc1' % DBG)
    A('s_waitcnt vmcnt(0)')
    A('s_mov_b64 exec, -1')
    A('v_readfirstlane_b32 %s, v4' % S_T)
    A('s_cmp_lt_u32 %s, 32' % S_T)
    A('s_cbranch_scc1 P_GOT')
    A('s_add_u32 s29, s29, 1')
    A('s_and_b32 s29, s29, 7')
    A('s_add_u32 s30, s30, 1')
    A('s_cmp_lt_u32 s30, 8')
    A('s_cbranch_scc1 P_TRY')
    A('s_mov_b32 s29, 8')
    A.label('P_GOT')
    A('s_lshl_b32 s31, s29, 8')
    A('s_add_u32 s31, s31, %s' % S_T)
    A('v_mov_b32 v3, 0')
    A('v_mov_b32 v4, s31')
    A('ds_write_b32 v3, v4')
    A('s_waitcnt lgkmcnt(0)')
    A('s_branch P_JOIN')
    A.label('P_WAIT')
    A('s_cmp_lg_u32 s2, 0')
    A('s_cbranch_scc1 P_JOIN')
    A('v_mov_b32 v4, 0')
    A('v_mov_b32 v5, 0')
    A('v_mov_b32 v6, 0')
    A('v_mov_b32 v7, 0')
    A('v_lshlrev_b32 v3, 4, v1')
    A('s_sub_u32 s31, %s, 1' % S_W)
    A('s_lshl_b32 s31, s31, 12')
    A('s_add_u32 s31, s31, 0x%x' % W_FLAGS)
    for i in range(4):
        A('buffer_store_dwordx4 v[4:7], v3, %s, s31 offen offset:%d sc1' % (WS, i * 1024))
    A('s_waitcnt vmcnt(0)')
    A.label('P_JOIN')
    A('s_barrier')
    A('s_cmp_lg_u32 s2, 0')
    A('s_cbranch_scc1 P_NR')
    A('s_cmp_lg_u32 %s, 1' % S_W)
    A('s_cbranch_scc1 P_NR')
    A('v_mov_b32 v3, %d' % (D_READY * 4))
    A('v_mov_b32 v4, 1')
    A('s_mov_b64 exec, 1')
    A('buffer_store_dword v4, v3, %s, 0 offen sc1' % DBG)
    A('s_mov_b64 exec, -1')
    A.label('P_NR')
    A('v_mov_b32 v3, 0')
    A('ds_read_b32 v4, v3')
    A('s_waitcnt lgkmcnt(0)')
    A('v_readfirstlane_b32 s31, v4')
    A('s_lshr_b32 %s, s31, 8' % S_X)
    A('s_and_b32 %s, s31, 255' % S_T)
    A('s_barrier')
    ts()


def main():
    me = sys.modules[__name__]
    prologue()
    A('s_cmp_eq_u32 %s, 0' % S_X)
    A('s_cbranch_scc1 R_CHAIN')
    A('s_cmp_gt_u32 %s, 7' % S_X)
    A('s_cbranch_scc1 EXIT')
    if OPT['only']:
        A('s_cmp_lg_u32 %s, 1' % S_X)
        A('s_cbranch_scc1 EXIT')
        A('s_cmp_lg_u32 %s, 0' % S_T)
        A('s_cbranch_scc1 EXIT')
        wait_ready('v6', 'v7')
        A('v_lshlrev_b32 v6, 2, v0')
        A('v_add_u32 v6, %d, v6' % (F_QKV * 4))
        A('v_mov_b32 v7, 64')
        A('buffer_store_dword v7, v6, %s, 0 offen sc1' % WS)
        A('s_endpgm')
    else:
        import workers
        workers.roles(me)
    A.label('R_CHAIN')
    if OPT['chain']:
        import chain
        chain.role_chain(me)
    else:
        role_chain_stub()
        finish()
    A.label('FAIL')
    A('s_mov_b64 exec, 1')
    A('v_mov_b32 v3, %d' % (D_ERR * 4))
    A('v_mov_b32 v4, %s' % S_SPIN)
    A('buffer_store_dword v4, v3, %s, 0 offen sc1' % DBG)
    A.label('EXIT')
    A('s_endpgm')
    lines, nn = fix_hazards(A.lines)
    ref = open('cdna_kernels/%s.s.ref' % NAME).read()
    head = ref[:ref.index(NAME + '_kernel:')]
    head = head.replace('grid=(4608,1,1) block=(256,1,1) lds=0', 'grid=(256,1,1) block=(256,1,1) lds=163840')
    tail = ref[ref.index('.section .rodata'):].replace('next_free_vgpr 256', 'next_free_vgpr 512')
    with open(sys.argv[1], 'w') as f:
        f.write(head + NAME + '_kernel:\n' + '\n'.join(l if l.endswith(':') else '    ' + l for l in lines) + '\n' + tail)
    print('lines', len(lines), 'nop states', nn)


if __name__ == '__main__':
    main()
```

```python
NAME = 'sequential_preLN__memory_aug_recurrent_mem_tr__swiglu_ffn__prompt'
WS_SIZE = 268435456
NSEG = 64
W_FLAGS = 0x60000
W_TS = 0x10000
W_CM = 0x100000
W_HINT = 0x110000
W_ME = 0x300000
SEG_ME = 9216
W_CP = 0x200000
W_XN = 0x400000
W_HB = 0x800000
W_HN = 0xC00000
W_QKV = 0x1000000
W_O = 0x5000000
W_ACT = 0x6000000
W_PW = 0x8000000
W_PF = 0x9000000
SEG_XN = 36 * 1024
SEG_QKV = 32768
HEAD_QKV = 1 << 21
SEG_O = 256 * 1024
SEG_ACT = 288 * 1024
NPW, NPF = 4, 4
SEG_PW = NPW * 36 * 1024
SEG_PF = NPF * 36 * 1024
P_TASK = 5120
F_XN = 0xC00 + 0
F_QKV = 0xC00 + 256
F_ATT = 0xC00 + 320
F_WO = 0xC00 + 448
F_LN2 = 0xC00 + 576
F_F1 = 0xC00 + 640
F_F2 = 0xC00 + 960
D_READY, D_CBAR, D_ERR = 61, 9, 11
SENT = 0xFF81FF81
```

```python
import math
from asmlib import *
from layout import *
from chain import Q

M16 = 'v_mfma_f32_16x16x16_bf16'
M32 = 'v_mfma_f32_16x16x32_bf16'


def roles(G):
    A, WS, OPT = G.A, G.WS, G.OPT
    S_W, S_X, S_T = G.S_W, G.S_X, G.S_T

    def cvt(d, s, s2=None):
        A('v_cvt_pk_bf16_f32 v%d, v%d, v%d' % (d, s, s + 1 if s2 is None else s2))

    def publish(soff, sval, q=None):
        A('v_mov_b32 v7, %s' % sval)
        A('s_mov_b64 exec, 1')
        t = 'buffer_store_dword v7, off, %s, %s sc1' % (WS, soff)
        if q is None:
            A(t)
        else:
            q.op('pub', t)
        A('s_mov_b64 exec, -1')

    def wreg(f, nf, sub=None):
        k, b = ('a', 4 * f) if f < 64 else ('v', 256 - 4 * (nf - f))
        return vr(b, 4, k) if sub is None else vr(b + 2 * sub, 2, k)

    def load_weights(units, nf, stride, krow):
        NS = 20
        VQ = Q(A, 'vmcnt')
        A('s_mul_i32 s30, %s, %d' % (S_W, NS * 2048))

        def dma(n):
            sd, vo, col, k, _ = units[n]
            for i in range(2):
                A('s_add_u32 m0, s30, %d' % ((n % NS) * 2048 + i * 1024))
                A('s_mov_b32 s31, %d' % ((32 * k + 16 * i) * stride + col))
                VQ.op(n, 'buffer_load_dwordx4 %s, %s, s31 offen lds' % (vo, sd))
        for n in range(min(NS, len(units))):
            dma(n)
        GR = 3
        usep = 256 if krow == 'N' else 1024
        for n0 in range(0, len(units), GR):
            ns = list(range(n0, min(n0 + GR, len(units))))
            VQ.wait(ns[-1])
            for n in ns:
                for f, va, off in units[n][4]:
                    for u in range(2):
                        A('ds_read_b64_tr_b16 %s, %s offset:%d' % (wreg(f, nf, u), va, (n % NS) * 2048 + u * usep + off))
            A('s_waitcnt lgkmcnt(0)')
            for n in ns:
                if n + NS < len(units):
                    dma(n + NS)

    def w_lane(stride, krow, ccol):
        A('v_lshrrev_b32 v7, 2, v1')
        A('v_mul_u32_u24 v8, %d, v7' % stride)
        A('v_and_b32 v6, 3, v1')
        A('v_lshl_add_u32 v8, v6, 4, v8')
        A('v_lshrrev_b32 v5, 4, v1')
        A('v_and_b32 v7, 3, v7')
        A('v_lshl_add_u32 v7, v5, %d, v7' % (3 if krow == 'N' else 2))
        A('v_lshlrev_b32 v10, 6, v7')
        A('v_lshl_add_u32 v10, v6, %d, v10' % (4 if ccol == 'N' else 3))
        A('s_mul_i32 s30, %s, %d' % (S_W, 20 * 2048))
        A('v_add_u32 v10, s30, v10')

    S_U, S_DST, S_SRC, S_LDS, S_NEED, S_FLG, S_PUB = ['s%d' % i for i in range(40, 47)]

    def gemm(name, KS, NT, TS, ND, WPART, BUF, STEP, dsrc, ddst, checks, pubk, NB, PF, swaps, epi, mid=None, late=None):
        NF = KS * TS
        nf = KS * NT
        ACC = 8
        RING = ACC + 4 * NT * TS
        always = not checks
        A('v_lshlrev_b32 v0, 4, v1')
        A('v_mov_b32 v3, v0')
        A('v_mov_b32 v5, 0')
        A('s_mul_i32 %s, %s, %d' % (S_LDS, S_W, WPART))
        A('s_mov_b32 %s, 0' % S_PUB)
        A('s_barrier')

        def dma(i, VQ):
            if i % 4 == 0:
                A('s_add_u32 m0, %s, %d' % (S_LDS, i * 1024))
                if i:
                    A('s_add_u32 s47, %s, %d' % (S_SRC, i * 1024))
            VQ.op('dma', 'buffer_load_dwordx4 v0, %s, %s offen offset:%d sc1 lds' % (WS, 's47' if i >= 4 else S_SRC, (i % 4) * 1024))
            if i == ND - 1:
                A('s_add_u32 %s, %s, %d' % (S_SRC, S_SRC, dsrc))
                A('s_xor_b32 %s, %s, %d' % (S_LDS, S_LDS, BUF))

        def poll(VQ):
            VQ.op('poll', 'buffer_load_dword v5, v4, %s, 0 offen sc1' % WS)

        def body(j0, VQ, LQ, issued, nst):
            pieces = {}
            if issued is not None:
                gap = max(1, min(3, (NF - 1 - j0) // ND))
                for i in range(ND):
                    pieces.setdefault(min(j0 + i * gap, NF - 1), []).append(i)
                pollk = max(max(pieces) + 1, NF - (700 // (16 * NT)))
            for j in range(j0, NF):
                T, k = divmod(j, KS)
                if issued is None and j in (checks or [0]) and (j > j0 or j == 0):
                    if always:
                        A('s_cmp_lt_u32 %s, 64' % S_NEED)
                        A('s_cbranch_scc1 %s_V%d' % (name, j))
                    else:
                        A('s_cbranch_vccz %s_V%d' % (name, j))
                    variants.append((j, list(VQ.q), list(LQ.q)))
                    if not always:
                        poll(VQ)
                LQ.wait('f%d' % j)
                b = vr(RING + 4 * (j % NB), 4)
                fill = []
                if j + PF < NF:
                    fill.append(lambda j=j: LQ.op('f%d' % (j + PF), 'ds_read_b128 %s, v3 offset:%d' % (vr(RING + 4 * ((j + PF) % NB), 4), (j + PF) * 1024)))
                for i in pieces.get(j, ()):
                    fill.append(lambda i=i: dma(i, VQ))
                if j == pubk:
                    def pub():
                        L = A.newlabel('NP')
                        A('s_cmp_eq_u32 %s, 0' % S_PUB)
                        A('s_cbranch_scc1 %s' % L)
                        VQ.wait('st')
                        publish(S_FLG, S_U)
                        A('s_mov_b32 %s, 0' % S_PUB)
                        A.label(L)
                        VQ.q.append('pub?')
                    fill.append(pub)
                if issued is not None and not always and j == pollk:
                    fill.append(lambda: poll(VQ))
                if mid:
                    fill += mid(j, VQ)
                if issued is None and (j + 1) in checks:
                    fill.append(lambda: A('v_cmp_ge_u32 vcc, %s, v5' % S_NEED))
                for t in range(NT):
                    d = vr(ACC + 4 * (T * NT + t), 4)
                    w = wreg(k * NT + t, nf)
                    x, y = (b, w) if t in swaps else (w, b)
                    A('%s %s, %s, %s, %s' % (M32, d, x, y, '0' if k == 0 else d))
                    n = 1 if t < NT - 1 else len(fill)
                    for f in fill[:n]:
                        f()
                    fill = fill[n:]
            A('v_xor_b32 v3, %d, v3' % BUF)
            epi(VQ)
            A('s_add_u32 %s, %s, %d' % (S_DST, S_DST, ddst))
            A('s_add_u32 %s, %s, %d' % (S_U, S_U, STEP))

        def strict(VQ, tag):
            VQ.q = [x for x in VQ.q if x != 'pub?']
            VQ.wait(tag)

        variants = []
        A.label(name + '_S')
        if not always:
            A('s_add_u32 s48, %s, 1' % S_U)
            G.spin('v4', 'v5', 's48', 20)
        VQ = Q(A, 'vmcnt')
        for i in range(ND):
            dma(i, VQ)
        A('s_waitcnt vmcnt(0)')
        A.label(name + '_L')
        A('s_barrier')
        if OPT['ts']:
            L = A.newlabel('TS')
            if STEP == 1:
                A('s_cmp_lt_u32 %s, %d' % (S_U, OPT['ts0']))
                A('s_cbranch_scc1 %s' % L)
            G.ts()
            A.label(L)
        LQ = Q(A, 'lgkmcnt')
        for j in range(PF):
            LQ.op('f%d' % j, 'ds_read_b128 %s, v3 offset:%d' % (vr(RING + 4 * (j % NB), 4), j * 1024))
        A('s_add_u32 %s, %s, %d' % (S_NEED, S_U, STEP))
        if not always:
            A('s_cmp_lt_u32 %s, 64' % S_NEED)
            A('s_cselect_b32 %s, %s, -1' % (S_NEED, S_NEED))
            A('v_cmp_ge_u32 vcc, %s, v5' % S_NEED)
        VQ = Q(A, 'vmcnt')
        VQ.q = ['st']
        body(0, VQ, LQ, None, 0)
        if not always:
            poll(VQ)
        strict(VQ, 'st')
        publish(S_FLG, S_U)
        A('s_cmp_ge_u32 %s, 64' % S_U)
        A('s_cbranch_scc1 %s_E' % name)
        A('s_branch %s_S' % name)
        for j, vq, lq in variants:
            A.label('%s_V%d' % (name, j))
            VQ = Q(A, 'vmcnt')
            VQ.q = vq
            LQ = Q(A, 'lgkmcnt')
            LQ.q = lq
            body(j, VQ, LQ, j, 0)
            if late is not None and j >= late:
                A('s_waitcnt vmcnt(0)')
                publish(S_FLG, S_U)
            else:
                strict(VQ, 'dma')
                A('s_mov_b32 %s, 1' % S_PUB)
            A('s_branch %s_L' % name)
        A.label(name + '_E')
        G.ts()

    def red(r, t):
        A('v_add_f32_dpp v%d, v%d, v%d row_ror:8 row_mask:0xf bank_mask:0xf' % (r, r, r))
        A('v_mov_b32 v%d, v%d' % (t, r))
        A('v_permlane16_swap_b32 v%d, v%d' % (r, t))
        A('v_add_f32 v%d, v%d, v%d' % (r, r, t))
        A('v_mov_b32 v%d, v%d' % (t, r))
        A('v_permlane32_swap_b32 v%d, v%d' % (r, t))
        A('v_add_f32 v%d, v%d, v%d' % (r, r, t))

    def oct_lanes(vrow, vfrag, vhalf=None):
        A('v_and_b32 v7, 7, v1')
        A('v_bfe_u32 v6, v1, 3, 1')
        A('v_lshrrev_b32 v5, 4, v1')
        A('v_mul_u32_u24 %s, 1152, v7' % vrow)
        A('v_lshl_add_u32 %s, v6, 6, %s' % (vrow, vrow))
        A('v_lshl_add_u32 %s, v5, 4, %s' % (vrow, vrow))
        A('v_lshl_add_u32 v7, v5, 4, v7')
        A('v_lshlrev_b32 v6, 10, v6')
        A('v_lshl_add_u32 %s, v7, 4, v6' % vfrag)
        if vhalf:
            A('v_lshl_add_u32 %s, v7, 3, v6' % vhalf)

    def ln1():
        G.srd(20, G.P_X, 2048 * 1152)
        oct_lanes('v3', 'v4')
        A('s_lshl_b32 s36, s35, 2')
        A('s_add_u32 s36, s36, %s' % S_W)
        A('s_mul_i32 s32, s36, %d' % (8 * 1152))
        A('s_lshr_b32 s33, s36, 1')
        A('s_mul_i32 s33, s33, 18432')
        A('s_and_b32 s34, %s, 1' % S_W)
        A('s_lshl_b32 s34, s34, 7')
        A('s_add_u32 s33, s33, s34')
        A('s_add_u32 s33, s33, 0x%x' % W_XN)
        X, F = 16, 52
        for i in range(9):
            A('buffer_load_dwordx4 %s, v3, s[20:23], s32 offen offset:%d' % (vr(X + 4 * i, 4), i * 128))
        for i in range(9):
            A('s_waitcnt vmcnt(%d)' % (8 - i))
            for j in range(4):
                r = X + 4 * i + j
                A('v_lshlrev_b32 v%d, 16, v%d' % (F + 2 * (4 * i + j), r))
                A('v_and_b32 v%d, 0xffff0000, v%d' % (F + 2 * (4 * i + j) + 1, r))
            for j in range(4):
                p = F + 2 * (4 * i + j)
                acc = 8 + 2 * (j & 1)
                if i == 0 and j < 2:
                    A('v_pk_add_f32 %s, %s, %s' % (vr(acc, 2), vr(p, 2), vr(p + 4, 2)))
                elif i > 0:
                    A('v_pk_add_f32 %s, %s, %s' % (vr(acc, 2), vr(acc, 2), vr(p, 2)))
        A('v_pk_add_f32 v[8:9], v[8:9], v[10:11]')
        A('v_add_f32 v8, v8, v9')
        red(8, 9)
        A('v_mul_f32 v12, %s, v8' % G.fbits(-1.0 / 576))
        A('v_mov_b32 v13, v12')
        for i in range(36):
            p = F + 2 * i
            A('v_pk_add_f32 %s, %s, v[12:13]' % (vr(p, 2), vr(p, 2)))
        for i in range(36):
            p = F + 2 * i
            acc = 8 + 2 * (i & 1)
            if i < 2:
                A('v_pk_mul_f32 %s, %s, %s' % (vr(acc, 2), vr(p, 2), vr(p, 2)))
            else:
                A('v_pk_fma_f32 %s, %s, %s, %s' % (vr(acc, 2), vr(p, 2), vr(p, 2), vr(acc, 2)))
        A('v_pk_add_f32 v[8:9], v[8:9], v[10:11]')
        A('v_add_f32 v8, v8, v9')
        red(8, 9)
        A('v_mov_b32 v9, %s' % G.fbits(1e-5))
        A('v_fmac_f32 v9, %s, v8' % G.fbits(1.0 / 576))
        A('v_rsq_f32 v12, v9')
        A('v_mov_b32 v13, v12')
        for i in range(9):
            for j in range(4):
                p = F + 2 * (4 * i + j)
                A('v_pk_mul_f32 %s, %s, v[12:13]' % (vr(p, 2), vr(p, 2)))
            for j in range(4):
                cvt(X + 4 * i + j, F + 2 * (4 * i + j))
            if i and i % 2 == 0:
                A('s_add_u32 s33, s33, 4096')
            A('buffer_store_dwordx4 %s, v4, %s, s33 offen offset:%d sc1' % (vr(X + 4 * i, 4), WS, (i & 1) * 2048))
        G.wait_ready('v6', 'v7')
        A('s_add_u32 s36, s36, %d' % F_XN)
        A('s_lshl_b32 s36, s36, 7')
        publish('s36', '1')
        G.ts()

    ID, RA, RB = 10, 12, 40

    def ident():
        A('v_and_b32 v7, 15, v1')
        A('v_lshrrev_b32 v6, 4, v1')
        A('v_lshlrev_b32 v6, 2, v6')
        A('v_sub_u32 v7, v7, v6')
        A('v_mov_b32 v5, 0x3f80')
        A('v_mov_b32 v6, 0x3f800000')
        for i in range(2):
            A('v_mov_b32 v%d, 0' % (ID + i))
            A('v_cmp_eq_u32 vcc, %d, v7' % (2 * i))
            A('v_cndmask_b32 v%d, v%d, v5, vcc' % (ID + i, ID + i))
            A('v_cmp_eq_u32 vcc, %d, v7' % (2 * i + 1))
            A('v_cndmask_b32 v%d, v%d, v6, vcc' % (ID + i, ID + i))

    def part_loads(VQ, np_, sbase):
        for n in range(np_):
            r = RB + 12 * (n + 1)
            if n:
                A('s_add_u32 %s, %s, 18432' % (sbase, sbase))
            for p in range(2):
                VQ.op((n + 1, p), 'buffer_load_dwordx4 %s, v8, %s, %s offen offset:%d sc1' % (vr(r + 4 * p, 4), WS, sbase, p * 2048))
            for i in range(2):
                VQ.op((n + 1, 2), 'buffer_load_dwordx2 %s, v9, %s, %s offen offset:%d sc1' % (vr(r + 8 + 2 * i, 2), WS, sbase, i * 512))

    def part_sum(VQ, np_):
        for n in range(np_ + 1):
            for p in range(3):
                VQ.wait((n, p))
                for i in range(2):
                    d = vr(RA + 8 * p + 4 * i, 4)
                    A('%s %s, %s, %s, %s' % (M16, d, vr(ID, 2), vr(RB + 12 * n + 4 * p + 2 * i, 2), '0' if n == 0 else d))

    def role_ln2():
        A('s_cmp_eq_u32 %s, 3' % S_W)
        A('s_cbranch_scc1 EXIT')
        G.srd(20, G.P_X, 2048 * 1152)
        ident()
        oct_lanes('v3', 'v8', 'v9')
        A('s_lshr_b32 s40, s35, 2')
        A('s_and_b32 s36, s35, 3')
        A('s_lshr_b32 s37, s36, 1')
        A('s_and_b32 s38, s36, 1')
        A('s_mul_i32 s32, s36, %d' % (8 * 1152))
        A('s_mul_i32 s33, %s, 384' % S_W)
        A('s_add_u32 s32, s32, s33')
        A('v_add_u32 v3, s32, v3')
        A('s_mul_i32 s33, %s, 6144' % S_W)
        A('s_lshl_b32 s34, s38, 7')
        A('s_add_u32 s34, s34, s33')
        A('v_add_u32 v8, s34, v8')
        A('s_lshl_b32 s34, s38, 6')
        A('s_add_u32 s34, s34, s33')
        A('s_add_u32 s34, s34, 4096')
        A('v_add_u32 v9, s34, v9')
        A('s_lshl_b32 s34, s37, 2')
        A('s_add_u32 s34, s34, %s' % S_W)
        A('s_lshl_b32 s34, s34, 4')
        A('s_add_u32 s34, s34, %d' % F_WO)
        A('v_min_u32 v4, 15, v1')
        A('v_add_u32 v4, s34, v4')
        A('v_lshlrev_b32 v4, 7, v4')
        A('s_lshl_b32 s45, s40, 1')
        A('s_add_u32 s45, s45, s38')
        A('s_mul_i32 s45, s45, 3')
        A('s_add_u32 s45, s45, %s' % S_W)
        A('s_lshl_b32 s34, s37, 5')
        A('s_add_u32 s45, s45, s34')
        A('s_add_u32 s45, s45, %d' % F_LN2)
        A('s_lshl_b32 s45, s45, 7')
        A('v_and_b32 v0, 7, v1')
        A('v_lshlrev_b32 v0, 3, v0')
        A('s_lshl_b32 s34, %s, 6' % S_W)
        A('s_mul_i32 s41, s37, %d' % (NPW * 18432))
        A('s_add_u32 s41, s41, 0x%x' % W_PW)
        A('s_mul_i32 s42, s37, 18432')
        G.wait_ready('v6', 'v7')
        A('v_add_u32 v6, s34, v0')
        A.label('LN2_L')
        VQ = Q(A, 'vmcnt')
        A('s_mul_i32 s43, s40, %d' % SEG_XN)
        for p in range(3):
            A('buffer_load_dwordx4 %s, v3, s[20:23], s43 offen offset:%d' % (vr(RB + 4 * p, 4), p * 128))
        A('s_mul_i32 s44, s40, %d' % SEG_PW)
        A('s_add_u32 s44, s44, s41')
        A('s_add_u32 s48, s40, 1')
        G.spin('v4', 'v5', 's48', 21)
        G.ts()
        part_loads(VQ, NPW, 's44')
        part_sum(VQ, NPW)
        A('s_add_u32 s43, s43, s42')
        A('s_add_u32 s44, s43, 0x%x' % W_HB)
        A('s_add_u32 s43, s43, 0x%x' % W_HN)
        A('s_add_u32 s46, s44, 4096')
        A('s_add_u32 s47, s43, 4096')
        t = RB + 12
        for i in range(3):
            A('v_pk_add_f32 %s, %s, %s' % (vr(t + 2 * i, 2), vr(RA + 2 * i, 2), vr(RA + 6 + 2 * i, 2)))
        for i in range(6):
            A('v_pk_add_f32 %s, %s, %s' % (vr(t + 2 * (i % 3), 2), vr(t + 2 * (i % 3), 2), vr(RA + 12 + 2 * i, 2)))
        A('v_pk_add_f32 %s, %s, %s' % (vr(t, 2), vr(t, 2), vr(t + 2, 2)))
        A('v_pk_add_f32 %s, %s, %s' % (vr(t, 2), vr(t, 2), vr(t + 4, 2)))
        A('v_add_f32 v%d, v%d, v%d' % (t, t, t + 1))
        for i in range(12):
            cvt(RB + i, RA + 2 * i)
        red(t, t + 1)
        A('v_mul_f32 v%d, %s, v%d' % (t + 8, G.fbits(1.0 / 192), t))
        A('v_mul_f32 v%d, %s, v%d' % (t + 6, G.fbits(-1.0 / 192), t))
        A('v_mov_b32 v%d, v%d' % (t + 7, t + 6))
        for i in range(12):
            A('v_pk_add_f32 %s, %s, %s' % (vr(RA + 2 * i, 2), vr(RA + 2 * i, 2), vr(t + 6, 2)))
        for i in range(12):
            a = vr(t + 2 * (i % 3), 2)
            p = vr(RA + 2 * i, 2)
            if i < 3:
                A('v_pk_mul_f32 %s, %s, %s' % (a, p, p))
            else:
                A('v_pk_fma_f32 %s, %s, %s, %s' % (a, p, p, a))
        A('v_pk_add_f32 %s, %s, %s' % (vr(t, 2), vr(t, 2), vr(t + 2, 2)))
        A('v_pk_add_f32 %s, %s, %s' % (vr(t, 2), vr(t, 2), vr(t + 4, 2)))
        A('v_add_f32 v%d, v%d, v%d' % (t + 9, t, t + 1))
        red(t + 9, t + 1)
        A('ds_write_b64 v6, %s' % vr(t + 8, 2))
        for p in range(3):
            A('buffer_store_dwordx4 %s, v8, %s, %s offen offset:%d sc1' % (vr(RB + 4 * p, 4), WS, 's44' if p < 2 else 's46', (p & 1) * 2048))
        A('s_waitcnt lgkmcnt(0)')
        A('s_barrier')
        for j in range(3):
            A('ds_read_b64 %s, v0 offset:%d' % (vr(t + 2 * j, 2), j * 64))
        A('v_xor_b32 v0, 256, v0')
        A('v_xor_b32 v6, 256, v6')
        A('s_waitcnt lgkmcnt(0)')
        m, v = t + 10, t + 11
        A('v_add_f32 v%d, v%d, v%d' % (m, t, t + 2))
        A('v_add_f32 v%d, v%d, v%d' % (v, t + 1, t + 3))
        A('v_add_f32 v%d, v%d, v%d' % (m, m, t + 4))
        A('v_add_f32 v%d, v%d, v%d' % (v, v, t + 5))
        A('v_mul_f32 v%d, %s, v%d' % (m, G.fbits(1.0 / 3), m))
        A('v_mul_f32 v%d, %s, v%d' % (v, G.fbits(1.0 / 192), v))
        for j in range(3):
            A('v_sub_f32 v%d, v%d, v%d' % (t + 2 * j, t + 2 * j, m))
        for j in range(3):
            A('v_fmac_f32 v%d, v%d, v%d' % (v, t + 2 * j, t + 2 * j))
        A('v_mov_b32 v%d, %s' % (t, G.fbits(1e-5)))
        A('v_fmac_f32 v%d, %s, v%d' % (t, G.fbits(1.0 / 3), v))
        A('v_rsq_f32 v%d, v%d' % (t, t))
        A('v_sub_f32 v%d, v%d, v%d' % (t + 2, t + 8, m))
        A('v_mov_b32 v%d, v%d' % (t + 1, t))
        A('v_mul_f32 v%d, v%d, v%d' % (t + 2, t + 2, t))
        A('v_mov_b32 v%d, v%d' % (t + 3, t + 2))
        H = RB + 24
        for p in range(3):
            for i in range(4):
                a = vr(RA + 8 * p + 2 * i, 2)
                A('v_pk_fma_f32 %s, %s, %s, %s' % (a, a, vr(t, 2), vr(t + 2, 2)))
            for i in range(4):
                cvt(H + 4 * p + i, RA + 8 * p + 2 * i)
            A('buffer_store_dwordx4 %s, v8, %s, %s offen offset:%d sc1' % (vr(H + 4 * p, 4), WS, 's43' if p < 2 else 's47', (p & 1) * 2048))
        A('s_add_u32 s40, s40, 2')
        A('s_waitcnt vmcnt(0)')
        publish('s45', 's40')
        G.ts()
        A('s_cmp_lt_u32 s40, 64')
        A('s_cbranch_scc1 LN2_L')

    def role_fin():
        G.srd(20, G.P_OUT, 2048 * 1152)
        ident()
        oct_lanes('v3', 'v0', 'v4')
        A('v_add_u32 v36, 4096, v4')
        A('v_min_u32 v4, 15, v1')
        A('v_lshlrev_b32 v4, 7, v4')
        A.label('FIN_L')
        A('s_mul_i32 s40, s35, 43691')
        A('s_lshr_b32 s40, s40, 19')
        A('s_mul_i32 s36, s40, 12')
        A('s_sub_u32 s36, s35, s36')
        A('s_and_b32 s37, s36, 3')
        A('s_lshr_b32 s36, s36, 2')
        A('s_lshr_b32 s38, s37, 1')
        A('s_and_b32 s39, s37, 1')
        A('s_mul_i32 s33, s36, 6144')
        A('s_lshl_b32 s34, s39, 7')
        A('s_add_u32 s34, s34, s33')
        A('v_add_u32 v8, s34, v0')
        A('s_lshl_b32 s34, s39, 6')
        A('s_add_u32 s34, s34, s33')
        A('v_add_u32 v9, s34, v36')
        A('s_lshl_b32 s34, s38, 2')
        A('s_add_u32 s34, s34, s36')
        A('s_lshl_b32 s34, s34, 11')
        A('s_add_u32 s34, s34, %d' % (F_F2 * 128))
        A('s_lshl_b32 s41, s40, 1')
        A('s_add_u32 s41, s41, s38')
        A('s_mul_i32 s43, s41, 18432')
        A('s_add_u32 s43, s43, 0x%x' % W_HB)
        A('s_add_u32 s46, s43, 4096')
        A('s_mul_i32 s44, s41, %d' % (NPF * 18432))
        A('s_add_u32 s44, s44, 0x%x' % W_PF)
        A('s_add_u32 s48, s40, 1')
        G.spin('v4', 'v5', 's48', 22, WS, 's34')
        G.ts()
        VQ = Q(A, 'vmcnt')
        for p in range(3):
            VQ.op((0, p), 'buffer_load_dwordx4 %s, v8, %s, %s offen offset:%d sc1' % (vr(RB + 4 * p, 4), WS, 's43' if p < 2 else 's46', (p & 1) * 2048))
        part_loads(VQ, NPF, 's44')
        A('s_lshl_b32 s41, s40, 2')
        A('s_add_u32 s41, s41, s37')
        A('s_mul_i32 s41, s41, %d' % (8 * 1152))
        A('s_mul_i32 s33, s36, 384')
        A('s_add_u32 s41, s41, s33')
        part_sum(VQ, NPF)
        for p in range(3):
            for i in range(4):
                cvt(RB + 4 * p + i, RA + 8 * p + 2 * i)
            A('buffer_store_dwordx4 %s, v3, s[20:23], s41 offen offset:%d' % (vr(RB + 4 * p, 4), p * 128))
        A('s_add_u32 s35, s35, 256')
        A('s_cmp_lt_u32 s35, 768')
        A('s_cbranch_scc1 FIN_L')

    def role_qkv():
        G.srd(12, G.P_WQ, 576 * 8192)
        G.srd(16, G.P_WK, 576 * 8192)
        G.srd(20, G.P_WV, 576 * 8192)
        w_lane(8192, 'N', 'D')
        A('s_lshl_b32 s34, s36, 2')
        A('s_add_u32 s34, s34, %s' % S_W)
        A('s_lshl_b32 s33, s34, 6')
        A('v_add_u32 v8, s33, v8')
        units = []
        for k in range(18):
            for m in range(3):
                units.append((sr(12 + 4 * m, 4), 'v8', 0, k, [(k * 6 + 2 * m + t, 'v10', 32 * t) for t in range(2)]))
        load_weights(units, 108, 8192, 'N')
        G.ts()
        G.wait_ready('v6', 'v7')
        A('v_lshlrev_b32 v4, 7, v1')
        for i in range(4):
            A('s_mov_b32 s48, %d' % (F_XN * 128 + i * 8192))
            G.spin('v4', 'v5', '1', 23, WS, 's48')
        A('s_mov_b32 %s, s37' % S_U)
        A('s_mul_i32 %s, s37, %d' % (S_DST, SEG_QKV))
        A('s_lshl_b32 s33, s36, 21')
        A('s_add_u32 %s, %s, s33' % (S_DST, S_DST))
        A('s_lshl_b32 s50, %s, 11' % S_W)
        A('s_add_u32 %s, %s, s50' % (S_DST, S_DST))
        A('s_add_u32 %s, %s, 0x%x' % (S_DST, S_DST, W_QKV))
        A('s_add_u32 s50, s50, 8192')
        A('s_mul_i32 %s, s37, %d' % (S_SRC, SEG_XN))
        A('s_mul_i32 s33, %s, 9216' % S_W)
        A('s_add_u32 %s, %s, s33' % (S_SRC, S_SRC))
        A('s_add_u32 %s, %s, 0x%x' % (S_SRC, S_SRC, W_XN))
        A('s_lshl_b32 s35, s36, 1')
        A('s_add_u32 s35, s35, s37')
        A('s_lshl_b32 s35, s35, 2')
        A('s_add_u32 s35, s35, %s' % S_W)
        A('s_lshr_b32 %s, s35, 2' % S_FLG)
        A('s_add_u32 %s, %s, %d' % (S_FLG, S_FLG, F_QKV))
        A('s_lshl_b32 %s, %s, 5' % (S_FLG, S_FLG))
        A('s_add_u32 %s, %s, %s' % (S_FLG, S_FLG, S_W))
        A('s_lshl_b32 %s, %s, 2' % (S_FLG, S_FLG))
        a, b = 8, 32
        A('s_mov_b32 s52, %s' % G.fbits(G.LOG2E / math.sqrt(128.0)))
        A('s_mov_b32 s53, s52')

        def scale(r, n):
            for i in range(r, r + n, 2):
                A('v_pk_mul_f32 %s, %s, s[52:53]' % (vr(i, 2), vr(i, 2)))

        def st(VQ, r, so, off):
            VQ.op('st', 'buffer_store_dwordx4 %s, v0, %s, %s offen offset:%d sc1' % (vr(r, 4), WS, so, off))

        def mid(j, VQ):
            if j == 19:
                return [lambda: [cvt(a + i, a + 2 * i) for i in range(2)], lambda: [cvt(a + i, a + 2 * i) for i in range(2, 4)],
                        lambda: st(VQ, a, S_DST, 0), lambda: A('s_add_u32 s49, %s, s50' % S_DST)]
            if j == 20:
                return [lambda: scale(a + 8, 4), lambda: scale(a + 12, 4)]
            if j == 21:
                return [lambda: [cvt(a + 8 + i, a + 8 + 2 * i) for i in range(2)], lambda: [cvt(a + 8 + i, a + 8 + 2 * i) for i in range(2, 4)],
                        lambda: st(VQ, a + 8, 's49', 0)]
            if j == 22:
                return [lambda: [cvt(a + 16 + i, a + 16 + 2 * i) for i in range(2)], lambda: [cvt(a + 20 + i, a + 20 + 2 * i) for i in range(2)]]
            return []

        def epi(VQ):
            for m, so in ((0, S_DST), (8, 's49')):
                if m:
                    scale(b + m, 8)
                for i in range(4):
                    cvt(b + m + i, b + m + 2 * i)
                st(VQ, b + m, so, 1024)
            for t in range(2):
                for i in range(2):
                    cvt(a + 18 + 4 * t + i, b + 16 + 4 * t + 2 * i)
                st(VQ, a + 16 + 4 * t, 's49', 2048 + 1024 * t)
        gemm('QKV', 18, 6, 2, 9, 9216, 65536, 2, 2 * SEG_XN, 2 * SEG_QKV, [], 7, 6, 4, (4, 5), epi, mid)

    def role_f1():
        A('s_lshl_b32 s35, s36, 1')
        A('s_add_u32 s35, s35, s37')
        A('s_mov_b32 s38, s36')
        A('s_cmp_ge_u32 s35, 64')
        A('s_cbranch_scc1 F1_NL')
        ln1()
        A.label('F1_NL')
        G.srd(12, G.P_WG, 576 * 9216)
        G.srd(16, G.P_WU, 576 * 9216)
        w_lane(9216, 'N', 'N')
        A('s_lshl_b32 s34, s38, 2')
        A('s_add_u32 s34, s34, %s' % S_W)
        A('s_lshl_b32 s33, s34, 6')
        A('v_add_u32 v8, s33, v8')
        units = []
        for k in range(18):
            for m in range(2):
                units.append((sr(12 + 4 * m, 4), 'v8', 0, k, [(k * 4 + 2 * m + t, 'v10', 8 * t) for t in range(2)]))
        load_weights(units, 72, 9216, 'N')
        G.ts()
        G.wait_ready('v6', 'v7')
        A('s_mov_b32 %s, 0' % S_U)
        A('s_mul_i32 %s, s37, 144' % S_DST)
        A('s_add_u32 %s, %s, s34' % (S_DST, S_DST))
        A('s_lshl_b32 %s, %s, 10' % (S_DST, S_DST))
        A('s_add_u32 %s, %s, 0x%x' % (S_DST, S_DST, W_ACT))
        A('s_mul_i32 %s, s37, 18432' % S_SRC)
        A('s_mul_i32 s33, %s, 4480' % S_W)
        A('s_add_u32 %s, %s, s33' % (S_SRC, S_SRC))
        A('s_add_u32 %s, %s, 0x%x' % (S_SRC, S_SRC, W_HN))
        A('s_mul_i32 %s, s37, 160' % S_FLG)
        A('s_add_u32 %s, %s, s34' % (S_FLG, S_FLG))
        A('s_add_u32 %s, %s, %d' % (S_FLG, S_FLG, F_F1))
        A('s_lshl_b32 %s, %s, 7' % (S_FLG, S_FLG))
        A('s_lshl_b32 s33, s37, 5')
        A('s_add_u32 s33, s33, %d' % F_LN2)
        A('v_min_u32 v4, 11, v1')
        A('v_add_u32 v4, s33, v4')
        A('v_lshlrev_b32 v4, 7, v4')
        A('s_mov_b32 s50, %s' % G.fbits(-G.LOG2E))

        def epi(VQ):
            g, u, t = 8, 16, 60
            for i in range(8):
                A('v_mul_f32 v%d, s50, v%d' % (t + i, g + i))
            for i in range(8):
                A('v_exp_f32 v%d, v%d' % (t + i, t + i))
            for i in range(8):
                A('v_add_f32 v%d, 1.0, v%d' % (t + i, t + i))
            for i in range(8):
                A('v_rcp_f32 v%d, v%d' % (t + i, t + i))
            for i in range(4):
                A('v_pk_mul_f32 %s, %s, %s' % (vr(g + 2 * i, 2), vr(g + 2 * i, 2), vr(u + 2 * i, 2)))
            for i in range(4):
                A('v_pk_mul_f32 %s, %s, %s' % (vr(g + 2 * i, 2), vr(g + 2 * i, 2), vr(t + 2 * i, 2)))
            for i in range(4):
                cvt(t + 8 + i, g + 2 * i)
            VQ.op('st', 'buffer_store_dwordx4 %s, v0, %s, %s offen sc1' % (vr(t + 8, 4), WS, S_DST))
        gemm('F1', 18, 4, 1, 5, 4480, 32768, 1, SEG_XN, SEG_ACT, [0, 5, 10, 14], 8, 8, 5, (), epi, late=10)

    def role_part(name):
        wo = name == 'WO'
        KS, NP = (32, NPW) if wo else (36, NPF)
        G.srd(12, G.P_WO if wo else G.P_WD, NP * KS * 32 * 1152)
        krow = 'D' if wo else 'N'
        w_lane(1152, krow, 'N')
        A('s_mul_i32 s33, s36, %d' % (KS * 32 * 1152))
        A('s_mul_i32 s34, s38, 384')
        A('s_add_u32 s33, s33, s34')
        A('s_lshr_b32 s34, %s, 1' % S_W)
        A('s_lshl_b32 s34, s34, 6')
        A('s_add_u32 s34, s34, s33')
        A('v_add_u32 v9, s34, v8')
        A('s_lshl_b32 s34, %s, 6' % S_W)
        A('s_add_u32 s34, s34, s33')
        A('v_add_u32 v8, s34, v8')
        A('s_and_b32 s34, %s, 1' % S_W)
        A('s_lshl_b32 s34, s34, 3')
        A('v_add_u32 v11, s34, v10')
        units = []
        for k in range(KS):
            units.append(('s[12:15]', 'v8', 0, k, [(k * 3 + t, 'v10', 8 * t) for t in range(2)]))
            units.append(('s[12:15]', 'v9', 256, k, [(k * 3 + 2, 'v11', 0)]))
        load_weights(units, KS * 3, 1152, krow)
        G.ts()
        G.wait_ready('v6', 'v7')
        A('s_mov_b32 %s, 0' % S_U)
        A('s_mul_i32 s33, s37, %d' % NP)
        A('s_add_u32 s33, s33, s36')
        A('s_mul_i32 %s, s33, 18432' % S_DST)
        A('s_mul_i32 s34, s38, 6144')
        A('s_add_u32 %s, %s, s34' % (S_DST, S_DST))
        A('s_lshl_b32 s34, %s, 10' % S_W)
        A('s_add_u32 %s, %s, s34' % (S_DST, S_DST))
        A('s_add_u32 %s, %s, 0x%x' % (S_DST, S_DST, W_PW if wo else W_PF))
        A('s_lshl_b32 s34, %s, 9' % S_W)
        A('s_sub_u32 s34, 4096, s34')
        A('v_lshlrev_b32 v6, 3, v1')
        A('v_add_u32 v6, s34, v6')
        A('s_lshl_b32 s33, s33, 2')
        A('s_add_u32 s33, s33, %s' % S_W)
        A('s_mul_i32 %s, s33, %d' % (S_SRC, KS * 256))
        A('s_add_u32 %s, %s, 0x%x' % (S_SRC, S_SRC, W_O if wo else W_ACT))
        A('s_lshl_b32 s33, s36, 2')
        A('s_add_u32 s33, s33, %s' % S_W)
        A('s_lshl_b32 s34, s37, 2')
        A('s_add_u32 s34, s34, s38')
        A('s_lshl_b32 s34, s34, 4')
        A('s_add_u32 %s, s34, s33' % S_FLG)
        A('s_add_u32 %s, %s, %d' % (S_FLG, S_FLG, F_WO if wo else F_F2))
        A('s_lshl_b32 %s, %s, 7' % (S_FLG, S_FLG))
        if wo:
            A('s_lshl_b32 s33, s33, 3')
            A('s_add_u32 s33, s33, %d' % F_ATT)
            A('v_min_u32 v4, 7, v1')
        else:
            A('s_mul_i32 s33, s33, 9')
            A('s_mul_i32 s34, s37, 160')
            A('s_add_u32 s33, s33, s34')
            A('s_add_u32 s33, s33, %d' % F_F1)
            A('v_min_u32 v4, 8, v1')
        A('v_add_u32 v4, s33, v4')
        A('v_lshlrev_b32 v4, 7, v4')

        def epi(VQ):
            for i in range(4):
                cvt(60 + i, 8 + 2 * i)
            VQ.op('st', 'buffer_store_dwordx4 v[60:63], v0, %s, %s offen sc1' % (WS, S_DST))
            for i in range(2):
                cvt(64 + i, 16 + 2 * i)
            VQ.op('st', 'buffer_store_dwordx2 v[64:65], v6, %s, %s offen sc1' % (WS, S_DST))
        if wo:
            gemm(name, 32, 3, 1, 8, 8192, 32768, 1, SEG_O, SEG_PW, [0, 8, 16, 24], 12, 8, 6, (), epi, late=16)
        else:
            gemm(name, 36, 3, 1, 9, 9216, 65536, 1, SEG_ACT, SEG_PF, [0, 9, 18, 27], 12, 8, 6, (), epi, late=18)

    def role_am():
        SMF = 'v_smfmac_f32_16x16x64_bf16'
        IDX, SEL, MX, LX = 6, 10, 12, 14
        QF, KF, VF, MF, SX, PB, O, KA, VA, KM, SM, PM, ST = 16, 48, 80, 88, 124, 136, 144, 160, 168, 176, 192, 200, 204
        L_QK, L_M, L_KM = 0, 16384, 24576

        def FR(n, sub=None):
            k, b = ('a', 8 * n) if n < 32 else ('v', 224 + 8 * (n - 32))
            return vr(b, 8, k) if sub is None else vr(b + 2 * sub, 2, k)
        G.srd(16, G.P_WK, 576 * 8192)
        G.srd(20, G.P_WV, 576 * 8192)
        A('v_lshlrev_b32 v0, 4, v1')
        A('s_lshl_b32 s36, s35, 2')
        A('s_add_u32 s36, s36, %s' % S_W)
        A('s_mul_i32 s30, %s, 36864' % S_W)
        A('v_lshrrev_b32 v7, 2, v1')
        A('v_and_b32 v5, 3, v1')
        A('v_lshlrev_b32 v8, 13, v7')
        A('v_lshl_add_u32 v8, v5, 4, v8')
        A('s_lshl_b32 s33, s36, 6')
        A('v_add_u32 v8, s33, v8')
        VQ = Q(A, 'vmcnt')

        def dma(n):
            for i in range(4):
                A('s_add_u32 m0, s30, %d' % ((n % 9) * 4096 + i * 1024))
                A('s_mov_b32 s31, %d' % ((64 * (n % 9) + 16 * i) * 8192))
                VQ.op(n, 'buffer_load_dwordx4 v8, %s, s31 offen lds' % ('s[16:19]', 's[20:23]')[n // 9])
        A('s_mov_b32 s51, 0x%x' % SENT)
        for i in range(4):
            A('v_mov_b32 v%d, s51' % (16 + i))
        A('s_mul_i32 s33, s36, 4608')
        A('s_add_u32 s33, s33, 0x%x' % W_ME)
        for o in (0, 1024, 2048, 3072, 3584):
            VQ.op('z', 'buffer_store_dwordx4 v[16:19], v0, %s, s33 offen offset:%d sc1' % (WS, o))
        for n in range(9):
            dma(n)
        A('v_lshrrev_b32 v3, 5, v1')
        A('v_bfe_u32 v4, v1, 4, 1')
        A('v_lshl_add_u32 v9, v3, 3, v4')
        A('v_and_b32 v7, 3, v7')
        A('v_lshl_add_u32 v9, v7, 1, v9')
        A('v_lshlrev_b32 v9, 7, v9')
        A('v_lshl_add_u32 v9, v5, 3, v9')
        A('v_add_u32 v9, s30, v9')
        VQ.wait('z')
        A('v_mov_b32 v3, 1')
        A('v_mov_b32 v7, %d' % (D_CBAR * 4))
        A('s_mov_b64 exec, 1')
        VQ.op('arr', 'buffer_atomic_add v3, v7, %s, 0 offen sc1' % G.DBG)
        A('s_mov_b64 exec, -1')
        for n in range(18):
            VQ.wait(n)
            for t in range(2):
                for z in range(2):
                    for u in range(2):
                        A('ds_read_b64_tr_b16 %s, v9 offset:%d' % (FR(2 * n + t, 2 * z + u), (n % 9) * 4096 + z * 2048 + u * 64 + t * 32))
            if n < 9:
                A('s_waitcnt lgkmcnt(0)')
                dma(n + 9)
        A('v_and_b32 v7, 8, v1')
        A('v_mov_b32 v%d, 0x4444' % IDX)
        A('v_mov_b32 v3, 0xeeee')
        A('v_cmp_ne_u32 vcc, 0, v7')
        A('v_cndmask_b32 v%d, v%d, v3, vcc' % (IDX, IDX))
        A('v_and_b32 v7, 7, v1')
        A('v_lshlrev_b32 v4, 2, v4')
        A('v_sub_u32 v7, v7, v4')
        A('v_mov_b32 v5, 0x3f80')
        A('v_mov_b32 v4, 0x3f800000')
        for i in range(2):
            A('v_mov_b32 v%d, 0' % (SEL + i))
            A('v_cmp_eq_u32 vcc, %d, v7' % (2 * i))
            A('v_cndmask_b32 v%d, v%d, v5, vcc' % (SEL + i, SEL + i))
            A('v_cmp_eq_u32 vcc, %d, v7' % (2 * i + 1))
            A('v_cndmask_b32 v%d, v%d, v4, vcc' % (SEL + i, SEL + i))
        A('v_and_b32 v7, 15, v1')
        A('v_lshrrev_b32 v5, 4, v1')
        A('v_lshlrev_b32 v5, 2, v5')
        A('v_sub_u32 v7, v7, v5')
        for r in range(4):
            A('v_cmp_le_i32 s[%d:%d], %d, v7' % (52 + 2 * r, 53 + 2 * r, r))
        A('v_mov_b32 v3, %s' % G.fbits(-1e9 * G.LOG2E))
        A('v_mov_b32 v%d, 0' % (PB + 2))
        A('v_mov_b32 v%d, 0' % (PB + 3))
        A('s_mov_b32 s50, %s' % G.fbits(G.LOG2E / math.sqrt(128.0)))
        A('s_add_u32 s45, s36, %d' % F_ATT)
        A('s_lshl_b32 s45, s45, 7')
        A('s_lshl_b32 s41, s35, 21')
        A('s_lshl_b32 s33, %s, 11' % S_W)
        A('s_add_u32 s41, s41, s33')
        A('s_add_u32 s41, s41, 0x%x' % W_QKV)
        A('s_add_u32 s46, s33, 8192')
        A('s_lshl_b32 s42, s36, 10')
        A('s_add_u32 s42, s42, 0x%x' % W_O)
        A('s_lshl_b32 s43, %s, 10' % S_W)
        A('v_add_u32 v8, s43, v0')
        A('s_mov_b32 s43, 0x%x' % W_ME)
        A('s_and_b32 s44, s35, 8')
        A('s_mul_i32 s44, s44, 3')
        A('s_add_u32 s44, s44, s35')
        A('s_and_b32 s44, s44, 0x27')
        A('s_lshl_b32 s33, %s, 3' % S_W)
        A('s_add_u32 s44, s44, s33')
        A('s_lshl_b32 s44, s44, 7')
        A('s_mov_b32 s40, 0')
        A('s_waitcnt lgkmcnt(0)')
        G.ts()
        G.wait_ready('v4', 'v5')
        A('v_and_b32 v4, 0x23, v1')
        A('v_lshlrev_b32 v4, 2, v4')
        A('s_lshl_b32 s33, s35, 8')
        A('s_add_u32 s33, s33, %d' % (F_QKV * 128))
        G.spin('v4', 'v5', '2', 24, WS, 's33')
        A('v_mov_b32 v4, s44')
        A('s_barrier')

        def loads():
            A('s_add_u32 s47, s41, s46')
            A('s_lshl_b32 m0, %s, 11' % S_W)
            for T in range(2):
                A('buffer_load_dwordx4 v0, %s, s41 offen offset:%d sc1 lds' % (WS, T * 1024))
            A('s_add_u32 m0, m0, 8192')
            for T in range(2):
                A('buffer_load_dwordx4 v0, %s, s47 offen offset:%d sc1 lds' % (WS, T * 1024))
            for t in range(2):
                A('buffer_load_dwordx4 %s, v0, %s, s47 offen offset:%d sc1' % (vr(VF + 4 * t, 4), WS, 2048 + t * 1024))
            A('s_add_u32 s41, s41, %d' % SEG_QKV)

        def xred(r, t, op, sw):
            return ['v_mov_b32 v%d, v%d' % (t, r), 'v_permlane%d_swap_b32 v%d, v%d' % (sw, r, t), '%s v%d, v%d, v%d' % (op, r, r, t)]

        def both(f):
            for x in zip(f(0), f(1)):
                for y in x:
                    A(y)
        def poll():
            A('v_mov_b32 v5, 0')
            A('s_mov_b64 exec, 1')
            A('buffer_atomic_or v5, v4, %s, s43 offen sc0 sc1' % WS)
            A('s_mov_b64 exec, -1')

        def mloads():
            A('s_add_u32 s47, s43, 4096')
            A('s_add_u32 s48, s43, 8192')
            A('buffer_load_dwordx4 %s, v8, %s, s43 offen sc1' % (vr(MF, 4), WS))
            A('buffer_load_dwordx4 %s, v8, %s, s47 offen sc1' % (vr(MF + 4, 4), WS))
            A('buffer_load_dwordx4 %s, v0, %s, s48 offen sc1' % (vr(MF + 32, 4), WS))

        def bound():
            A('s_add_u32 s27, s27, 1')
            A('s_cmp_ge_u32 s27, %d' % G.SPIN_MAX)
            A('s_cbranch_scc1 FAIL')
        loads()
        poll()
        A('s_waitcnt vmcnt(0)')
        A.label('AM_L')
        A('v_readfirstlane_b32 s49, v5')
        A('s_cmp_ge_u32 s40, %d' % OPT['amd'])
        A('s_cselect_b32 s49, 0, s49')
        A('s_cmp_eq_u32 s49, s51')
        A('s_cbranch_scc1 AM_N')
        mloads()
        A('s_branch AM_B')
        A.label('AM_N')
        poll()
        A.label('AM_B')
        A('s_barrier')
        LQ = Q(A, 'lgkmcnt')
        for w in range(4):
            for b, o in ((KF, 8192), (QF, 0)):
                for T in range(2):
                    LQ.op(w, 'ds_read_b128 %s, v0 offset:%d' % (vr(b + 8 * w + 4 * T, 4), L_QK + o + 2048 * w + 1024 * T))
            if w == 2:
                LQ.wait(0)
        for w in range(4):
            LQ.wait(w)
            for i, (tk, tq) in enumerate(((0, 0), (0, 1), (1, 1))):
                d = vr(SX + 4 * i, 4)
                A('%s %s, %s, %s, %s' % (M32, d, vr(KF + 8 * w + 4 * tk, 4), vr(QF + 8 * w + 4 * tq, 4), '0' if w == 0 else d))
        for r in range(KA, KA + 16, 2):
            A('v_mov_b64 %s, 0' % vr(r, 2))
        for b in (SX, SX + 8):
            for r in range(4):
                A('v_cndmask_b32 v%d, v3, v%d, s[%d:%d]' % (b + r, b + r, 52 + 2 * r, 53 + 2 * r))
        A('v_max3_f32 v%d, v%d, v%d, v%d' % (MX, SX, SX + 1, SX + 2))
        A('v_max3_f32 v%d, v%d, v%d, v%d' % (MX + 1, SX + 4, SX + 5, SX + 6))
        A('v_max_f32 v%d, v%d, v%d' % (MX, MX, SX + 3))
        A('v_max3_f32 v%d, v%d, v%d, v%d' % (MX + 1, MX + 1, SX + 7, SX + 8))
        A('v_max3_f32 v%d, v%d, v%d, v%d' % (MX + 1, MX + 1, SX + 9, SX + 10))
        A('v_max_f32 v%d, v%d, v%d' % (MX + 1, MX + 1, SX + 11))
        both(lambda T: xred(MX + T, LX + T, 'v_max_f32', 16) + xred(MX + T, LX + T, 'v_max_f32', 32))
        grp = [list(range(SX, SX + 4)), list(range(SX + 4, SX + 12))]
        for T in range(2):
            for r in grp[T]:
                A('v_sub_f32 v%d, v%d, v%d' % (r, r, MX + T))
        for T in range(2):
            for r in grp[T]:
                A('v_exp_f32 v%d, v%d' % (r, r))
        for T in range(2):
            for i in range(len(grp[T]) // 2):
                cvt(PB + 4 * T + i, grp[T][2 * i])
        for T in range(2):
            for t in range(2):
                A('%s %s, %s, %s, 0' % (M32, vr(O + 8 * T + 4 * t, 4), vr(VF + 4 * t, 4), vr(PB + 4 * T, 4)))
        A('v_pk_add_f32 %s, %s, %s' % (vr(SX, 2), vr(SX, 2), vr(SX + 2, 2)))
        for i in range(1, 4):
            A('v_pk_add_f32 %s, %s, %s' % (vr(SX + 4, 2), vr(SX + 4, 2), vr(SX + 4 + 2 * i, 2)))
        for T in range(2):
            A('v_add_f32 v%d, v%d, v%d' % (LX + T, SX + 4 * T, SX + 4 * T + 1))
        both(lambda T: xred(LX + T, SX + T, 'v_add_f32', 16) + xred(LX + T, SX + T, 'v_add_f32', 32))
        A('s_mov_b32 s27, 0')
        A('s_cmp_eq_u32 s49, s51')
        A('s_cbranch_scc1 AM_P')
        A('s_waitcnt vmcnt(3)')
        publish('s45', 's40')
        A('s_branch AM_C')
        A.label('AM_P')
        A('s_waitcnt vmcnt(0)')
        A('v_readfirstlane_b32 s49, v5')
        A('s_cmp_eq_u32 s49, s51')
        A('s_cbranch_scc1 AM_Q')
        mloads()
        publish('s45', 's40')
        A('s_branch AM_C')
        A.label('AM_Q')
        poll()
        publish('s45', 's40')
        A('s_waitcnt vmcnt(1)')
        A.label('AM_R')
        A('v_readfirstlane_b32 s49, v5')
        A('s_cmp_lg_u32 s49, s51')
        A('s_cbranch_scc1 AM_M')
        poll()
        bound()
        A('s_waitcnt vmcnt(0)')
        A('s_branch AM_R')
        A.label('AM_M')
        mloads()
        bound()
        A('s_waitcnt vmcnt(0)')
        A.label('AM_C')
        G.ts()
        for i, r in enumerate((MF, MF + 4, MF + 32)):
            A('s_waitcnt vmcnt(%d)' % (3 - i))
            if i < 2:
                A('ds_write_b128 v8, %s offset:%d' % (vr(r, 4), L_M + 4096 * i))
            for j in range(4):
                A('v_cmp_eq_u32 %s, s51, v%d' % ('vcc' if i + j == 0 else 's[38:39]', r + j))
                if i + j:
                    A('s_or_b64 vcc, vcc, s[38:39]')
        A('s_cbranch_vccnz AM_M')
        A('s_waitcnt lgkmcnt(0)')
        A('s_barrier')
        LQ = Q(A, 'lgkmcnt')
        for f in range(8):
            LQ.op(f, 'ds_read_b128 %s, v0 offset:%d' % (vr(MF + 4 * f, 4), L_M + 1024 * f))
        A('s_add_u32 s40, s40, 1')
        loads()
        A('s_add_u32 s43, s43, %d' % SEG_ME)
        poll()

        def smf(kind, f, t):
            LQ.wait(f)
            A('%s %s, %s, %s, v%d' % (SMF, vr((KA, VA)[kind] + 4 * t, 4), vr(MF + 4 * f, 4), FR(18 * kind + 2 * f + t), IDX))
        for f in (8, 0, 1, 2, 3, 4, 5, 6, 7):
            for t in range(2):
                smf(0, f, t)
        vs = [(f, t) for f in range(9) for t in range(2)]

        def V(n):
            for i in range(n):
                smf(1, *vs.pop(0))
        V(2)
        for t in range(2):
            cvt(KA + 4 * t, KA + 4 * t)
            cvt(KA + 4 * t + 1, KA + 4 * t + 2)
            A('%s %s, %s, %s, 0' % (M16, vr(KM + 4 * t, 4), vr(KA + 4 * t, 2), vr(SEL, 2)))
        V(2)
        for i in range(4):
            cvt(KM + i, KM + 2 * i)
        A('ds_write_b128 v8, %s offset:%d' % (vr(KM, 4), L_KM))
        V(5)
        A('s_waitcnt lgkmcnt(0)')
        A('s_barrier')
        for w in range(4):
            LQ.op('k%d' % w, 'ds_read_b128 %s, v0 offset:%d' % (vr(KM + 4 * w, 4), L_KM + 1024 * w))
        V(4)
        for w in range(4):
            LQ.wait('k%d' % w)
            for T in range(2):
                d = vr(SM + 4 * T, 4)
                A('%s %s, %s, %s, %s' % (M32, d, vr(KM + 4 * w, 4), vr(QF + 8 * w + 4 * T, 4), '0' if w == 0 else d))
        V(5)
        X, Y = SX, SX + 2

        def soft(T):
            s, m, a = SM + 4 * T, X + T, Y + 2 * T
            o = ['v_max3_f32 v%d, v%d, v%d, v%d' % (m, s, s + 1, s + 2), 'v_max_f32 v%d, v%d, v%d' % (m, m, s + 3)]
            o += xred(m, a, 'v_max_f32', 16)
            o += ['v_mul_f32 v%d, s50, v%d' % (m, m), 'v_max_f32 v%d, v%d, v%d' % (m, m, MX + T)]
            o += ['v_fma_f32 v%d, v%d, s50, -v%d' % (r, r, m) for r in range(s, s + 4)]
            o += ['v_sub_f32 v%d, v%d, v%d' % (a, MX + T, m)]
            o += ['v_exp_f32 v%d, v%d' % (r, r) for r in list(range(s, s + 4)) + [a]]
            o += ['v_add_f32 v%d, v%d, v%d' % (m, s, s + 1), 'v_add_f32 v%d, v%d, v%d' % (a + 1, s + 2, s + 3), 'v_add_f32 v%d, v%d, v%d' % (m, m, a + 1)]
            o += xred(m, a + 1, 'v_add_f32', 16)
            o += ['v_fmac_f32 v%d, v%d, v%d' % (m, a, LX + T), 'v_rcp_f32 v%d, v%d' % (m, m)]
            o += ['v_mul_f32 v%d, v%d, v%d' % (r, r, m) for r in list(range(s, s + 4)) + [a]]
            o += ['v_cvt_pk_bf16_f32 v%d, v%d, v%d' % (PM + 2 * T + i, s + 2 * i, s + 2 * i + 1) for i in range(2)]
            o += ['v_cvt_pk_bf16_f32 v%d, v%d, v%d' % (VA + 4 * T + i, VA + 4 * T + 2 * i, VA + 4 * T + 2 * i + 1) for i in range(2)]
            o += ['v_pk_mul_f32 %s, %s, %s op_sel_hi:[1,0]' % (vr(r, 2), vr(r, 2), vr(a, 2)) for r in range(O + 8 * T, O + 8 * T + 8, 2)]
            return o
        both(soft)
        for T in range(2):
            for t in range(2):
                d = vr(O + 8 * T + 4 * t, 4)
                A('%s %s, %s, %s, %s' % (M16, d, vr(VA + 4 * t, 2), vr(PM + 2 * T, 2), d))
        A('s_add_u32 s47, s42, %d' % (128 * 1024))
        for T in range(2):
            for i in range(4):
                cvt(ST + 4 * T + i, O + 8 * T + 2 * i)
            A('buffer_store_dwordx4 %s, v0, %s, %s offen sc1' % (vr(ST + 4 * T, 4), WS, ('s42', 's47')[T]))
        A('s_add_u32 s42, s42, %d' % SEG_O)
        A('s_waitcnt vmcnt(2)')
        A('s_cmp_lt_u32 s40, 64')
        A('s_cbranch_scc1 AM_L')
        A('s_waitcnt vmcnt(0)')
        publish('s45', 's40')

    A('s_sub_u32 s32, %s, 1' % S_X)
    A('s_cmp_lt_u32 %s, 6' % S_T)
    A('s_cbranch_scc1 R_TRIP')
    A('s_sub_u32 s33, %s, 6' % S_T)
    A('s_lshr_b32 s36, s33, 1')
    A('s_mul_i32 s36, s36, 7')
    A('s_add_u32 s36, s36, s32')
    A('s_and_b32 s37, s33, 1')
    A('s_cmp_lt_u32 s33, 18')
    A('s_cbranch_scc1 R_PAIR')
    A('s_sub_u32 s38, s33, 18')
    A('s_add_u32 s34, s32, 14')
    A('s_add_u32 s36, s32, 61')
    A('s_mul_i32 s35, s32, 6')
    A('s_add_u32 s35, s35, s38')
    A('s_add_u32 s33, s32, 3')
    A('s_min_u32 s33, s33, 4')
    A('s_sub_u32 s35, s35, s33')
    A('s_cmp_lt_u32 s32, 2')
    A('s_cselect_b32 s33, 3, 2')
    A('s_cmp_ge_u32 s38, s33')
    A('s_cbranch_scc1 R_SMALL')
    A('s_cmp_lt_u32 s32, 2')
    A('s_cbranch_scc1 R_TRIP2')
    A.label('R_PAIR')
    A('s_cmp_lt_u32 s36, 32')
    A('s_cbranch_scc1 R_QKV')
    A('s_sub_u32 s36, s36, 32')
    role_f1()
    G.finish()
    A.label('R_TRIP')
    A('s_cmp_ge_u32 %s, 3' % S_T)
    A('s_cselect_b32 s34, 7, 0')
    A('s_cselect_b32 s38, 3, 0')
    A('s_sub_u32 s38, %s, s38' % S_T)
    A('s_add_u32 s34, s34, s32')
    A.label('R_TRIP2')
    A('s_bfe_u32 s37, s34, 0x10001')
    A('s_lshr_b32 s36, s34, 2')
    A('s_bitcmp1_b32 s34, 0')
    A('s_cbranch_scc1 R_WO')
    role_part('F2')
    G.finish()
    A.label('R_WO')
    role_part('WO')
    G.finish()
    A.label('R_QKV')
    role_qkv()
    role_fin()
    G.finish()
    A.label('R_SMALL')
    A('s_mul_i32 s33, s35, 52')
    A('s_lshr_b32 s33, s33, 8')
    A('s_mul_i32 s34, s33, 5')
    A('s_add_u32 s34, s34, 4')
    A('s_cmp_eq_u32 s34, s35')
    A('s_cbranch_scc0 R_AM')
    A('s_mov_b32 s35, s33')
    role_ln2()
    G.finish()
    A.label('R_AM')
    A('s_sub_u32 s35, s35, s33')
    role_am()
    G.finish()
```

```python
import sys, math, struct
sys.path.insert(0, 'gen')
from asmlib import *
from layout import *

OPT = dict(ts=0, ts0=6, chain=6, only=0, mixed=0, st=0, two=0, slow=0, dl=0, dm=0, pl=13, x=0, w1=0, dn=0, h1=5, h2=13, hq=3, pb=99, xl=0, mi=4, ml=2, t0=0, amd=62)
for a in sys.argv[2:]:
    k, v = a.split('=')
    OPT[k] = int(v)

A = Asm()
WS, DBG, SA, SB, SC = 's[4:7]', 's[8:11]', 's[12:15]', 's[16:19]', 's[20:23]'
S_W, S_X, S_T, S_SPIN = 's24', 's25', 's26', 's27'
P_X, P_MEM, P_WQ, P_WK, P_WV, P_WO, P_WG, P_WU, P_WD, P_OUT, P_DBG, P_WS = 64, 66, 68, 70, 72, 74, 80, 82, 84, 86, 88, 90
SPIN_MAX = 400000
LOG2E = 1.4426950408889634


def fbits(x):
    return '0x%08x' % struct.unpack('<I', struct.pack('<f', x))[0]


def srd(d, p, size):
    A('s_mov_b32 s%d, s%d' % (d, p))
    A('s_mov_b32 s%d, s%d' % (d + 1, p + 1))
    A('s_mov_b32 s%d, 0x%x' % (d + 2, size))
    A('s_mov_b32 s%d, 0x20000' % (d + 3))


V_TS = 'v2'


def ts_init():
    if OPT['ts']:
        A('v_mov_b32 %s, 0' % V_TS)
        A('s_mov_b32 s63, 0')


def ts(real=True):
    if OPT['ts']:
        A('%s s[60:61]' % ('s_memrealtime' if (real and OPT['ts'] == 1) else 's_memtime'))
        A('s_waitcnt lgkmcnt(0)')
        A('s_mov_b32 s62, m0')
        A('s_mov_b32 m0, s63')
        A('v_writelane_b32 %s, s60, m0' % V_TS)
        A('s_mov_b32 m0, s62')
        A('s_add_u32 s63, s63, 1')
        A('s_min_u32 s63, s63, 63')


def dump_ts(vlane):
    A('s_lshl_b32 s60, %s, 5' % S_X)
    A('s_add_u32 s60, s60, %s' % S_T)
    A('s_lshl_b32 s60, s60, 2')
    A('s_add_u32 s60, s60, %s' % S_W)
    A('s_lshl_b32 s60, s60, 8')
    A('s_add_u32 s60, s60, 0x%x' % W_TS)
    A('v_lshlrev_b32 v9, 2, %s' % vlane)
    A('buffer_store_dword %s, v9, %s, s60 offen' % (V_TS, WS))


def finish():
    if OPT['ts']:
        ts()
        dump_ts('v1')
    A('s_endpgm')


def spin(vaddr, vtmp, need, code, srdname=WS, soff='0'):
    L, D = A.newlabel('SP'), A.newlabel('SD')
    A('s_mov_b32 %s, 0' % S_SPIN)
    A.label(L)
    A('buffer_load_dword %s, %s, %s, %s offen sc1' % (vtmp, vaddr, srdname, soff))
    A('s_waitcnt vmcnt(0)')
    A('v_cmp_gt_u32 vcc, %s, %s' % (need, vtmp))
    A('s_cbranch_vccz %s' % D)
    A('s_add_u32 %s, %s, 1' % (S_SPIN, S_SPIN))
    A('s_cmp_lt_u32 %s, %d' % (S_SPIN, SPIN_MAX))
    A('s_cbranch_scc1 %s' % L)
    A('s_movk_i32 %s, %d' % (S_SPIN, code))
    A('s_branch FAIL')
    A.label(D)


def wait_ready(v0, v1):
    A('v_mov_b32 %s, %d' % (v0, D_READY * 4))
    spin(v0, v1, '1', 1, DBG)


def publish(vaddr, vtmp, sval):
    A('v_mov_b32 %s, %s' % (vtmp, sval))
    A('s_mov_b64 exec, 1')
    A('buffer_store_dword %s, %s, %s, 0 offen sc1' % (vtmp, vaddr, WS))
    A('s_mov_b64 exec, -1')


def role_chain_stub():
    wait_ready('v6', 'v7')
    A('s_lshl_b32 s34, %s, 2' % S_T)
    A('s_add_u32 s34, s34, %s' % S_W)
    A('s_lshl_b32 s34, s34, 2')
    A('v_mov_b32 v9, s34')
    publish('v9', 'v12', '64')


def prologue():
    A('s_cmp_ge_u32 s2, 256')
    A('s_cbranch_scc1 EXIT')
    A('s_load_dwordx16 s[64:79], s[0:1], 0')
    A('s_load_dwordx8 s[80:87], s[0:1], 64')
    A('s_load_dwordx4 s[88:91], s[0:1], 96')
    A('v_and_b32 v1, 63, v0')
    A('v_lshrrev_b32 v3, 6, v0')
    A('v_readfirstlane_b32 %s, v3' % S_W)
    A('s_getreg_b32 s28, hwreg(HW_REG_XCC_ID, 0, 4)')
    A('s_and_b32 s28, s28, 7')
    if OPT['mixed']:
        A('s_and_b32 s28, s2, 3')
    ts_init()
    A('s_waitcnt lgkmcnt(0)')
    srd(4, P_WS, WS_SIZE)
    srd(8, P_DBG, 256)
    ts()
    A('s_cmp_lg_u32 %s, 0' % S_W)
    A('s_cbranch_scc1 P_WAIT')
    A('s_mov_b32 s29, s28')
    A('s_mov_b32 s30, 0')
    A.label('P_TRY')
    A('s_lshl_b32 s31, s29, 2')
    A('v_mov_b32 v3, s31')
    A('v_mov_b32 v4, 1')
    A('s_mov_b64 exec, 1')
    A('buffer_atomic_add v4, v3, %s, 0 offen sc0 sc1' % DBG)
    A('s_waitcnt vmcnt(0)')
    A('s_mov_b64 exec, -1')
    A('v_readfirstlane_b32 %s, v4' % S_T)
    A('s_cmp_lt_u32 %s, 32' % S_T)
    A('s_cbranch_scc1 P_GOT')
    A('s_add_u32 s29, s29, 1')
    A('s_and_b32 s29, s29, 7')
    A('s_add_u32 s30, s30, 1')
    A('s_cmp_lt_u32 s30, 8')
    A('s_cbranch_scc1 P_TRY')
    A('s_mov_b32 s29, 8')
    A.label('P_GOT')
    A('s_lshl_b32 s31, s29, 8')
    A('s_add_u32 s31, s31, %s' % S_T)
    A('v_mov_b32 v3, 0')
    A('v_mov_b32 v4, s31')
    A('ds_write_b32 v3, v4')
    A('s_waitcnt lgkmcnt(0)')
    A('s_branch P_JOIN')
    A.label('P_WAIT')
    A('s_cmp_lg_u32 s2, 0')
    A('s_cbranch_scc1 P_JOIN')
    A('v_mov_b32 v4, 0')
    A('v_mov_b32 v5, 0')
    A('v_mov_b32 v6, 0')
    A('v_mov_b32 v7, 0')
    A('v_lshlrev_b32 v3, 7, v1')
    A('s_sub_u32 s31, %s, 1' % S_W)
    A('s_mul_i32 s31, s31, %d' % (6 * 8192))
    A('s_add_u32 s31, s31, 0x%x' % W_FLAGS)
    for i in range(6):
        A('buffer_store_dwordx4 v[4:7], v3, %s, s31 offen sc1' % WS)
        A('s_add_u32 s31, s31, 8192')
    A('s_waitcnt vmcnt(0)')
    A.label('P_JOIN')
    A('s_barrier')
    A('s_cmp_lg_u32 s2, 0')
    A('s_cbranch_scc1 P_NR')
    A('s_cmp_lg_u32 %s, 1' % S_W)
    A('s_cbranch_scc1 P_NR')
    A('v_mov_b32 v3, %d' % (D_READY * 4))
    A('v_mov_b32 v4, 1')
    A('s_mov_b64 exec, 1')
    A('buffer_store_dword v4, v3, %s, 0 offen sc1' % DBG)
    A('s_mov_b64 exec, -1')
    A.label('P_NR')
    A('v_mov_b32 v3, 0')
    A('ds_read_b32 v4, v3')
    A('s_waitcnt lgkmcnt(0)')
    A('v_readfirstlane_b32 s31, v4')
    A('s_lshr_b32 %s, s31, 8' % S_X)
    A('s_and_b32 %s, s31, 255' % S_T)
    A('s_barrier')
    ts()


def main():
    me = sys.modules[__name__]
    prologue()
    A('s_cmp_eq_u32 %s, 0' % S_X)
    A('s_cbranch_scc1 R_CHAIN')
    A('s_cmp_gt_u32 %s, 7' % S_X)
    A('s_cbranch_scc1 EXIT')
    if OPT['only']:
        A('s_cmp_gt_u32 %s, 4' % S_X)
        A('s_cbranch_scc1 EXIT')
        A('s_lshl_b32 s30, %s, 21' % S_T)
        A('s_lshl_b32 s31, %s, 12' % S_X)
        A('s_add_u32 s30, s30, s31')
        A('s_add_u32 s30, s30, 0x%x' % (W_QKV + 4096))
        A('v_lshlrev_b32 v6, 4, v0')
        for i in range(64):
            A('buffer_load_dwordx4 %s, v6, %s, s30 offen' % (vr(8 + 4 * (i & 15), 4), WS))
            A('s_add_u32 s30, s30, %d' % SEG_QKV)
            if i & 15 == 15:
                A('s_sub_u32 s30, s30, %d' % (16 * SEG_QKV))
                A('s_waitcnt vmcnt(0)')
                for k in range(16):
                    A('buffer_store_dwordx4 %s, v6, %s, s30 offen sc1' % (vr(8 + 4 * k, 4), WS))
                    A('s_add_u32 s30, s30, %d' % SEG_QKV)
                A('s_waitcnt vmcnt(0)')
        A('s_cmp_lg_u32 %s, 1' % S_X)
        A('s_cbranch_scc1 EXIT')
        A('s_cmp_lg_u32 %s, 0' % S_T)
        A('s_cbranch_scc1 EXIT')
        wait_ready('v6', 'v7')
        A('v_lshlrev_b32 v6, 7, v1')
        A('s_lshl_b32 s30, %s, 2' % S_W)
        A('s_add_u32 s30, s30, %d' % (F_QKV * 128))
        A('v_add_u32 v6, s30, v6')
        A('v_mov_b32 v7, 64')
        A('buffer_store_dword v7, v6, %s, 0 offen sc1' % WS)
        A('s_endpgm')
    else:
        import workers
        workers.roles(me)
    A.label('R_CHAIN')
    if OPT['chain']:
        import importlib
        importlib.import_module('chain%d' % OPT['chain']).role_chain(me)
    else:
        role_chain_stub()
        finish()
    A.label('FAIL')
    A('s_mov_b64 exec, 1')
    A('v_mov_b32 v3, %d' % (D_ERR * 4))
    A('v_mov_b32 v4, %s' % S_SPIN)
    A('buffer_store_dword v4, v3, %s, 0 offen sc1' % DBG)
    A.label('EXIT')
    A('s_endpgm')
    lines, nn = fix_hazards(A.lines)
    ref = open('cdna_kernels/%s.s.ref' % NAME).read()
    head = ref[:ref.index(NAME + '_kernel:')]
    head = head.replace('grid=(4608,1,1) block=(256,1,1) lds=0', 'grid=(256,1,1) block=(256,1,1) lds=163840')
    tail = ref[ref.index('.section .rodata'):].replace('next_free_vgpr 256', 'next_free_vgpr 512')
    with open(sys.argv[1], 'w') as f:
        f.write(head + NAME + '_kernel:\n' + '\n'.join(l if l.endswith(':') else '    ' + l for l in lines) + '\n' + tail)
    print('lines', len(lines), 'nop states', nn)


if __name__ == '__main__':
    main()
```

```python
import math
from asmlib import *
from layout import *
from chain import Q

M16 = 'v_mfma_f32_16x16x16_bf16'
M32 = 'v_mfma_f32_16x16x32_bf16'


def roles(G):
    A, WS, OPT = G.A, G.WS, G.OPT
    S_W, S_X, S_T = G.S_W, G.S_X, G.S_T

    def cvt(d, s, s2=None):
        A('v_cvt_pk_bf16_f32 v%d, v%d, v%d' % (d, s, s + 1 if s2 is None else s2))

    def publish(soff, sval, q=None):
        A('v_mov_b32 v7, %s' % sval)
        A('s_mov_b64 exec, 1')
        t = 'buffer_store_dword v7, off, %s, %s sc1' % (WS, soff)
        if q is None:
            A(t)
        else:
            q.op('pub', t)
        A('s_mov_b64 exec, -1')

    def wreg(f, nf, sub=None):
        k, b = ('a', 4 * f) if f < 64 else ('v', 256 - 4 * (nf - f))
        return vr(b, 4, k) if sub is None else vr(b + 2 * sub, 2, k)

    def load_weights(units, nf, stride, krow):
        NS = 20
        VQ = Q(A, 'vmcnt')
        A('s_mul_i32 s30, %s, %d' % (S_W, NS * 2048))

        def dma(n):
            sd, vo, col, k, _ = units[n]
            for i in range(2):
                A('s_add_u32 m0, s30, %d' % ((n % NS) * 2048 + i * 1024))
                A('s_mov_b32 s31, %d' % ((32 * k + 16 * i) * stride + col))
                VQ.op(n, 'buffer_load_dwordx4 %s, %s, s31 offen lds' % (vo, sd))
        for n in range(min(NS, len(units))):
            dma(n)
        GR = 3
        usep = 256 if krow == 'N' else 1024
        for n0 in range(0, len(units), GR):
            ns = list(range(n0, min(n0 + GR, len(units))))
            VQ.wait(ns[-1])
            for n in ns:
                for f, va, off in units[n][4]:
                    for u in range(2):
                        A('ds_read_b64_tr_b16 %s, %s offset:%d' % (wreg(f, nf, u), va, (n % NS) * 2048 + u * usep + off))
            A('s_waitcnt lgkmcnt(0)')
            for n in ns:
                if n + NS < len(units):
                    dma(n + NS)

    def w_lane(stride, krow, ccol):
        A('v_lshrrev_b32 v7, 2, v1')
        A('v_mul_u32_u24 v8, %d, v7' % stride)
        A('v_and_b32 v6, 3, v1')
        A('v_lshl_add_u32 v8, v6, 4, v8')
        A('v_lshrrev_b32 v5, 4, v1')
        A('v_and_b32 v7, 3, v7')
        A('v_lshl_add_u32 v7, v5, %d, v7' % (3 if krow == 'N' else 2))
        A('v_lshlrev_b32 v10, 6, v7')
        A('v_lshl_add_u32 v10, v6, %d, v10' % (4 if ccol == 'N' else 3))
        A('s_mul_i32 s30, %s, %d' % (S_W, 20 * 2048))
        A('v_add_u32 v10, s30, v10')

    S_U, S_DST, S_SRC, S_LDS, S_NEED, S_FLG, S_PUB = ['s%d' % i for i in range(40, 47)]

    def gemm(name, KS, NT, TS, ND, WPART, BUF, STEP, dsrc, ddst, checks, pubk, NB, PF, swaps, epi, mid=None, late=None):
        NF = KS * TS
        nf = KS * NT
        ACC = 8
        RING = ACC + 4 * NT * TS
        always = not checks
        A('v_lshlrev_b32 v0, 4, v1')
        A('v_mov_b32 v3, v0')
        A('v_mov_b32 v5, 0')
        A('s_mul_i32 %s, %s, %d' % (S_LDS, S_W, WPART))
        A('s_mov_b32 %s, 0' % S_PUB)
        A('s_barrier')

        def dma(i, VQ):
            if i % 4 == 0:
                A('s_add_u32 m0, %s, %d' % (S_LDS, i * 1024))
                if i:
                    A('s_add_u32 s47, %s, %d' % (S_SRC, i * 1024))
            VQ.op('dma', 'buffer_load_dwordx4 v0, %s, %s offen offset:%d sc1 lds' % (WS, 's47' if i >= 4 else S_SRC, (i % 4) * 1024))
            if i == ND - 1:
                A('s_add_u32 %s, %s, %d' % (S_SRC, S_SRC, dsrc))
                A('s_xor_b32 %s, %s, %d' % (S_LDS, S_LDS, BUF))

        def poll(VQ):
            VQ.op('poll', 'buffer_load_dword v5, v4, %s, 0 offen sc1' % WS)

        def body(j0, VQ, LQ, issued, nst):
            pieces = {}
            if issued is not None:
                gap = max(1, min(3, (NF - 1 - j0) // ND))
                for i in range(ND):
                    pieces.setdefault(min(j0 + i * gap, NF - 1), []).append(i)
                pollk = max(max(pieces) + 1, NF - (700 // (16 * NT)))
            for j in range(j0, NF):
                T, k = divmod(j, KS)
                if issued is None and j in (checks or [0]) and (j > j0 or j == 0):
                    if always:
                        A('s_cmp_lt_u32 %s, 64' % S_NEED)
                        A('s_cbranch_scc1 %s_V%d' % (name, j))
                    else:
                        A('s_cbranch_vccz %s_V%d' % (name, j))
                    variants.append((j, list(VQ.q), list(LQ.q)))
                    if not always:
                        poll(VQ)
                LQ.wait('f%d' % j)
                b = vr(RING + 4 * (j % NB), 4)
                fill = []
                if j + PF < NF:
                    fill.append(lambda j=j: LQ.op('f%d' % (j + PF), 'ds_read_b128 %s, v3 offset:%d' % (vr(RING + 4 * ((j + PF) % NB), 4), (j + PF) * 1024)))
                for i in pieces.get(j, ()):
                    fill.append(lambda i=i: dma(i, VQ))
                if j == pubk:
                    def pub():
                        L = A.newlabel('NP')
                        A('s_cmp_eq_u32 %s, 0' % S_PUB)
                        A('s_cbranch_scc1 %s' % L)
                        VQ.wait('st')
                        publish(S_FLG, S_U)
                        A('s_mov_b32 %s, 0' % S_PUB)
                        A.label(L)
                        VQ.q.append('pub?')
                    fill.append(pub)
                if issued is not None and not always and j == pollk:
                    fill.append(lambda: poll(VQ))
                if mid:
                    fill += mid(j, VQ)
                if issued is None and (j + 1) in checks:
                    fill.append(lambda: A('v_cmp_ge_u32 vcc, %s, v5' % S_NEED))
                for t in range(NT):
                    d = vr(ACC + 4 * (T * NT + t), 4)
                    w = wreg(k * NT + t, nf)
                    x, y = (b, w) if t in swaps else (w, b)
                    A('%s %s, %s, %s, %s' % (M32, d, x, y, '0' if k == 0 else d))
                    n = 1 if t < NT - 1 else len(fill)
                    for f in fill[:n]:
                        f()
                    fill = fill[n:]
            A('v_xor_b32 v3, %d, v3' % BUF)
            epi(VQ)
            A('s_add_u32 %s, %s, %d' % (S_DST, S_DST, ddst))
            A('s_add_u32 %s, %s, %d' % (S_U, S_U, STEP))

        def strict(VQ, tag):
            VQ.q = [x for x in VQ.q if x != 'pub?']
            VQ.wait(tag)

        variants = []
        A.label(name + '_S')
        if not always:
            A('s_add_u32 s48, %s, 1' % S_U)
            G.spin('v4', 'v5', 's48', 20)
        VQ = Q(A, 'vmcnt')
        for i in range(ND):
            dma(i, VQ)
        A('s_waitcnt vmcnt(0)')
        A.label(name + '_L')
        A('s_barrier')
        if OPT['ts']:
            L = A.newlabel('TS')
            if STEP == 1:
                A('s_cmp_lt_u32 %s, %d' % (S_U, OPT['ts0']))
                A('s_cbranch_scc1 %s' % L)
            G.ts()
            A.label(L)
        LQ = Q(A, 'lgkmcnt')
        for j in range(PF):
            LQ.op('f%d' % j, 'ds_read_b128 %s, v3 offset:%d' % (vr(RING + 4 * (j % NB), 4), j * 1024))
        A('s_add_u32 %s, %s, %d' % (S_NEED, S_U, STEP))
        if not always:
            A('s_cmp_lt_u32 %s, 64' % S_NEED)
            A('s_cselect_b32 %s, %s, -1' % (S_NEED, S_NEED))
            A('v_cmp_ge_u32 vcc, %s, v5' % S_NEED)
        VQ = Q(A, 'vmcnt')
        VQ.q = ['st']
        body(0, VQ, LQ, None, 0)
        if not always:
            poll(VQ)
        strict(VQ, 'st')
        publish(S_FLG, S_U)
        A('s_cmp_ge_u32 %s, 64' % S_U)
        A('s_cbranch_scc1 %s_E' % name)
        A('s_branch %s_S' % name)
        for j, vq, lq in variants:
            A.label('%s_V%d' % (name, j))
            VQ = Q(A, 'vmcnt')
            VQ.q = vq
            LQ = Q(A, 'lgkmcnt')
            LQ.q = lq
            body(j, VQ, LQ, j, 0)
            if late is not None and j >= late:
                A('s_waitcnt vmcnt(0)')
                publish(S_FLG, S_U)
            else:
                strict(VQ, 'dma')
                A('s_mov_b32 %s, 1' % S_PUB)
            A('s_branch %s_L' % name)
        A.label(name + '_E')
        G.ts()

    def red(r, t):
        A('v_add_f32_dpp v%d, v%d, v%d row_ror:8 row_mask:0xf bank_mask:0xf' % (r, r, r))
        A('v_mov_b32 v%d, v%d' % (t, r))
        A('v_permlane16_swap_b32 v%d, v%d' % (r, t))
        A('v_add_f32 v%d, v%d, v%d' % (r, r, t))
        A('v_mov_b32 v%d, v%d' % (t, r))
        A('v_permlane32_swap_b32 v%d, v%d' % (r, t))
        A('v_add_f32 v%d, v%d, v%d' % (r, r, t))

    def oct_lanes(vrow, vfrag, vhalf=None):
        A('v_and_b32 v7, 7, v1')
        A('v_bfe_u32 v6, v1, 3, 1')
        A('v_lshrrev_b32 v5, 4, v1')
        A('v_mul_u32_u24 %s, 1152, v7' % vrow)
        A('v_lshl_add_u32 %s, v6, 6, %s' % (vrow, vrow))
        A('v_lshl_add_u32 %s, v5, 4, %s' % (vrow, vrow))
        A('v_lshl_add_u32 v7, v5, 4, v7')
        A('v_lshlrev_b32 v6, 10, v6')
        A('v_lshl_add_u32 %s, v7, 4, v6' % vfrag)
        if vhalf:
            A('v_lshl_add_u32 %s, v7, 3, v6' % vhalf)

    def ln1():
        G.srd(20, G.P_X, 2048 * 1152)
        oct_lanes('v3', 'v4')
        A('s_lshl_b32 s36, s35, 2')
        A('s_add_u32 s36, s36, %s' % S_W)
        A('s_mul_i32 s32, s36, %d' % (8 * 1152))
        A('s_lshr_b32 s33, s36, 1')
        A('s_mul_i32 s33, s33, 18432')
        A('s_and_b32 s34, %s, 1' % S_W)
        A('s_lshl_b32 s34, s34, 7')
        A('s_add_u32 s33, s33, s34')
        A('s_add_u32 s33, s33, 0x%x' % W_XN)
        X, F = 16, 52
        for i in range(9):
            A('buffer_load_dwordx4 %s, v3, s[20:23], s32 offen offset:%d' % (vr(X + 4 * i, 4), i * 128))
        for i in range(9):
            A('s_waitcnt vmcnt(%d)' % (8 - i))
            for j in range(4):
                r = X + 4 * i + j
                A('v_lshlrev_b32 v%d, 16, v%d' % (F + 2 * (4 * i + j), r))
                A('v_and_b32 v%d, 0xffff0000, v%d' % (F + 2 * (4 * i + j) + 1, r))
            for j in range(4):
                p = F + 2 * (4 * i + j)
                acc = 8 + 2 * (j & 1)
                if i == 0 and j < 2:
                    A('v_pk_add_f32 %s, %s, %s' % (vr(acc, 2), vr(p, 2), vr(p + 4, 2)))
                elif i > 0:
                    A('v_pk_add_f32 %s, %s, %s' % (vr(acc, 2), vr(acc, 2), vr(p, 2)))
        A('v_pk_add_f32 v[8:9], v[8:9], v[10:11]')
        A('v_add_f32 v8, v8, v9')
        red(8, 9)
        A('v_mul_f32 v12, %s, v8' % G.fbits(-1.0 / 576))
        A('v_mov_b32 v13, v12')
        for i in range(36):
            p = F + 2 * i
            A('v_pk_add_f32 %s, %s, v[12:13]' % (vr(p, 2), vr(p, 2)))
        for i in range(36):
            p = F + 2 * i
            acc = 8 + 2 * (i & 1)
            if i < 2:
                A('v_pk_mul_f32 %s, %s, %s' % (vr(acc, 2), vr(p, 2), vr(p, 2)))
            else:
                A('v_pk_fma_f32 %s, %s, %s, %s' % (vr(acc, 2), vr(p, 2), vr(p, 2), vr(acc, 2)))
        A('v_pk_add_f32 v[8:9], v[8:9], v[10:11]')
        A('v_add_f32 v8, v8, v9')
        red(8, 9)
        A('v_mov_b32 v9, %s' % G.fbits(1e-5))
        A('v_fmac_f32 v9, %s, v8' % G.fbits(1.0 / 576))
        A('v_rsq_f32 v12, v9')
        A('v_mov_b32 v13, v12')
        for i in range(9):
            for j in range(4):
                p = F + 2 * (4 * i + j)
                A('v_pk_mul_f32 %s, %s, v[12:13]' % (vr(p, 2), vr(p, 2)))
            for j in range(4):
                cvt(X + 4 * i + j, F + 2 * (4 * i + j))
            if i and i % 2 == 0:
                A('s_add_u32 s33, s33, 4096')
            A('buffer_store_dwordx4 %s, v4, %s, s33 offen offset:%d sc1' % (vr(X + 4 * i, 4), WS, (i & 1) * 2048))
        G.wait_ready('v6', 'v7')
        A('s_add_u32 s36, s36, %d' % F_XN)
        A('s_lshl_b32 s36, s36, 7')
        publish('s36', '1')
        G.ts()

    ID, RA, RB = 10, 12, 40

    def ident():
        A('v_and_b32 v7, 15, v1')
        A('v_lshrrev_b32 v6, 4, v1')
        A('v_lshlrev_b32 v6, 2, v6')
        A('v_sub_u32 v7, v7, v6')
        A('v_mov_b32 v5, 0x3f80')
        A('v_mov_b32 v6, 0x3f800000')
        for i in range(2):
            A('v_mov_b32 v%d, 0' % (ID + i))
            A('v_cmp_eq_u32 vcc, %d, v7' % (2 * i))
            A('v_cndmask_b32 v%d, v%d, v5, vcc' % (ID + i, ID + i))
            A('v_cmp_eq_u32 vcc, %d, v7' % (2 * i + 1))
            A('v_cndmask_b32 v%d, v%d, v6, vcc' % (ID + i, ID + i))

    def part_loads(VQ, np_, sbase):
        for n in range(np_):
            r = RB + 12 * (n + 1)
            if n:
                A('s_add_u32 %s, %s, 18432' % (sbase, sbase))
            for p in range(2):
                VQ.op((n + 1, p), 'buffer_load_dwordx4 %s, v8, %s, %s offen offset:%d sc1' % (vr(r + 4 * p, 4), WS, sbase, p * 2048))
            for i in range(2):
                VQ.op((n + 1, 2), 'buffer_load_dwordx2 %s, v9, %s, %s offen offset:%d sc1' % (vr(r + 8 + 2 * i, 2), WS, sbase, i * 512))

    def part_sum(VQ, np_):
        for n in range(np_ + 1):
            for p in range(3):
                VQ.wait((n, p))
                for i in range(2):
                    d = vr(RA + 8 * p + 4 * i, 4)
                    A('%s %s, %s, %s, %s' % (M16, d, vr(ID, 2), vr(RB + 12 * n + 4 * p + 2 * i, 2), '0' if n == 0 else d))

    def role_ln2():
        A('s_cmp_eq_u32 %s, 3' % S_W)
        A('s_cbranch_scc1 EXIT')
        G.srd(20, G.P_X, 2048 * 1152)
        ident()
        oct_lanes('v3', 'v8', 'v9')
        A('s_lshr_b32 s40, s35, 2')
        A('s_and_b32 s36, s35, 3')
        A('s_lshr_b32 s37, s36, 1')
        A('s_and_b32 s38, s36, 1')
        A('s_mul_i32 s32, s36, %d' % (8 * 1152))
        A('s_mul_i32 s33, %s, 384' % S_W)
        A('s_add_u32 s32, s32, s33')
        A('v_add_u32 v3, s32, v3')
        A('s_mul_i32 s33, %s, 6144' % S_W)
        A('s_lshl_b32 s34, s38, 7')
        A('s_add_u32 s34, s34, s33')
        A('v_add_u32 v8, s34, v8')
        A('s_lshl_b32 s34, s38, 6')
        A('s_add_u32 s34, s34, s33')
        A('s_add_u32 s34, s34, 4096')
        A('v_add_u32 v9, s34, v9')
        A('s_lshl_b32 s34, s37, 2')
        A('s_add_u32 s34, s34, %s' % S_W)
        A('s_lshl_b32 s34, s34, 4')
        A('s_add_u32 s34, s34, %d' % F_WO)
        A('v_min_u32 v4, 15, v1')
        A('v_add_u32 v4, s34, v4')
        A('v_lshlrev_b32 v4, 7, v4')
        A('s_lshl_b32 s45, s40, 1')
        A('s_add_u32 s45, s45, s38')
        A('s_mul_i32 s45, s45, 3')
        A('s_add_u32 s45, s45, %s' % S_W)
        A('s_lshl_b32 s34, s37, 5')
        A('s_add_u32 s45, s45, s34')
        A('s_add_u32 s45, s45, %d' % F_LN2)
        A('s_lshl_b32 s45, s45, 7')
        A('v_and_b32 v0, 7, v1')
        A('v_lshlrev_b32 v0, 3, v0')
        A('s_lshl_b32 s34, %s, 6' % S_W)
        A('s_mul_i32 s41, s37, %d' % (NPW * 18432))
        A('s_add_u32 s41, s41, 0x%x' % W_PW)
        A('s_mul_i32 s42, s37, 18432')
        G.wait_ready('v6', 'v7')
        A('v_add_u32 v6, s34, v0')
        A.label('LN2_L')
        VQ = Q(A, 'vmcnt')
        A('s_mul_i32 s43, s40, %d' % SEG_XN)
        for p in range(3):
            A('buffer_load_dwordx4 %s, v3, s[20:23], s43 offen offset:%d' % (vr(RB + 4 * p, 4), p * 128))
        A('s_mul_i32 s44, s40, %d' % SEG_PW)
        A('s_add_u32 s44, s44, s41')
        A('s_add_u32 s48, s40, 1')
        G.spin('v4', 'v5', 's48', 21)
        G.ts()
        part_loads(VQ, NPW, 's44')
        part_sum(VQ, NPW)
        A('s_add_u32 s43, s43, s42')
        A('s_add_u32 s44, s43, 0x%x' % W_HB)
        A('s_add_u32 s43, s43, 0x%x' % W_HN)
        A('s_add_u32 s46, s44, 4096')
        A('s_add_u32 s47, s43, 4096')
        t = RB + 12
        for i in range(3):
            A('v_pk_add_f32 %s, %s, %s' % (vr(t + 2 * i, 2), vr(RA + 2 * i, 2), vr(RA + 6 + 2 * i, 2)))
        for i in range(6):
            A('v_pk_add_f32 %s, %s, %s' % (vr(t + 2 * (i % 3), 2), vr(t + 2 * (i % 3), 2), vr(RA + 12 + 2 * i, 2)))
        A('v_pk_add_f32 %s, %s, %s' % (vr(t, 2), vr(t, 2), vr(t + 2, 2)))
        A('v_pk_add_f32 %s, %s, %s' % (vr(t, 2), vr(t, 2), vr(t + 4, 2)))
        A('v_add_f32 v%d, v%d, v%d' % (t, t, t + 1))
        for i in range(12):
            cvt(RB + i, RA + 2 * i)
        red(t, t + 1)
        A('v_mul_f32 v%d, %s, v%d' % (t + 8, G.fbits(1.0 / 192), t))
        A('v_mul_f32 v%d, %s, v%d' % (t + 6, G.fbits(-1.0 / 192), t))
        A('v_mov_b32 v%d, v%d' % (t + 7, t + 6))
        for i in range(12):
            A('v_pk_add_f32 %s, %s, %s' % (vr(RA + 2 * i, 2), vr(RA + 2 * i, 2), vr(t + 6, 2)))
        for i in range(12):
            a = vr(t + 2 * (i % 3), 2)
            p = vr(RA + 2 * i, 2)
            if i < 3:
                A('v_pk_mul_f32 %s, %s, %s' % (a, p, p))
            else:
                A('v_pk_fma_f32 %s, %s, %s, %s' % (a, p, p, a))
        A('v_pk_add_f32 %s, %s, %s' % (vr(t, 2), vr(t, 2), vr(t + 2, 2)))
        A('v_pk_add_f32 %s, %s, %s' % (vr(t, 2), vr(t, 2), vr(t + 4, 2)))
        A('v_add_f32 v%d, v%d, v%d' % (t + 9, t, t + 1))
        red(t + 9, t + 1)
        A('ds_write_b64 v6, %s' % vr(t + 8, 2))
        for p in range(3):
            A('buffer_store_dwordx4 %s, v8, %s, %s offen offset:%d sc1' % (vr(RB + 4 * p, 4), WS, 's44' if p < 2 else 's46', (p & 1) * 2048))
        A('s_waitcnt lgkmcnt(0)')
        A('s_barrier')
        for j in range(3):
            A('ds_read_b64 %s, v0 offset:%d' % (vr(t + 2 * j, 2), j * 64))
        A('v_xor_b32 v0, 256, v0')
        A('v_xor_b32 v6, 256, v6')
        A('s_waitcnt lgkmcnt(0)')
        m, v = t + 10, t + 11
        A('v_add_f32 v%d, v%d, v%d' % (m, t, t + 2))
        A('v_add_f32 v%d, v%d, v%d' % (v, t + 1, t + 3))
        A('v_add_f32 v%d, v%d, v%d' % (m, m, t + 4))
        A('v_add_f32 v%d, v%d, v%d' % (v, v, t + 5))
        A('v_mul_f32 v%d, %s, v%d' % (m, G.fbits(1.0 / 3), m))
        A('v_mul_f32 v%d, %s, v%d' % (v, G.fbits(1.0 / 192), v))
        for j in range(3):
            A('v_sub_f32 v%d, v%d, v%d' % (t + 2 * j, t + 2 * j, m))
        for j in range(3):
            A('v_fmac_f32 v%d, v%d, v%d' % (v, t + 2 * j, t + 2 * j))
        A('v_mov_b32 v%d, %s' % (t, G.fbits(1e-5)))
        A('v_fmac_f32 v%d, %s, v%d' % (t, G.fbits(1.0 / 3), v))
        A('v_rsq_f32 v%d, v%d' % (t, t))
        A('v_sub_f32 v%d, v%d, v%d' % (t + 2, t + 8, m))
        A('v_mov_b32 v%d, v%d' % (t + 1, t))
        A('v_mul_f32 v%d, v%d, v%d' % (t + 2, t + 2, t))
        A('v_mov_b32 v%d, v%d' % (t + 3, t + 2))
        H = RB + 24
        for p in range(3):
            for i in range(4):
                a = vr(RA + 8 * p + 2 * i, 2)
                A('v_pk_fma_f32 %s, %s, %s, %s' % (a, a, vr(t, 2), vr(t + 2, 2)))
            for i in range(4):
                cvt(H + 4 * p + i, RA + 8 * p + 2 * i)
            A('buffer_store_dwordx4 %s, v8, %s, %s offen offset:%d sc1' % (vr(H + 4 * p, 4), WS, 's43' if p < 2 else 's47', (p & 1) * 2048))
        A('s_add_u32 s40, s40, 2')
        A('s_waitcnt vmcnt(0)')
        publish('s45', 's40')
        G.ts()
        A('s_cmp_lt_u32 s40, 64')
        A('s_cbranch_scc1 LN2_L')

    def role_fin():
        G.srd(20, G.P_OUT, 2048 * 1152)
        ident()
        oct_lanes('v3', 'v0', 'v4')
        A('v_add_u32 v36, 4096, v4')
        A('v_min_u32 v4, 15, v1')
        A('v_lshlrev_b32 v4, 7, v4')
        A.label('FIN_L')
        A('s_mul_i32 s40, s35, 43691')
        A('s_lshr_b32 s40, s40, 19')
        A('s_mul_i32 s36, s40, 12')
        A('s_sub_u32 s36, s35, s36')
        A('s_and_b32 s37, s36, 3')
        A('s_lshr_b32 s36, s36, 2')
        A('s_lshr_b32 s38, s37, 1')
        A('s_and_b32 s39, s37, 1')
        A('s_mul_i32 s33, s36, 6144')
        A('s_lshl_b32 s34, s39, 7')
        A('s_add_u32 s34, s34, s33')
        A('v_add_u32 v8, s34, v0')
        A('s_lshl_b32 s34, s39, 6')
        A('s_add_u32 s34, s34, s33')
        A('v_add_u32 v9, s34, v36')
        A('s_lshl_b32 s34, s38, 2')
        A('s_add_u32 s34, s34, s36')
        A('s_lshl_b32 s34, s34, 11')
        A('s_add_u32 s34, s34, %d' % (F_F2 * 128))
        A('s_lshl_b32 s41, s40, 1')
        A('s_add_u32 s41, s41, s38')
        A('s_mul_i32 s43, s41, 18432')
        A('s_add_u32 s43, s43, 0x%x' % W_HB)
        A('s_add_u32 s46, s43, 4096')
        A('s_mul_i32 s44, s41, %d' % (NPF * 18432))
        A('s_add_u32 s44, s44, 0x%x' % W_PF)
        A('s_add_u32 s48, s40, 1')
        G.spin('v4', 'v5', 's48', 22, WS, 's34')
        G.ts()
        VQ = Q(A, 'vmcnt')
        for p in range(3):
            VQ.op((0, p), 'buffer_load_dwordx4 %s, v8, %s, %s offen offset:%d sc1' % (vr(RB + 4 * p, 4), WS, 's43' if p < 2 else 's46', (p & 1) * 2048))
        part_loads(VQ, NPF, 's44')
        A('s_lshl_b32 s41, s40, 2')
        A('s_add_u32 s41, s41, s37')
        A('s_mul_i32 s41, s41, %d' % (8 * 1152))
        A('s_mul_i32 s33, s36, 384')
        A('s_add_u32 s41, s41, s33')
        part_sum(VQ, NPF)
        for p in range(3):
            for i in range(4):
                cvt(RB + 4 * p + i, RA + 8 * p + 2 * i)
            A('buffer_store_dwordx4 %s, v3, s[20:23], s41 offen offset:%d' % (vr(RB + 4 * p, 4), p * 128))
        A('s_add_u32 s35, s35, 256')
        A('s_cmp_lt_u32 s35, 768')
        A('s_cbranch_scc1 FIN_L')

    def role_qkv():
        G.srd(12, G.P_WQ, 576 * 8192)
        G.srd(16, G.P_WK, 576 * 8192)
        G.srd(20, G.P_WV, 576 * 8192)
        w_lane(8192, 'N', 'D')
        A('s_lshl_b32 s34, s36, 2')
        A('s_add_u32 s34, s34, %s' % S_W)
        A('s_lshl_b32 s33, s34, 6')
        A('v_add_u32 v8, s33, v8')
        units = []
        for k in range(18):
            for m in range(3):
                units.append((sr(12 + 4 * m, 4), 'v8', 0, k, [(k * 6 + 2 * m + t, 'v10', 32 * t) for t in range(2)]))
        load_weights(units, 108, 8192, 'N')
        G.ts()
        G.wait_ready('v6', 'v7')
        A('v_lshlrev_b32 v4, 7, v1')
        for i in range(4):
            A('s_mov_b32 s48, %d' % (F_XN * 128 + i * 8192))
            G.spin('v4', 'v5', '1', 23, WS, 's48')
        A('s_mov_b32 %s, s37' % S_U)
        A('s_mul_i32 %s, s37, %d' % (S_DST, SEG_QKV))
        A('s_lshl_b32 s33, s36, 21')
        A('s_add_u32 %s, %s, s33' % (S_DST, S_DST))
        A('s_lshl_b32 s50, %s, 11' % S_W)
        A('s_add_u32 %s, %s, s50' % (S_DST, S_DST))
        A('s_add_u32 %s, %s, 0x%x' % (S_DST, S_DST, W_QKV))
        A('s_add_u32 s50, s50, 8192')
        A('s_mul_i32 %s, s37, %d' % (S_SRC, SEG_XN))
        A('s_mul_i32 s33, %s, 9216' % S_W)
        A('s_add_u32 %s, %s, s33' % (S_SRC, S_SRC))
        A('s_add_u32 %s, %s, 0x%x' % (S_SRC, S_SRC, W_XN))
        A('s_lshl_b32 s35, s36, 1')
        A('s_add_u32 s35, s35, s37')
        A('s_lshl_b32 s35, s35, 2')
        A('s_add_u32 s35, s35, %s' % S_W)
        A('s_lshr_b32 %s, s35, 2' % S_FLG)
        A('s_add_u32 %s, %s, %d' % (S_FLG, S_FLG, F_QKV))
        A('s_lshl_b32 %s, %s, 5' % (S_FLG, S_FLG))
        A('s_add_u32 %s, %s, %s' % (S_FLG, S_FLG, S_W))
        A('s_lshl_b32 %s, %s, 2' % (S_FLG, S_FLG))
        a, b = 8, 32
        A('s_mov_b32 s52, %s' % G.fbits(G.LOG2E / math.sqrt(128.0)))
        A('s_mov_b32 s53, s52')

        def scale(r, n):
            for i in range(r, r + n, 2):
                A('v_pk_mul_f32 %s, %s, s[52:53]' % (vr(i, 2), vr(i, 2)))

        def st(VQ, r, so, off):
            VQ.op('st', 'buffer_store_dwordx4 %s, v0, %s, %s offen offset:%d sc1' % (vr(r, 4), WS, so, off))

        def mid(j, VQ):
            if j == 19:
                return [lambda: [cvt(a + i, a + 2 * i) for i in range(2)], lambda: [cvt(a + i, a + 2 * i) for i in range(2, 4)],
                        lambda: st(VQ, a, S_DST, 0), lambda: A('s_add_u32 s49, %s, s50' % S_DST)]
            if j == 20:
                return [lambda: scale(a + 8, 4), lambda: scale(a + 12, 4)]
            if j == 21:
                return [lambda: [cvt(a + 8 + i, a + 8 + 2 * i) for i in range(2)], lambda: [cvt(a + 8 + i, a + 8 + 2 * i) for i in range(2, 4)],
                        lambda: st(VQ, a + 8, 's49', 0)]
            if j == 22:
                return [lambda: [cvt(a + 16 + i, a + 16 + 2 * i) for i in range(2)], lambda: [cvt(a + 20 + i, a + 20 + 2 * i) for i in range(2)]]
            return []

        def epi(VQ):
            for m, so in ((0, S_DST), (8, 's49')):
                if m:
                    scale(b + m, 8)
                for i in range(4):
                    cvt(b + m + i, b + m + 2 * i)
                st(VQ, b + m, so, 1024)
            for t in range(2):
                for i in range(2):
                    cvt(a + 18 + 4 * t + i, b + 16 + 4 * t + 2 * i)
                st(VQ, a + 16 + 4 * t, 's49', 2048 + 1024 * t)
        gemm('QKV', 18, 6, 2, 9, 9216, 65536, 2, 2 * SEG_XN, 2 * SEG_QKV, [], 7, 6, 4, (4, 5), epi, mid)

    def role_f1():
        A('s_lshl_b32 s35, s36, 1')
        A('s_add_u32 s35, s35, s37')
        A('s_mov_b32 s38, s36')
        A('s_cmp_ge_u32 s35, 64')
        A('s_cbranch_scc1 F1_NL')
        ln1()
        A.label('F1_NL')
        G.srd(12, G.P_WG, 576 * 9216)
        G.srd(16, G.P_WU, 576 * 9216)
        w_lane(9216, 'N', 'N')
        A('s_lshl_b32 s34, s38, 2')
        A('s_add_u32 s34, s34, %s' % S_W)
        A('s_lshl_b32 s33, s34, 6')
        A('v_add_u32 v8, s33, v8')
        units = []
        for k in range(18):
            for m in range(2):
                units.append((sr(12 + 4 * m, 4), 'v8', 0, k, [(k * 4 + 2 * m + t, 'v10', 8 * t) for t in range(2)]))
        load_weights(units, 72, 9216, 'N')
        G.ts()
        G.wait_ready('v6', 'v7')
        A('s_mov_b32 %s, 0' % S_U)
        A('s_mul_i32 %s, s37, 144' % S_DST)
        A('s_add_u32 %s, %s, s34' % (S_DST, S_DST))
        A('s_lshl_b32 %s, %s, 10' % (S_DST, S_DST))
        A('s_add_u32 %s, %s, 0x%x' % (S_DST, S_DST, W_ACT))
        A('s_mul_i32 %s, s37, 18432' % S_SRC)
        A('s_mul_i32 s33, %s, 4480' % S_W)
        A('s_add_u32 %s, %s, s33' % (S_SRC, S_SRC))
        A('s_add_u32 %s, %s, 0x%x' % (S_SRC, S_SRC, W_HN))
        A('s_mul_i32 %s, s37, 160' % S_FLG)
        A('s_add_u32 %s, %s, s34' % (S_FLG, S_FLG))
        A('s_add_u32 %s, %s, %d' % (S_FLG, S_FLG, F_F1))
        A('s_lshl_b32 %s, %s, 7' % (S_FLG, S_FLG))
        A('s_lshl_b32 s33, s37, 5')
        A('s_add_u32 s33, s33, %d' % F_LN2)
        A('v_min_u32 v4, 11, v1')
        A('v_add_u32 v4, s33, v4')
        A('v_lshlrev_b32 v4, 7, v4')
        A('s_mov_b32 s50, %s' % G.fbits(-G.LOG2E))

        def epi(VQ):
            g, u, t = 8, 16, 60
            for i in range(8):
                A('v_mul_f32 v%d, s50, v%d' % (t + i, g + i))
            for i in range(8):
                A('v_exp_f32 v%d, v%d' % (t + i, t + i))
            for i in range(8):
                A('v_add_f32 v%d, 1.0, v%d' % (t + i, t + i))
            for i in range(8):
                A('v_rcp_f32 v%d, v%d' % (t + i, t + i))
            for i in range(4):
                A('v_pk_mul_f32 %s, %s, %s' % (vr(g + 2 * i, 2), vr(g + 2 * i, 2), vr(u + 2 * i, 2)))
            for i in range(4):
                A('v_pk_mul_f32 %s, %s, %s' % (vr(g + 2 * i, 2), vr(g + 2 * i, 2), vr(t + 2 * i, 2)))
            for i in range(4):
                cvt(t + 8 + i, g + 2 * i)
            VQ.op('st', 'buffer_store_dwordx4 %s, v0, %s, %s offen sc1' % (vr(t + 8, 4), WS, S_DST))
        gemm('F1', 18, 4, 1, 5, 4480, 32768, 1, SEG_XN, SEG_ACT, [0, 5, 10, 14], 8, 8, 5, (), epi, late=10)

    def role_part(name):
        wo = name == 'WO'
        KS, NP = (32, NPW) if wo else (36, NPF)
        G.srd(12, G.P_WO if wo else G.P_WD, NP * KS * 32 * 1152)
        krow = 'D' if wo else 'N'
        w_lane(1152, krow, 'N')
        A('s_mul_i32 s33, s36, %d' % (KS * 32 * 1152))
        A('s_mul_i32 s34, s38, 384')
        A('s_add_u32 s33, s33, s34')
        A('s_lshr_b32 s34, %s, 1' % S_W)
        A('s_lshl_b32 s34, s34, 6')
        A('s_add_u32 s34, s34, s33')
        A('v_add_u32 v9, s34, v8')
        A('s_lshl_b32 s34, %s, 6' % S_W)
        A('s_add_u32 s34, s34, s33')
        A('v_add_u32 v8, s34, v8')
        A('s_and_b32 s34, %s, 1' % S_W)
        A('s_lshl_b32 s34, s34, 3')
        A('v_add_u32 v11, s34, v10')
        units = []
        for k in range(KS):
            units.append(('s[12:15]', 'v8', 0, k, [(k * 3 + t, 'v10', 8 * t) for t in range(2)]))
            units.append(('s[12:15]', 'v9', 256, k, [(k * 3 + 2, 'v11', 0)]))
        load_weights(units, KS * 3, 1152, krow)
        G.ts()
        G.wait_ready('v6', 'v7')
        A('s_mov_b32 %s, 0' % S_U)
        A('s_mul_i32 s33, s37, %d' % NP)
        A('s_add_u32 s33, s33, s36')
        A('s_mul_i32 %s, s33, 18432' % S_DST)
        A('s_mul_i32 s34, s38, 6144')
        A('s_add_u32 %s, %s, s34' % (S_DST, S_DST))
        A('s_lshl_b32 s34, %s, 10' % S_W)
        A('s_add_u32 %s, %s, s34' % (S_DST, S_DST))
        A('s_add_u32 %s, %s, 0x%x' % (S_DST, S_DST, W_PW if wo else W_PF))
        A('s_lshl_b32 s34, %s, 9' % S_W)
        A('s_sub_u32 s34, 4096, s34')
        A('v_lshlrev_b32 v6, 3, v1')
        A('v_add_u32 v6, s34, v6')
        A('s_lshl_b32 s33, s33, 2')
        A('s_add_u32 s33, s33, %s' % S_W)
        A('s_mul_i32 %s, s33, %d' % (S_SRC, KS * 256))
        A('s_add_u32 %s, %s, 0x%x' % (S_SRC, S_SRC, W_O if wo else W_ACT))
        A('s_lshl_b32 s33, s36, 2')
        A('s_add_u32 s33, s33, %s' % S_W)
        A('s_lshl_b32 s34, s37, 2')
        A('s_add_u32 s34, s34, s38')
        A('s_lshl_b32 s34, s34, 4')
        A('s_add_u32 %s, s34, s33' % S_FLG)
        A('s_add_u32 %s, %s, %d' % (S_FLG, S_FLG, F_WO if wo else F_F2))
        A('s_lshl_b32 %s, %s, 7' % (S_FLG, S_FLG))
        if wo:
            A('s_lshl_b32 s33, s33, 3')
            A('s_add_u32 s33, s33, %d' % F_ATT)
            A('v_min_u32 v4, 7, v1')
        else:
            A('s_mul_i32 s33, s33, 9')
            A('s_mul_i32 s34, s37, 160')
            A('s_add_u32 s33, s33, s34')
            A('s_add_u32 s33, s33, %d' % F_F1)
            A('v_min_u32 v4, 8, v1')
        A('v_add_u32 v4, s33, v4')
        A('v_lshlrev_b32 v4, 7, v4')

        def epi(VQ):
            for i in range(4):
                cvt(60 + i, 8 + 2 * i)
            VQ.op('st', 'buffer_store_dwordx4 v[60:63], v0, %s, %s offen sc1' % (WS, S_DST))
            for i in range(2):
                cvt(64 + i, 16 + 2 * i)
            VQ.op('st', 'buffer_store_dwordx2 v[64:65], v6, %s, %s offen sc1' % (WS, S_DST))
        if wo:
            gemm(name, 32, 3, 1, 8, 8192, 32768, 1, SEG_O, SEG_PW, [0, 8, 16, 24], 12, 8, 6, (), epi, late=16)
        else:
            gemm(name, 36, 3, 1, 9, 9216, 65536, 1, SEG_ACT, SEG_PF, [0, 9, 18, 27], 12, 8, 6, (), epi, late=18)

    def role_am():
        SMF = 'v_smfmac_f32_16x16x64_bf16'
        IDX, SEL, MX, LX = 6, 10, 12, 14
        QF, KF, VF, MF, SX, PB, O, KA, VA, KM, SM, PM, ST = 16, 48, 80, 88, 124, 136, 144, 160, 168, 176, 192, 200, 204
        L_QK, L_M, L_KM = 0, 16384, 24576

        def FR(n, sub=None):
            k, b = ('a', 8 * n) if n < 32 else ('v', 224 + 8 * (n - 32))
            return vr(b, 8, k) if sub is None else vr(b + 2 * sub, 2, k)
        G.srd(16, G.P_WK, 576 * 8192)
        G.srd(20, G.P_WV, 576 * 8192)
        A('v_lshlrev_b32 v0, 4, v1')
        A('s_lshl_b32 s36, s35, 2')
        A('s_add_u32 s36, s36, %s' % S_W)
        A('s_mul_i32 s30, %s, 36864' % S_W)
        A('v_lshrrev_b32 v7, 2, v1')
        A('v_and_b32 v5, 3, v1')
        A('v_lshlrev_b32 v8, 13, v7')
        A('v_lshl_add_u32 v8, v5, 4, v8')
        A('s_lshl_b32 s33, s36, 6')
        A('v_add_u32 v8, s33, v8')
        VQ = Q(A, 'vmcnt')

        def dma(n):
            for i in range(4):
                A('s_add_u32 m0, s30, %d' % ((n % 9) * 4096 + i * 1024))
                A('s_mov_b32 s31, %d' % ((64 * (n % 9) + 16 * i) * 8192))
                VQ.op(n, 'buffer_load_dwordx4 v8, %s, s31 offen lds' % ('s[16:19]', 's[20:23]')[n // 9])
        A('s_mov_b32 s51, 0x%x' % SENT)
        for i in range(4):
            A('v_mov_b32 v%d, s51' % (16 + i))
        A('s_mul_i32 s33, s36, 4608')
        A('s_add_u32 s33, s33, 0x%x' % W_ME)
        for o in (0, 1024, 2048, 3072, 3584):
            VQ.op('z', 'buffer_store_dwordx4 v[16:19], v0, %s, s33 offen offset:%d sc1' % (WS, o))
        for n in range(9):
            dma(n)
        A('v_lshrrev_b32 v3, 5, v1')
        A('v_bfe_u32 v4, v1, 4, 1')
        A('v_lshl_add_u32 v9, v3, 3, v4')
        A('v_and_b32 v7, 3, v7')
        A('v_lshl_add_u32 v9, v7, 1, v9')
        A('v_lshlrev_b32 v9, 7, v9')
        A('v_lshl_add_u32 v9, v5, 3, v9')
        A('v_add_u32 v9, s30, v9')
        VQ.wait('z')
        A('v_mov_b32 v3, 1')
        A('v_mov_b32 v7, %d' % (D_CBAR * 4))
        A('s_mov_b64 exec, 1')
        VQ.op('arr', 'buffer_atomic_add v3, v7, %s, 0 offen sc1' % G.DBG)
        A('s_mov_b64 exec, -1')
        for n in range(18):
            VQ.wait(n)
            for t in range(2):
                for z in range(2):
                    for u in range(2):
                        A('ds_read_b64_tr_b16 %s, v9 offset:%d' % (FR(2 * n + t, 2 * z + u), (n % 9) * 4096 + z * 2048 + u * 64 + t * 32))
            if n < 9:
                A('s_waitcnt lgkmcnt(0)')
                dma(n + 9)
        A('v_and_b32 v7, 8, v1')
        A('v_mov_b32 v%d, 0x4444' % IDX)
        A('v_mov_b32 v3, 0xeeee')
        A('v_cmp_ne_u32 vcc, 0, v7')
        A('v_cndmask_b32 v%d, v%d, v3, vcc' % (IDX, IDX))
        A('v_and_b32 v7, 7, v1')
        A('v_lshlrev_b32 v4, 2, v4')
        A('v_sub_u32 v7, v7, v4')
        A('v_mov_b32 v5, 0x3f80')
        A('v_mov_b32 v4, 0x3f800000')
        for i in range(2):
            A('v_mov_b32 v%d, 0' % (SEL + i))
            A('v_cmp_eq_u32 vcc, %d, v7' % (2 * i))
            A('v_cndmask_b32 v%d, v%d, v5, vcc' % (SEL + i, SEL + i))
            A('v_cmp_eq_u32 vcc, %d, v7' % (2 * i + 1))
            A('v_cndmask_b32 v%d, v%d, v4, vcc' % (SEL + i, SEL + i))
        A('v_and_b32 v7, 15, v1')
        A('v_lshrrev_b32 v5, 4, v1')
        A('v_lshlrev_b32 v5, 2, v5')
        A('v_sub_u32 v7, v7, v5')
        for r in range(4):
            A('v_cmp_le_i32 s[%d:%d], %d, v7' % (52 + 2 * r, 53 + 2 * r, r))
        A('v_mov_b32 v3, %s' % G.fbits(-1e9 * G.LOG2E))
        A('v_mov_b32 v%d, 0' % (PB + 2))
        A('v_mov_b32 v%d, 0' % (PB + 3))
        A('s_mov_b32 s50, %s' % G.fbits(G.LOG2E / math.sqrt(128.0)))
        A('s_add_u32 s45, s36, %d' % F_ATT)
        A('s_lshl_b32 s45, s45, 7')
        A('s_lshl_b32 s41, s35, 21')
        A('s_lshl_b32 s33, %s, 11' % S_W)
        A('s_add_u32 s41, s41, s33')
        A('s_add_u32 s41, s41, 0x%x' % W_QKV)
        A('s_add_u32 s46, s33, 8192')
        A('s_lshl_b32 s42, s36, 10')
        A('s_add_u32 s42, s42, 0x%x' % W_O)
        A('s_lshl_b32 s43, %s, 10' % S_W)
        A('v_add_u32 v8, s43, v0')
        A('s_mov_b32 s43, 0x%x' % W_ME)
        A('s_and_b32 s44, s35, 8')
        A('s_mul_i32 s44, s44, 3')
        A('s_add_u32 s44, s44, s35')
        A('s_and_b32 s44, s44, 0x27')
        A('s_lshl_b32 s33, %s, 3' % S_W)
        A('s_add_u32 s44, s44, s33')
        A('s_lshl_b32 s44, s44, 7')
        A('s_mov_b32 s40, 0')
        A('s_waitcnt lgkmcnt(0)')
        A('v_and_b32 v9, 0x300, v0')
        A('v_and_b32 v4, 7, v1')
        A('v_lshl_add_u32 v9, v4, 5, v9')
        A('v_and_b32 v4, 8, v1')
        A('v_lshl_add_u32 v9, v4, 1, v9')
        G.ts()
        G.wait_ready('v4', 'v5')
        A('v_and_b32 v4, 0x23, v1')
        A('v_lshlrev_b32 v4, 2, v4')
        A('s_lshl_b32 s33, s35, 8')
        A('s_add_u32 s33, s33, %d' % (F_QKV * 128))
        G.spin('v4', 'v5', '2', 24, WS, 's33')
        A('v_mov_b32 v4, s44')
        A('s_barrier')

        def loads():
            A('s_add_u32 s47, s41, s46')
            A('s_lshl_b32 m0, %s, 11' % S_W)
            for T in range(2):
                A('buffer_load_dwordx4 v0, %s, s41 offen offset:%d sc1 lds' % (WS, T * 1024))
            A('s_add_u32 m0, m0, 8192')
            for T in range(2):
                A('buffer_load_dwordx4 v0, %s, s47 offen offset:%d sc1 lds' % (WS, T * 1024))
            for t in range(2):
                A('buffer_load_dwordx4 %s, v0, %s, s47 offen offset:%d sc1' % (vr(VF + 4 * t, 4), WS, 2048 + t * 1024))
            A('s_add_u32 s41, s41, %d' % SEG_QKV)

        def xred(r, t, op, sw):
            return ['v_mov_b32 v%d, v%d' % (t, r), 'v_permlane%d_swap_b32 v%d, v%d' % (sw, r, t), '%s v%d, v%d, v%d' % (op, r, r, t)]

        def both(f):
            for x in zip(f(0), f(1)):
                for y in x:
                    A(y)
        def poll():
            A('v_mov_b32 v5, 0')
            A('s_mov_b64 exec, 1')
            A('buffer_atomic_or v5, v4, %s, s43 offen sc0 sc1' % WS)
            A('s_mov_b64 exec, -1')

        def mloads():
            A('s_lshl_b32 s47, %s, 10' % S_W)
            A('s_add_u32 s47, s47, s43')
            A('s_add_u32 s48, s47, 4096')
            A('buffer_load_dwordx4 %s, v9, %s, s47 offen sc1' % (vr(MF, 4), WS))
            A('s_add_u32 s47, s43, 8192')
            A('buffer_load_dwordx4 %s, v9, %s, s48 offen sc1' % (vr(MF + 4, 4), WS))
            A('buffer_load_dwordx4 %s, v9, %s, s47 offen sc1' % (vr(MF + 32, 4), WS))

        def bound():
            A('s_add_u32 s27, s27, 1')
            A('s_cmp_ge_u32 s27, %d' % G.SPIN_MAX)
            A('s_cbranch_scc1 FAIL')
        loads()
        poll()
        A('s_waitcnt vmcnt(0)')
        A.label('AM_L')
        A('v_readfirstlane_b32 s49, v5')
        A('s_cmp_ge_u32 s40, %d' % OPT['amd'])
        A('s_cselect_b32 s49, 0, s49')
        A('s_cmp_eq_u32 s49, s51')
        A('s_cbranch_scc1 AM_N')
        mloads()
        A('s_branch AM_B')
        A.label('AM_N')
        poll()
        A.label('AM_B')
        A('s_barrier')
        LQ = Q(A, 'lgkmcnt')
        for w in range(4):
            for b, o in ((KF, 8192), (QF, 0)):
                for T in range(2):
                    LQ.op(w, 'ds_read_b128 %s, v0 offset:%d' % (vr(b + 8 * w + 4 * T, 4), L_QK + o + 2048 * w + 1024 * T))
            if w == 2:
                LQ.wait(0)
        for w in range(4):
            LQ.wait(w)
            for i, (tk, tq) in enumerate(((0, 0), (0, 1), (1, 1))):
                d = vr(SX + 4 * i, 4)
                A('%s %s, %s, %s, %s' % (M32, d, vr(KF + 8 * w + 4 * tk, 4), vr(QF + 8 * w + 4 * tq, 4), '0' if w == 0 else d))
        for r in range(KA, KA + 16, 2):
            A('v_mov_b64 %s, 0' % vr(r, 2))
        for b in (SX, SX + 8):
            for r in range(4):
                A('v_cndmask_b32 v%d, v3, v%d, s[%d:%d]' % (b + r, b + r, 52 + 2 * r, 53 + 2 * r))
        A('v_max3_f32 v%d, v%d, v%d, v%d' % (MX, SX, SX + 1, SX + 2))
        A('v_max3_f32 v%d, v%d, v%d, v%d' % (MX + 1, SX + 4, SX + 5, SX + 6))
        A('v_max_f32 v%d, v%d, v%d' % (MX, MX, SX + 3))
        A('v_max3_f32 v%d, v%d, v%d, v%d' % (MX + 1, MX + 1, SX + 7, SX + 8))
        A('v_max3_f32 v%d, v%d, v%d, v%d' % (MX + 1, MX + 1, SX + 9, SX + 10))
        A('v_max_f32 v%d, v%d, v%d' % (MX + 1, MX + 1, SX + 11))
        both(lambda T: xred(MX + T, LX + T, 'v_max_f32', 16) + xred(MX + T, LX + T, 'v_max_f32', 32))
        grp = [list(range(SX, SX + 4)), list(range(SX + 4, SX + 12))]
        for T in range(2):
            for r in grp[T]:
                A('v_sub_f32 v%d, v%d, v%d' % (r, r, MX + T))
        for T in range(2):
            for r in grp[T]:
                A('v_exp_f32 v%d, v%d' % (r, r))
        for T in range(2):
            for i in range(len(grp[T]) // 2):
                cvt(PB + 4 * T + i, grp[T][2 * i])
        for T in range(2):
            for t in range(2):
                A('%s %s, %s, %s, 0' % (M32, vr(O + 8 * T + 4 * t, 4), vr(VF + 4 * t, 4), vr(PB + 4 * T, 4)))
        A('v_pk_add_f32 %s, %s, %s' % (vr(SX, 2), vr(SX, 2), vr(SX + 2, 2)))
        for i in range(1, 4):
            A('v_pk_add_f32 %s, %s, %s' % (vr(SX + 4, 2), vr(SX + 4, 2), vr(SX + 4 + 2 * i, 2)))
        for T in range(2):
            A('v_add_f32 v%d, v%d, v%d' % (LX + T, SX + 4 * T, SX + 4 * T + 1))
        both(lambda T: xred(LX + T, SX + T, 'v_add_f32', 16) + xred(LX + T, SX + T, 'v_add_f32', 32))
        A('s_mov_b32 s27, 0')
        A('s_cmp_eq_u32 s49, s51')
        A('s_cbranch_scc1 AM_P')
        A('s_waitcnt vmcnt(3)')
        publish('s45', 's40')
        A('s_branch AM_C')
        A.label('AM_P')
        A('s_waitcnt vmcnt(0)')
        A('v_readfirstlane_b32 s49, v5')
        A('s_cmp_eq_u32 s49, s51')
        A('s_cbranch_scc1 AM_Q')
        mloads()
        publish('s45', 's40')
        A('s_branch AM_C')
        A.label('AM_Q')
        poll()
        publish('s45', 's40')
        A('s_waitcnt vmcnt(1)')
        A.label('AM_R')
        A('v_readfirstlane_b32 s49, v5')
        A('s_cmp_lg_u32 s49, s51')
        A('s_cbranch_scc1 AM_M')
        poll()
        bound()
        A('s_waitcnt vmcnt(0)')
        A('s_branch AM_R')
        A.label('AM_M')
        mloads()
        bound()
        A('s_waitcnt vmcnt(0)')
        A.label('AM_C')
        G.ts()
        for i, r in enumerate((MF, MF + 4, MF + 32)):
            A('s_waitcnt vmcnt(%d)' % (3 - i))
            if i < 2:
                A('ds_write_b128 v8, %s offset:%d' % (vr(r, 4), L_M + 4096 * i))
            for j in range(4):
                A('v_cmp_eq_u32 %s, s51, v%d' % ('vcc' if i + j == 0 else 's[38:39]', r + j))
                if i + j:
                    A('s_or_b64 vcc, vcc, s[38:39]')
        A('s_cbranch_vccnz AM_M')
        A('s_waitcnt lgkmcnt(0)')
        A('s_barrier')
        LQ = Q(A, 'lgkmcnt')
        for f in range(8):
            LQ.op(f, 'ds_read_b128 %s, v0 offset:%d' % (vr(MF + 4 * f, 4), L_M + 1024 * f))
        A('s_add_u32 s40, s40, 1')
        loads()
        A('s_add_u32 s43, s43, %d' % SEG_ME)
        poll()

        def smf(kind, f, t):
            LQ.wait(f)
            A('%s %s, %s, %s, v%d' % (SMF, vr((KA, VA)[kind] + 4 * t, 4), vr(MF + 4 * f, 4), FR(18 * kind + 2 * f + t), IDX))
        for f in (8, 0, 1, 2, 3, 4, 5, 6, 7):
            for t in range(2):
                smf(0, f, t)
        vs = [(f, t) for f in range(9) for t in range(2)]

        def V(n):
            for i in range(n):
                smf(1, *vs.pop(0))
        V(2)
        for t in range(2):
            cvt(KA + 4 * t, KA + 4 * t)
            cvt(KA + 4 * t + 1, KA + 4 * t + 2)
            A('%s %s, %s, %s, 0' % (M16, vr(KM + 4 * t, 4), vr(KA + 4 * t, 2), vr(SEL, 2)))
        V(2)
        for i in range(4):
            cvt(KM + i, KM + 2 * i)
        A('ds_write_b128 v8, %s offset:%d' % (vr(KM, 4), L_KM))
        V(5)
        A('s_waitcnt lgkmcnt(0)')
        A('s_barrier')
        for w in range(4):
            LQ.op('k%d' % w, 'ds_read_b128 %s, v0 offset:%d' % (vr(KM + 4 * w, 4), L_KM + 1024 * w))
        V(4)
        for w in range(4):
            LQ.wait('k%d' % w)
            for T in range(2):
                d = vr(SM + 4 * T, 4)
                A('%s %s, %s, %s, %s' % (M32, d, vr(KM + 4 * w, 4), vr(QF + 8 * w + 4 * T, 4), '0' if w == 0 else d))
        V(5)
        X, Y = SX, SX + 2

        def soft(T):
            s, m, a = SM + 4 * T, X + T, Y + 2 * T
            o = ['v_max3_f32 v%d, v%d, v%d, v%d' % (m, s, s + 1, s + 2), 'v_max_f32 v%d, v%d, v%d' % (m, m, s + 3)]
            o += xred(m, a, 'v_max_f32', 16)
            o += ['v_mul_f32 v%d, s50, v%d' % (m, m), 'v_max_f32 v%d, v%d, v%d' % (m, m, MX + T)]
            o += ['v_fma_f32 v%d, v%d, s50, -v%d' % (r, r, m) for r in range(s, s + 4)]
            o += ['v_sub_f32 v%d, v%d, v%d' % (a, MX + T, m)]
            o += ['v_exp_f32 v%d, v%d' % (r, r) for r in list(range(s, s + 4)) + [a]]
            o += ['v_add_f32 v%d, v%d, v%d' % (m, s, s + 1), 'v_add_f32 v%d, v%d, v%d' % (a + 1, s + 2, s + 3), 'v_add_f32 v%d, v%d, v%d' % (m, m, a + 1)]
            o += xred(m, a + 1, 'v_add_f32', 16)
            o += ['v_fmac_f32 v%d, v%d, v%d' % (m, a, LX + T), 'v_rcp_f32 v%d, v%d' % (m, m)]
            o += ['v_mul_f32 v%d, v%d, v%d' % (r, r, m) for r in list(range(s, s + 4)) + [a]]
            o += ['v_cvt_pk_bf16_f32 v%d, v%d, v%d' % (PM + 2 * T + i, s + 2 * i, s + 2 * i + 1) for i in range(2)]
            o += ['v_cvt_pk_bf16_f32 v%d, v%d, v%d' % (VA + 4 * T + i, VA + 4 * T + 2 * i, VA + 4 * T + 2 * i + 1) for i in range(2)]
            o += ['v_pk_mul_f32 %s, %s, %s op_sel_hi:[1,0]' % (vr(r, 2), vr(r, 2), vr(a, 2)) for r in range(O + 8 * T, O + 8 * T + 8, 2)]
            return o
        both(soft)
        for T in range(2):
            for t in range(2):
                d = vr(O + 8 * T + 4 * t, 4)
                A('%s %s, %s, %s, %s' % (M16, d, vr(VA + 4 * t, 2), vr(PM + 2 * T, 2), d))
        A('s_add_u32 s47, s42, %d' % (128 * 1024))
        for T in range(2):
            for i in range(4):
                cvt(ST + 4 * T + i, O + 8 * T + 2 * i)
            A('buffer_store_dwordx4 %s, v0, %s, %s offen sc1' % (vr(ST + 4 * T, 4), WS, ('s42', 's47')[T]))
        A('s_add_u32 s42, s42, %d' % SEG_O)
        A('s_waitcnt vmcnt(2)')
        A('s_cmp_lt_u32 s40, 64')
        A('s_cbranch_scc1 AM_L')
        A('s_waitcnt vmcnt(0)')
        publish('s45', 's40')

    A('s_sub_u32 s32, %s, 1' % S_X)
    A('s_cmp_lt_u32 %s, 6' % S_T)
    A('s_cbranch_scc1 R_TRIP')
    A('s_sub_u32 s33, %s, 6' % S_T)
    A('s_lshr_b32 s36, s33, 1')
    A('s_mul_i32 s36, s36, 7')
    A('s_add_u32 s36, s36, s32')
    A('s_and_b32 s37, s33, 1')
    A('s_cmp_lt_u32 s33, 18')
    A('s_cbranch_scc1 R_PAIR')
    A('s_sub_u32 s38, s33, 18')
    A('s_add_u32 s34, s32, 14')
    A('s_add_u32 s36, s32, 61')
    A('s_mul_i32 s35, s32, 6')
    A('s_add_u32 s35, s35, s38')
    A('s_add_u32 s33, s32, 3')
    A('s_min_u32 s33, s33, 4')
    A('s_sub_u32 s35, s35, s33')
    A('s_cmp_lt_u32 s32, 2')
    A('s_cselect_b32 s33, 3, 2')
    A('s_cmp_ge_u32 s38, s33')
    A('s_cbranch_scc1 R_SMALL')
    A('s_cmp_lt_u32 s32, 2')
    A('s_cbranch_scc1 R_TRIP2')
    A.label('R_PAIR')
    A('s_cmp_lt_u32 s36, 32')
    A('s_cbranch_scc1 R_QKV')
    A('s_sub_u32 s36, s36, 32')
    role_f1()
    G.finish()
    A.label('R_TRIP')
    A('s_cmp_ge_u32 %s, 3' % S_T)
    A('s_cselect_b32 s34, 7, 0')
    A('s_cselect_b32 s38, 3, 0')
    A('s_sub_u32 s38, %s, s38' % S_T)
    A('s_add_u32 s34, s34, s32')
    A.label('R_TRIP2')
    A('s_bfe_u32 s37, s34, 0x10001')
    A('s_lshr_b32 s36, s34, 2')
    A('s_bitcmp1_b32 s34, 0')
    A('s_cbranch_scc1 R_WO')
    role_part('F2')
    G.finish()
    A.label('R_WO')
    role_part('WO')
    G.finish()
    A.label('R_QKV')
    role_qkv()
    role_fin()
    G.finish()
    A.label('R_SMALL')
    A('s_mul_i32 s33, s35, 52')
    A('s_lshr_b32 s33, s33, 8')
    A('s_mul_i32 s34, s33, 5')
    A('s_add_u32 s34, s34, 4')
    A('s_cmp_eq_u32 s34, s35')
    A('s_cbranch_scc0 R_AM')
    A('s_mov_b32 s35, s33')
    role_ln2()
    G.finish()
    A.label('R_AM')
    A('s_sub_u32 s35, s35, s33')
    role_am()
    G.finish()
```

```python
import sys, math, struct
sys.path.insert(0, 'gen')
from asmlib import *
from layout import *

OPT = dict(ts=0, ts0=6, chain=8, only=0, mixed=0, st=0, two=0, slow=0, dl=0, dm=0, pl=13, x=0, w1=0, dn=0, h1=4, h2=13, hq=3, pb=99, xl=0, mi=4, ml=2, t0=0, amd=62,
           pa1=3, pa2=7, ph=20, pe=16, bq=41, bk=47, bp=52, px=46, ps=51, h0=1, bo=1, nr=3, r0=12, r1=14, p0=3, p1=6, cr=0, sm=0, fr=0, rm=0,
           nk=6, ia2=-1, ih=5, nm=5, m1=1, s1=-1, s2=-1, nc=1, ms=0, np=3, xo=1, r3=18, ik=10, pe2=25, mg=2, bl=2, xb=1, vl=1, r2=16, cw=0, vf=2)
for a in sys.argv[2:]:
    k, v = a.split('=')
    OPT[k] = int(v, 0)

A = Asm()
WS, DBG, SA, SB, SC = 's[4:7]', 's[8:11]', 's[12:15]', 's[16:19]', 's[20:23]'
S_W, S_X, S_T, S_SPIN = 's24', 's25', 's26', 's27'
P_X, P_MEM, P_WQ, P_WK, P_WV, P_WO, P_WG, P_WU, P_WD, P_OUT, P_DBG, P_WS = 64, 66, 68, 70, 72, 74, 80, 82, 84, 86, 88, 90
SPIN_MAX = 400000
LOG2E = 1.4426950408889634


def fbits(x):
    return '0x%08x' % struct.unpack('<I', struct.pack('<f', x))[0]


def srd(d, p, size):
    A('s_mov_b32 s%d, s%d' % (d, p))
    A('s_mov_b32 s%d, s%d' % (d + 1, p + 1))
    A('s_mov_b32 s%d, 0x%x' % (d + 2, size))
    A('s_mov_b32 s%d, 0x20000' % (d + 3))


V_TS = 'v2'


def ts_init():
    if OPT['ts']:
        A('v_mov_b32 %s, 0' % V_TS)
        A('s_mov_b32 s63, 0')


def ts(real=True):
    if OPT['ts']:
        A('%s s[60:61]' % ('s_memrealtime' if (real and OPT['ts'] == 1) else 's_memtime'))
        A('s_waitcnt lgkmcnt(0)')
        A('s_mov_b32 s62, m0')
        A('s_mov_b32 m0, s63')
        A('v_writelane_b32 %s, s60, m0' % V_TS)
        A('s_mov_b32 m0, s62')
        A('s_add_u32 s63, s63, 1')
        A('s_min_u32 s63, s63, 63')


def dump_ts(vlane):
    A('s_lshl_b32 s60, %s, 5' % S_X)
    A('s_add_u32 s60, s60, %s' % S_T)
    A('s_lshl_b32 s60, s60, 2')
    A('s_add_u32 s60, s60, %s' % S_W)
    A('s_lshl_b32 s60, s60, 8')
    A('s_add_u32 s60, s60, 0x%x' % W_TS)
    A('v_lshlrev_b32 v9, 2, %s' % vlane)
    A('buffer_store_dword %s, v9, %s, s60 offen' % (V_TS, WS))


def finish():
    if OPT['ts']:
        ts()
        dump_ts('v1')
    A('s_endpgm')


def spin(vaddr, vtmp, need, code, srdname=WS, soff='0'):
    L, D = A.newlabel('SP'), A.newlabel('SD')
    A('s_mov_b32 %s, 0' % S_SPIN)
    A.label(L)
    A('buffer_load_dword %s, %s, %s, %s offen sc1' % (vtmp, vaddr, srdname, soff))
    A('s_waitcnt vmcnt(0)')
    A('v_cmp_gt_u32 vcc, %s, %s' % (need, vtmp))
    A('s_cbranch_vccz %s' % D)
    A('s_add_u32 %s, %s, 1' % (S_SPIN, S_SPIN))
    A('s_cmp_lt_u32 %s, %d' % (S_SPIN, SPIN_MAX))
    A('s_cbranch_scc1 %s' % L)
    A('s_movk_i32 %s, %d' % (S_SPIN, code))
    A('s_branch FAIL')
    A.label(D)


def wait_ready(v0, v1):
    A('v_mov_b32 %s, %d' % (v0, D_READY * 4))
    spin(v0, v1, '1', 1, DBG)


def publish(vaddr, vtmp, sval):
    A('v_mov_b32 %s, %s' % (vtmp, sval))
    A('s_mov_b64 exec, 1')
    A('buffer_store_dword %s, %s, %s, 0 offen sc1' % (vtmp, vaddr, WS))
    A('s_mov_b64 exec, -1')


def role_chain_stub():
    wait_ready('v6', 'v7')
    A('s_lshl_b32 s34, %s, 2' % S_T)
    A('s_add_u32 s34, s34, %s' % S_W)
    A('s_lshl_b32 s34, s34, 2')
    A('v_mov_b32 v9, s34')
    publish('v9', 'v12', '64')


def prologue():
    A('s_cmp_ge_u32 s2, 256')
    A('s_cbranch_scc1 EXIT')
    A('s_load_dwordx16 s[64:79], s[0:1], 0')
    A('s_load_dwordx8 s[80:87], s[0:1], 64')
    A('s_load_dwordx4 s[88:91], s[0:1], 96')
    A('v_and_b32 v1, 63, v0')
    A('v_lshrrev_b32 v3, 6, v0')
    A('v_readfirstlane_b32 %s, v3' % S_W)
    A('s_getreg_b32 s28, hwreg(HW_REG_XCC_ID, 0, 4)')
    A('s_and_b32 s28, s28, 7')
    if OPT['mixed']:
        A('s_and_b32 s28, s2, 3')
    ts_init()
    A('s_waitcnt lgkmcnt(0)')
    srd(4, P_WS, WS_SIZE)
    srd(8, P_DBG, 256)
    ts()
    A('s_cmp_lg_u32 %s, 0' % S_W)
    A('s_cbranch_scc1 P_WAIT')
    A('s_mov_b32 s29, s28')
    A('s_mov_b32 s30, 0')
    A.label('P_TRY')
    A('s_lshl_b32 s31, s29, 2')
    A('v_mov_b32 v3, s31')
    A('v_mov_b32 v4, 1')
    A('s_mov_b64 exec, 1')
    A('buffer_atomic_add v4, v3, %s, 0 offen sc0 sc1' % DBG)
    A('s_waitcnt vmcnt(0)')
    A('s_mov_b64 exec, -1')
    A('v_readfirstlane_b32 %s, v4' % S_T)
    A('s_cmp_lt_u32 %s, 32' % S_T)
    A('s_cbranch_scc1 P_GOT')
    A('s_add_u32 s29, s29, 1')
    A('s_and_b32 s29, s29, 7')
    A('s_add_u32 s30, s30, 1')
    A('s_cmp_lt_u32 s30, 8')
    A('s_cbranch_scc1 P_TRY')
    A('s_mov_b32 s29, 8')
    A.label('P_GOT')
    A('s_lshl_b32 s31, s29, 8')
    A('s_add_u32 s31, s31, %s' % S_T)
    A('v_mov_b32 v3, 0')
    A('v_mov_b32 v4, s31')
    A('ds_write_b32 v3, v4')
    A('s_waitcnt lgkmcnt(0)')
    A('s_branch P_JOIN')
    A.label('P_WAIT')
    A('s_cmp_lg_u32 s2, 0')
    A('s_cbranch_scc1 P_JOIN')
    A('v_mov_b32 v4, 0')
    A('v_mov_b32 v5, 0')
    A('v_mov_b32 v6, 0')
    A('v_mov_b32 v7, 0')
    A('v_lshlrev_b32 v3, 7, v1')
    A('s_sub_u32 s31, %s, 1' % S_W)
    A('s_mul_i32 s31, s31, %d' % (6 * 8192))
    A('s_add_u32 s31, s31, 0x%x' % W_FLAGS)
    for i in range(6):
        A('buffer_store_dwordx4 v[4:7], v3, %s, s31 offen sc1' % WS)
        A('s_add_u32 s31, s31, 8192')
    A('s_waitcnt vmcnt(0)')
    A.label('P_JOIN')
    A('s_barrier')
    A('s_cmp_lg_u32 s2, 0')
    A('s_cbranch_scc1 P_NR')
    A('s_cmp_lg_u32 %s, 1' % S_W)
    A('s_cbranch_scc1 P_NR')
    A('v_mov_b32 v3, %d' % (D_READY * 4))
    A('v_mov_b32 v4, 1')
    A('s_mov_b64 exec, 1')
    A('buffer_store_dword v4, v3, %s, 0 offen sc1' % DBG)
    A('s_mov_b64 exec, -1')
    A.label('P_NR')
    A('v_mov_b32 v3, 0')
    A('ds_read_b32 v4, v3')
    A('s_waitcnt lgkmcnt(0)')
    A('v_readfirstlane_b32 s31, v4')
    A('s_lshr_b32 %s, s31, 8' % S_X)
    A('s_and_b32 %s, s31, 255' % S_T)
    A('s_barrier')
    ts()


def main():
    me = sys.modules[__name__]
    prologue()
    A('s_cmp_eq_u32 %s, 0' % S_X)
    A('s_cbranch_scc1 R_CHAIN')
    A('s_cmp_gt_u32 %s, 7' % S_X)
    A('s_cbranch_scc1 EXIT')
    if OPT['only']:
        A('s_cmp_gt_u32 %s, 4' % S_X)
        A('s_cbranch_scc1 EXIT')
        A('s_lshl_b32 s30, %s, 21' % S_T)
        A('s_lshl_b32 s31, %s, 12' % S_X)
        A('s_add_u32 s30, s30, s31')
        A('s_add_u32 s30, s30, 0x%x' % (W_QKV + 4096))
        A('v_lshlrev_b32 v6, 4, v0')
        for i in range(64):
            A('buffer_load_dwordx4 %s, v6, %s, s30 offen' % (vr(8 + 4 * (i & 15), 4), WS))
            A('s_add_u32 s30, s30, %d' % SEG_QKV)
            if i & 15 == 15:
                A('s_sub_u32 s30, s30, %d' % (16 * SEG_QKV))
                A('s_waitcnt vmcnt(0)')
                for k in range(16):
                    A('buffer_store_dwordx4 %s, v6, %s, s30 offen sc1' % (vr(8 + 4 * k, 4), WS))
                    A('s_add_u32 s30, s30, %d' % SEG_QKV)
                A('s_waitcnt vmcnt(0)')
        A('s_cmp_lg_u32 %s, 1' % S_X)
        A('s_cbranch_scc1 EXIT')
        A('s_cmp_lg_u32 %s, 0' % S_T)
        A('s_cbranch_scc1 EXIT')
        wait_ready('v6', 'v7')
        A('v_lshlrev_b32 v6, 7, v1')
        A('s_lshl_b32 s30, %s, 2' % S_W)
        A('s_add_u32 s30, s30, %d' % (F_QKV * 128))
        A('v_add_u32 v6, s30, v6')
        A('v_mov_b32 v7, 64')
        A('buffer_store_dword v7, v6, %s, 0 offen sc1' % WS)
        A('s_endpgm')
    else:
        import workers
        workers.roles(me)
    A.label('R_CHAIN')
    if OPT['chain']:
        import importlib
        importlib.import_module('chain%d' % OPT['chain']).role_chain(me)
    else:
        role_chain_stub()
        finish()
    A.label('FAIL')
    A('s_mov_b64 exec, 1')
    A('v_mov_b32 v3, %d' % (D_ERR * 4))
    A('v_mov_b32 v4, %s' % S_SPIN)
    A('buffer_store_dword v4, v3, %s, 0 offen sc1' % DBG)
    A.label('EXIT')
    A('s_endpgm')
    lines, nn = fix_hazards(A.lines)
    ref = open('cdna_kernels/%s.s.ref' % NAME).read()
    head = ref[:ref.index(NAME + '_kernel:')]
    head = head.replace('grid=(4608,1,1) block=(256,1,1) lds=0', 'grid=(256,1,1) block=(256,1,1) lds=163840')
    tail = ref[ref.index('.section .rodata'):].replace('next_free_vgpr 256', 'next_free_vgpr 512')
    with open(sys.argv[1], 'w') as f:
        f.write(head + NAME + '_kernel:\n' + '\n'.join(l if l.endswith(':') else '    ' + l for l in lines) + '\n' + tail)
    print('lines', len(lines), 'nop states', nn)


if __name__ == '__main__':
    main()
```

```python
import math
from asmlib import *
from layout import *
from chain import Q

M16 = 'v_mfma_f32_16x16x16_bf16'
M32 = 'v_mfma_f32_16x16x32_bf16'


def roles(G):
    A, WS, OPT = G.A, G.WS, G.OPT
    S_W, S_X, S_T = G.S_W, G.S_X, G.S_T

    def cvt(d, s, s2=None):
        A('v_cvt_pk_bf16_f32 v%d, v%d, v%d' % (d, s, s + 1 if s2 is None else s2))

    def publish(soff, sval, q=None):
        A('v_mov_b32 v7, %s' % sval)
        A('s_mov_b64 exec, 1')
        t = 'buffer_store_dword v7, off, %s, %s sc1' % (WS, soff)
        if q is None:
            A(t)
        else:
            q.op('pub', t)
        A('s_mov_b64 exec, -1')

    def wreg(f, nf, sub=None):
        k, b = ('a', 4 * f) if f < 64 else ('v', 256 - 4 * (nf - f))
        return vr(b, 4, k) if sub is None else vr(b + 2 * sub, 2, k)

    def load_weights(units, nf, stride, krow, NS=20):
        VQ = Q(A, 'vmcnt')
        A('s_mul_i32 s30, %s, %d' % (S_W, 20 * 2048))

        def dma(n):
            sd, vo, col, k, _ = units[n]
            for i in range(2):
                A('s_add_u32 m0, s30, %d' % ((n % NS) * 2048 + i * 1024))
                A('s_mov_b32 s31, %d' % ((32 * k + 16 * i) * stride + col))
                VQ.op(n, 'buffer_load_dwordx4 %s, %s, s31 offen lds' % (vo, sd))
        for n in range(min(NS, len(units))):
            dma(n)
        GR = 3 if NS > 5 else 1
        usep = 256 if krow == 'N' else 1024
        for n0 in range(0, len(units), GR):
            ns = list(range(n0, min(n0 + GR, len(units))))
            VQ.wait(ns[-1])
            for n in ns:
                for f, va, off in units[n][4]:
                    for u in range(2):
                        A('ds_read_b64_tr_b16 %s, %s offset:%d' % (wreg(f, nf, u), va, (n % NS) * 2048 + u * usep + off))
            A('s_waitcnt lgkmcnt(0)')
            for n in ns:
                if n + NS < len(units):
                    dma(n + NS)

    def w_lane(stride, krow, ccol):
        A('v_lshrrev_b32 v7, 2, v1')
        A('v_mul_u32_u24 v8, %d, v7' % stride)
        A('v_and_b32 v6, 3, v1')
        A('v_lshl_add_u32 v8, v6, 4, v8')
        A('v_lshrrev_b32 v5, 4, v1')
        A('v_and_b32 v7, 3, v7')
        A('v_lshl_add_u32 v7, v5, %d, v7' % (3 if krow == 'N' else 2))
        A('v_lshlrev_b32 v10, 6, v7')
        A('v_lshl_add_u32 v10, v6, %d, v10' % (4 if ccol == 'N' else 3))
        A('s_mul_i32 s30, %s, %d' % (S_W, 20 * 2048))
        A('v_add_u32 v10, s30, v10')

    S_U, S_DST, S_SRC, S_LDS, S_NEED, S_FLG, S_PUB = ['s%d' % i for i in range(40, 47)]

    def gemm(name, KS, NT, TS, ND, WPART, BUF, STEP, dsrc, ddst, checks, pubk, NB, PF, swaps, epi, mid=None, late=None):
        NF = KS * TS
        nf = KS * NT
        ACC = 8
        RING = ACC + 4 * NT * TS
        always = not checks
        A('v_lshlrev_b32 v0, 4, v1')
        A('v_mov_b32 v3, v0')
        A('v_mov_b32 v5, 0')
        A('s_mul_i32 %s, %s, %d' % (S_LDS, S_W, WPART))
        A('s_mov_b32 %s, 0' % S_PUB)
        A('s_barrier')

        def dma(i, VQ):
            if i % 4 == 0:
                A('s_add_u32 m0, %s, %d' % (S_LDS, i * 1024))
                if i:
                    A('s_add_u32 s47, %s, %d' % (S_SRC, i * 1024))
            VQ.op('dma', 'buffer_load_dwordx4 v0, %s, %s offen offset:%d sc1 lds' % (WS, 's47' if i >= 4 else S_SRC, (i % 4) * 1024))
            if i == ND - 1:
                A('s_add_u32 %s, %s, %d' % (S_SRC, S_SRC, dsrc))
                A('s_xor_b32 %s, %s, %d' % (S_LDS, S_LDS, BUF))

        def poll(VQ):
            VQ.op('poll', 'buffer_load_dword v5, v4, %s, 0 offen sc1' % WS)

        def body(j0, VQ, LQ, issued, nst):
            pieces = {}
            if issued is not None:
                gap = max(1, min(3, (NF - 1 - j0) // ND))
                for i in range(ND):
                    pieces.setdefault(min(j0 + i * gap, NF - 1), []).append(i)
                pollk = max(max(pieces) + 1, NF - (700 // (16 * NT)))
            for j in range(j0, NF):
                T, k = divmod(j, KS)
                if issued is None and j in (checks or [0]) and (j > j0 or j == 0):
                    if always:
                        A('s_cmp_lt_u32 %s, 64' % S_NEED)
                        A('s_cbranch_scc1 %s_V%d' % (name, j))
                    else:
                        A('s_cbranch_vccz %s_V%d' % (name, j))
                    variants.append((j, list(VQ.q), list(LQ.q)))
                    if not always:
                        poll(VQ)
                LQ.wait('f%d' % j)
                b = vr(RING + 4 * (j % NB), 4)
                fill = []
                if j + PF < NF:
                    fill.append(lambda j=j: LQ.op('f%d' % (j + PF), 'ds_read_b128 %s, v3 offset:%d' % (vr(RING + 4 * ((j + PF) % NB), 4), (j + PF) * 1024)))
                for i in pieces.get(j, ()):
                    fill.append(lambda i=i: dma(i, VQ))
                if j == pubk:
                    def pub():
                        L = A.newlabel('NP')
                        A('s_cmp_eq_u32 %s, 0' % S_PUB)
                        A('s_cbranch_scc1 %s' % L)
                        VQ.wait('st')
                        publish(S_FLG, S_U)
                        A('s_mov_b32 %s, 0' % S_PUB)
                        A.label(L)
                        VQ.q.append('pub?')
                    fill.append(pub)
                if issued is not None and not always and j == pollk:
                    fill.append(lambda: poll(VQ))
                if mid:
                    fill += mid(j, VQ)
                if issued is None and (j + 1) in checks:
                    fill.append(lambda: A('v_cmp_ge_u32 vcc, %s, v5' % S_NEED))
                for t in range(NT):
                    d = vr(ACC + 4 * (T * NT + t), 4)
                    w = wreg(k * NT + t, nf)
                    x, y = (b, w) if t in swaps else (w, b)
                    A('%s %s, %s, %s, %s' % (M32, d, x, y, '0' if k == 0 else d))
                    n = 1 if t < NT - 1 else len(fill)
                    for f in fill[:n]:
                        f()
                    fill = fill[n:]
            A('v_xor_b32 v3, %d, v3' % BUF)
            epi(VQ)
            A('s_add_u32 %s, %s, %d' % (S_DST, S_DST, ddst))
            A('s_add_u32 %s, %s, %d' % (S_U, S_U, STEP))

        def strict(VQ, tag):
            VQ.q = [x for x in VQ.q if x != 'pub?']
            VQ.wait(tag)

        variants = []
        A.label(name + '_S')
        if not always:
            A('s_add_u32 s48, %s, 1' % S_U)
            G.spin('v4', 'v5', 's48', 20)
        VQ = Q(A, 'vmcnt')
        for i in range(ND):
            dma(i, VQ)
        A('s_waitcnt vmcnt(0)')
        A.label(name + '_L')
        A('s_barrier')
        if OPT['ts']:
            L = A.newlabel('TS')
            if STEP == 1:
                A('s_cmp_lt_u32 %s, %d' % (S_U, OPT['ts0']))
                A('s_cbranch_scc1 %s' % L)
            G.ts()
            A.label(L)
        LQ = Q(A, 'lgkmcnt')
        for j in range(PF):
            LQ.op('f%d' % j, 'ds_read_b128 %s, v3 offset:%d' % (vr(RING + 4 * (j % NB), 4), j * 1024))
        A('s_add_u32 %s, %s, %d' % (S_NEED, S_U, STEP))
        if not always:
            A('s_cmp_lt_u32 %s, 64' % S_NEED)
            A('s_cselect_b32 %s, %s, -1' % (S_NEED, S_NEED))
            A('v_cmp_ge_u32 vcc, %s, v5' % S_NEED)
        VQ = Q(A, 'vmcnt')
        VQ.q = ['st']
        body(0, VQ, LQ, None, 0)
        if not always:
            poll(VQ)
        strict(VQ, 'st')
        publish(S_FLG, S_U)
        A('s_cmp_ge_u32 %s, 64' % S_U)
        A('s_cbranch_scc1 %s_E' % name)
        A('s_branch %s_S' % name)
        for j, vq, lq in variants:
            A.label('%s_V%d' % (name, j))
            VQ = Q(A, 'vmcnt')
            VQ.q = vq
            LQ = Q(A, 'lgkmcnt')
            LQ.q = lq
            body(j, VQ, LQ, j, 0)
            if late is not None and j >= late:
                A('s_waitcnt vmcnt(0)')
                publish(S_FLG, S_U)
            else:
                strict(VQ, 'dma')
                A('s_mov_b32 %s, 1' % S_PUB)
            A('s_branch %s_L' % name)
        A.label(name + '_E')
        G.ts()

    def red(r, t):
        A('v_add_f32_dpp v%d, v%d, v%d row_ror:8 row_mask:0xf bank_mask:0xf' % (r, r, r))
        A('v_mov_b32 v%d, v%d' % (t, r))
        A('v_permlane16_swap_b32 v%d, v%d' % (r, t))
        A('v_add_f32 v%d, v%d, v%d' % (r, r, t))
        A('v_mov_b32 v%d, v%d' % (t, r))
        A('v_permlane32_swap_b32 v%d, v%d' % (r, t))
        A('v_add_f32 v%d, v%d, v%d' % (r, r, t))

    def oct_lanes(vrow, vfrag, vhalf=None):
        A('v_and_b32 v7, 7, v1')
        A('v_bfe_u32 v6, v1, 3, 1')
        A('v_lshrrev_b32 v5, 4, v1')
        A('v_mul_u32_u24 %s, 1152, v7' % vrow)
        A('v_lshl_add_u32 %s, v6, 6, %s' % (vrow, vrow))
        A('v_lshl_add_u32 %s, v5, 4, %s' % (vrow, vrow))
        A('v_lshl_add_u32 v7, v5, 4, v7')
        A('v_lshlrev_b32 v6, 10, v6')
        A('v_lshl_add_u32 %s, v7, 4, v6' % vfrag)
        if vhalf:
            A('v_lshl_add_u32 %s, v7, 3, v6' % vhalf)

    def ln1():
        G.srd(20, G.P_X, 2048 * 1152)
        oct_lanes('v3', 'v4')
        A('s_lshl_b32 s36, s35, 2')
        A('s_add_u32 s36, s36, %s' % S_W)
        A('s_mul_i32 s32, s36, %d' % (8 * 1152))
        A('s_lshr_b32 s33, s36, 1')
        A('s_mul_i32 s33, s33, 18432')
        A('s_and_b32 s34, %s, 1' % S_W)
        A('s_lshl_b32 s34, s34, 7')
        A('s_add_u32 s33, s33, s34')
        A('s_add_u32 s33, s33, 0x%x' % W_XN)
        X, F = 16, 52
        for i in range(9):
            A('buffer_load_dwordx4 %s, v3, s[20:23], s32 offen offset:%d' % (vr(X + 4 * i, 4), i * 128))
        for i in range(9):
            A('s_waitcnt vmcnt(%d)' % (8 - i))
            for j in range(4):
                r = X + 4 * i + j
                A('v_lshlrev_b32 v%d, 16, v%d' % (F + 2 * (4 * i + j), r))
                A('v_and_b32 v%d, 0xffff0000, v%d' % (F + 2 * (4 * i + j) + 1, r))
            for j in range(4):
                p = F + 2 * (4 * i + j)
                acc = 8 + 2 * (j & 1)
                if i == 0 and j < 2:
                    A('v_pk_add_f32 %s, %s, %s' % (vr(acc, 2), vr(p, 2), vr(p + 4, 2)))
                elif i > 0:
                    A('v_pk_add_f32 %s, %s, %s' % (vr(acc, 2), vr(acc, 2), vr(p, 2)))
        if OPT['lt']:
            G.ts()
        A('v_pk_add_f32 v[8:9], v[8:9], v[10:11]')
        A('v_add_f32 v8, v8, v9')
        red(8, 9)
        A('v_mul_f32 v12, %s, v8' % G.fbits(-1.0 / 576))
        A('v_mov_b32 v13, v12')
        for i in range(36):
            p = F + 2 * i
            A('v_pk_add_f32 %s, %s, v[12:13]' % (vr(p, 2), vr(p, 2)))
        for i in range(36):
            p = F + 2 * i
            acc = 8 + 2 * (i & 1)
            if i < 2:
                A('v_pk_mul_f32 %s, %s, %s' % (vr(acc, 2), vr(p, 2), vr(p, 2)))
            else:
                A('v_pk_fma_f32 %s, %s, %s, %s' % (vr(acc, 2), vr(p, 2), vr(p, 2), vr(acc, 2)))
        A('v_pk_add_f32 v[8:9], v[8:9], v[10:11]')
        A('v_add_f32 v8, v8, v9')
        red(8, 9)
        A('v_mov_b32 v9, %s' % G.fbits(1e-5))
        A('v_fmac_f32 v9, %s, v8' % G.fbits(1.0 / 576))
        A('v_rsq_f32 v12, v9')
        A('v_mov_b32 v13, v12')
        for i in range(9):
            for j in range(4):
                p = F + 2 * (4 * i + j)
                A('v_pk_mul_f32 %s, %s, v[12:13]' % (vr(p, 2), vr(p, 2)))
            for j in range(4):
                cvt(X + 4 * i + j, F + 2 * (4 * i + j))
            if i and i % 2 == 0:
                A('s_add_u32 s33, s33, 4096')
            A('buffer_store_dwordx4 %s, v4, %s, s33 offen offset:%d sc1' % (vr(X + 4 * i, 4), WS, (i & 1) * 2048))
        if OPT['lt']:
            G.ts()
            A('s_waitcnt vmcnt(0)')
            G.ts()
        G.wait_ready('v6', 'v7')
        A('s_add_u32 s36, s36, %d' % F_XN)
        A('s_lshl_b32 s36, s36, 7')
        publish('s36', '1')
        G.ts()

    ID, RA, RB = 10, 12, 40

    def ident():
        A('v_and_b32 v7, 15, v1')
        A('v_lshrrev_b32 v6, 4, v1')
        A('v_lshlrev_b32 v6, 2, v6')
        A('v_sub_u32 v7, v7, v6')
        A('v_mov_b32 v5, 0x3f80')
        A('v_mov_b32 v6, 0x3f800000')
        for i in range(2):
            A('v_mov_b32 v%d, 0' % (ID + i))
            A('v_cmp_eq_u32 vcc, %d, v7' % (2 * i))
            A('v_cndmask_b32 v%d, v%d, v5, vcc' % (ID + i, ID + i))
            A('v_cmp_eq_u32 vcc, %d, v7' % (2 * i + 1))
            A('v_cndmask_b32 v%d, v%d, v6, vcc' % (ID + i, ID + i))

    def part_loads(VQ, np_, sbase):
        for n in range(np_):
            r = RB + 12 * (n + 1)
            if n:
                A('s_add_u32 %s, %s, 18432' % (sbase, sbase))
            for p in range(2):
                VQ.op((n + 1, p), 'buffer_load_dwordx4 %s, v8, %s, %s offen offset:%d sc1' % (vr(r + 4 * p, 4), WS, sbase, p * 2048))
            for i in range(2):
                VQ.op((n + 1, 2), 'buffer_load_dwordx2 %s, v9, %s, %s offen offset:%d sc1' % (vr(r + 8 + 2 * i, 2), WS, sbase, i * 512))

    def part_sum(VQ, np_):
        for n in range(np_ + 1):
            for p in range(3):
                VQ.wait((n, p))
                for i in range(2):
                    d = vr(RA + 8 * p + 4 * i, 4)
                    A('%s %s, %s, %s, %s' % (M16, d, vr(ID, 2), vr(RB + 12 * n + 4 * p + 2 * i, 2), '0' if n == 0 else d))

    def role_ln2():
        A('s_cmp_eq_u32 %s, 3' % S_W)
        A('s_cbranch_scc1 EXIT')
        G.srd(20, G.P_X, 2048 * 1152)
        ident()
        oct_lanes('v3', 'v8', 'v9')
        A('s_lshr_b32 s40, s35, 2')
        A('s_and_b32 s36, s35, 3')
        A('s_lshr_b32 s37, s36, 1')
        A('s_and_b32 s38, s36, 1')
        A('s_mul_i32 s32, s36, %d' % (8 * 1152))
        A('s_mul_i32 s33, %s, 384' % S_W)
        A('s_add_u32 s32, s32, s33')
        A('v_add_u32 v3, s32, v3')
        A('s_mul_i32 s33, %s, 6144' % S_W)
        A('s_lshl_b32 s34, s38, 7')
        A('s_add_u32 s34, s34, s33')
        A('v_add_u32 v8, s34, v8')
        A('s_lshl_b32 s34, s38, 6')
        A('s_add_u32 s34, s34, s33')
        A('s_add_u32 s34, s34, 4096')
        A('v_add_u32 v9, s34, v9')
        A('s_lshl_b32 s34, s37, 2')
        A('s_add_u32 s34, s34, %s' % S_W)
        A('s_lshl_b32 s34, s34, 4')
        A('s_add_u32 s34, s34, %d' % F_WO)
        A('v_min_u32 v4, 15, v1')
        A('v_add_u32 v4, s34, v4')
        A('v_lshlrev_b32 v4, 7, v4')
        A('s_lshl_b32 s45, s40, 1')
        A('s_add_u32 s45, s45, s38')
        A('s_mul_i32 s45, s45, 3')
        A('s_add_u32 s45, s45, %s' % S_W)
        A('s_lshl_b32 s34, s37, 5')
        A('s_add_u32 s45, s45, s34')
        A('s_add_u32 s45, s45, %d' % F_LN2)
        A('s_lshl_b32 s45, s45, 7')
        A('v_and_b32 v0, 7, v1')
        A('v_lshlrev_b32 v0, 3, v0')
        A('s_lshl_b32 s34, %s, 6' % S_W)
        A('s_mul_i32 s41, s37, %d' % (NPW * 18432))
        A('s_add_u32 s41, s41, 0x%x' % W_PW)
        A('s_mul_i32 s42, s37, 18432')
        G.wait_ready('v6', 'v7')
        A('v_add_u32 v6, s34, v0')
        A.label('LN2_L')
        VQ = Q(A, 'vmcnt')
        A('s_mul_i32 s43, s40, %d' % SEG_XN)
        for p in range(3):
            A('buffer_load_dwordx4 %s, v3, s[20:23], s43 offen offset:%d' % (vr(RB + 4 * p, 4), p * 128))
        A('s_mul_i32 s44, s40, %d' % SEG_PW)
        A('s_add_u32 s44, s44, s41')
        A('s_add_u32 s48, s40, 1')
        G.spin('v4', 'v5', 's48', 21)
        G.ts()
        part_loads(VQ, NPW, 's44')
        part_sum(VQ, NPW)
        A('s_add_u32 s43, s43, s42')
        A('s_add_u32 s44, s43, 0x%x' % W_HB)
        A('s_add_u32 s43, s43, 0x%x' % W_HN)
        A('s_add_u32 s46, s44, 4096')
        A('s_add_u32 s47, s43, 4096')
        t = RB + 12
        for i in range(3):
            A('v_pk_add_f32 %s, %s, %s' % (vr(t + 2 * i, 2), vr(RA + 2 * i, 2), vr(RA + 6 + 2 * i, 2)))
        for i in range(6):
            A('v_pk_add_f32 %s, %s, %s' % (vr(t + 2 * (i % 3), 2), vr(t + 2 * (i % 3), 2), vr(RA + 12 + 2 * i, 2)))
        A('v_pk_add_f32 %s, %s, %s' % (vr(t, 2), vr(t, 2), vr(t + 2, 2)))
        A('v_pk_add_f32 %s, %s, %s' % (vr(t, 2), vr(t, 2), vr(t + 4, 2)))
        A('v_add_f32 v%d, v%d, v%d' % (t, t, t + 1))
        for i in range(12):
            cvt(RB + i, RA + 2 * i)
        red(t, t + 1)
        A('v_mul_f32 v%d, %s, v%d' % (t + 8, G.fbits(1.0 / 192), t))
        A('v_mul_f32 v%d, %s, v%d' % (t + 6, G.fbits(-1.0 / 192), t))
        A('v_mov_b32 v%d, v%d' % (t + 7, t + 6))
        for i in range(12):
            A('v_pk_add_f32 %s, %s, %s' % (vr(RA + 2 * i, 2), vr(RA + 2 * i, 2), vr(t + 6, 2)))
        for i in range(12):
            a = vr(t + 2 * (i % 3), 2)
            p = vr(RA + 2 * i, 2)
            if i < 3:
                A('v_pk_mul_f32 %s, %s, %s' % (a, p, p))
            else:
                A('v_pk_fma_f32 %s, %s, %s, %s' % (a, p, p, a))
        A('v_pk_add_f32 %s, %s, %s' % (vr(t, 2), vr(t, 2), vr(t + 2, 2)))
        A('v_pk_add_f32 %s, %s, %s' % (vr(t, 2), vr(t, 2), vr(t + 4, 2)))
        A('v_add_f32 v%d, v%d, v%d' % (t + 9, t, t + 1))
        red(t + 9, t + 1)
        A('ds_write_b64 v6, %s' % vr(t + 8, 2))
        for p in range(3):
            A('buffer_store_dwordx4 %s, v8, %s, %s offen offset:%d sc1' % (vr(RB + 4 * p, 4), WS, 's44' if p < 2 else 's46', (p & 1) * 2048))
        A('s_waitcnt lgkmcnt(0)')
        A('s_barrier')
        for j in range(3):
            A('ds_read_b64 %s, v0 offset:%d' % (vr(t + 2 * j, 2), j * 64))
        A('v_xor_b32 v0, 256, v0')
        A('v_xor_b32 v6, 256, v6')
        A('s_waitcnt lgkmcnt(0)')
        m, v = t + 10, t + 11
        A('v_add_f32 v%d, v%d, v%d' % (m, t, t + 2))
        A('v_add_f32 v%d, v%d, v%d' % (v, t + 1, t + 3))
        A('v_add_f32 v%d, v%d, v%d' % (m, m, t + 4))
        A('v_add_f32 v%d, v%d, v%d' % (v, v, t + 5))
        A('v_mul_f32 v%d, %s, v%d' % (m, G.fbits(1.0 / 3), m))
        A('v_mul_f32 v%d, %s, v%d' % (v, G.fbits(1.0 / 192), v))
        for j in range(3):
            A('v_sub_f32 v%d, v%d, v%d' % (t + 2 * j, t + 2 * j, m))
        for j in range(3):
            A('v_fmac_f32 v%d, v%d, v%d' % (v, t + 2 * j, t + 2 * j))
        A('v_mov_b32 v%d, %s' % (t, G.fbits(1e-5)))
        A('v_fmac_f32 v%d, %s, v%d' % (t, G.fbits(1.0 / 3), v))
        A('v_rsq_f32 v%d, v%d' % (t, t))
        A('v_sub_f32 v%d, v%d, v%d' % (t + 2, t + 8, m))
        A('v_mov_b32 v%d, v%d' % (t + 1, t))
        A('v_mul_f32 v%d, v%d, v%d' % (t + 2, t + 2, t))
        A('v_mov_b32 v%d, v%d' % (t + 3, t + 2))
        H = RB + 24
        for p in range(3):
            for i in range(4):
                a = vr(RA + 8 * p + 2 * i, 2)
                A('v_pk_fma_f32 %s, %s, %s, %s' % (a, a, vr(t, 2), vr(t + 2, 2)))
            for i in range(4):
                cvt(H + 4 * p + i, RA + 8 * p + 2 * i)
            A('buffer_store_dwordx4 %s, v8, %s, %s offen offset:%d sc1' % (vr(H + 4 * p, 4), WS, 's43' if p < 2 else 's47', (p & 1) * 2048))
        A('s_add_u32 s40, s40, 2')
        A('s_waitcnt vmcnt(0)')
        publish('s45', 's40')
        G.ts()
        A('s_cmp_lt_u32 s40, 64')
        A('s_cbranch_scc1 LN2_L')

    def role_fin():
        G.srd(20, G.P_OUT, 2048 * 1152)
        ident()
        oct_lanes('v3', 'v0', 'v4')
        A('v_add_u32 v36, 4096, v4')
        A('v_min_u32 v4, 15, v1')
        A('v_lshlrev_b32 v4, 7, v4')
        A.label('FIN_L')
        A('s_mul_i32 s40, s35, 43691')
        A('s_lshr_b32 s40, s40, 19')
        A('s_mul_i32 s36, s40, 12')
        A('s_sub_u32 s36, s35, s36')
        A('s_and_b32 s37, s36, 3')
        A('s_lshr_b32 s36, s36, 2')
        A('s_lshr_b32 s38, s37, 1')
        A('s_and_b32 s39, s37, 1')
        A('s_mul_i32 s33, s36, 6144')
        A('s_lshl_b32 s34, s39, 7')
        A('s_add_u32 s34, s34, s33')
        A('v_add_u32 v8, s34, v0')
        A('s_lshl_b32 s34, s39, 6')
        A('s_add_u32 s34, s34, s33')
        A('v_add_u32 v9, s34, v36')
        A('s_lshl_b32 s34, s38, 2')
        A('s_add_u32 s34, s34, s36')
        A('s_lshl_b32 s34, s34, 11')
        A('s_add_u32 s34, s34, %d' % (F_F2 * 128))
        A('s_lshl_b32 s41, s40, 1')
        A('s_add_u32 s41, s41, s38')
        A('s_mul_i32 s43, s41, 18432')
        A('s_add_u32 s43, s43, 0x%x' % W_HB)
        A('s_add_u32 s46, s43, 4096')
        A('s_mul_i32 s44, s41, %d' % (NPF * 18432))
        A('s_add_u32 s44, s44, 0x%x' % W_PF)
        A('s_add_u32 s48, s40, 1')
        G.spin('v4', 'v5', 's48', 22, WS, 's34')
        G.ts()
        VQ = Q(A, 'vmcnt')
        for p in range(3):
            VQ.op((0, p), 'buffer_load_dwordx4 %s, v8, %s, %s offen offset:%d sc1' % (vr(RB + 4 * p, 4), WS, 's43' if p < 2 else 's46', (p & 1) * 2048))
        part_loads(VQ, NPF, 's44')
        A('s_lshl_b32 s41, s40, 2')
        A('s_add_u32 s41, s41, s37')
        A('s_mul_i32 s41, s41, %d' % (8 * 1152))
        A('s_mul_i32 s33, s36, 384')
        A('s_add_u32 s41, s41, s33')
        part_sum(VQ, NPF)
        for p in range(3):
            for i in range(4):
                cvt(RB + 4 * p + i, RA + 8 * p + 2 * i)
            A('buffer_store_dwordx4 %s, v3, s[20:23], s41 offen offset:%d' % (vr(RB + 4 * p, 4), p * 128))
        A('s_add_u32 s35, s35, 256')
        A('s_cmp_lt_u32 s35, 768')
        A('s_cbranch_scc1 FIN_L')

    def role_qkv():
        G.srd(12, G.P_WQ, 576 * 8192)
        G.srd(16, G.P_WK, 576 * 8192)
        G.srd(20, G.P_WV, 576 * 8192)
        NS, GR = 18, 3
        A('v_lshrrev_b32 v7, 3, v1')
        A('v_and_b32 v6, 3, v7')
        A('v_lshlrev_b32 v6, 1, v6')
        A('v_and_b32 v5, 7, v1')
        A('v_xor_b32 v6, v6, v5')
        A('v_lshlrev_b32 v8, 13, v7')
        A('v_lshl_add_u32 v8, v6, 4, v8')
        A('s_and_b32 s32, %s, 1' % S_W)
        A('s_and_b32 s33, %s, 2' % S_W)
        A('s_lshl_b32 s34, s36, 2')
        A('s_add_u32 s34, s34, s33')
        A('s_lshl_b32 s34, s34, 6')
        A('s_lshl_b32 s31, s32, 17')
        A('s_add_u32 s34, s34, s31')
        A('v_add_u32 v8, s34, v8')
        A('s_mul_i32 s30, %s, %d' % (S_W, NS * 2048))
        VQ = Q(A, 'vmcnt')

        def dma(n):
            for i in range(2):
                A('s_add_u32 m0, s30, %d' % ((n % NS) * 2048 + i * 1024))
                A('s_mov_b32 s31, %d' % ((32 * (n // 3) + 8 * i) * 8192))
                VQ.op(n, 'buffer_load_dwordx4 v8, %s, s31 offen lds' % sr(12 + 4 * (n % 3), 4))
        for n in range(NS):
            dma(n)
        A('v_lshrrev_b32 v5, 5, v1')
        A('v_add_u32 v5, s33, v5')
        A('v_mul_u32_u24 v10, %d, v5' % (NS * 2048))
        A('v_bfe_u32 v5, v1, 4, 1')
        A('v_bfe_u32 v6, v1, 2, 2')
        A('v_lshl_add_u32 v5, v5, 3, v6')
        A('v_lshl_add_u32 v10, v5, 7, v10')
        A('s_lshl_b32 s32, s32, 1')
        A('v_xor_b32 v6, s32, v6')
        A('v_lshl_add_u32 v10, v6, 5, v10')
        A('v_and_b32 v6, 3, v1')
        A('v_lshl_add_u32 v10, v6, 3, v10')
        A('v_xor_b32 v11, 32, v10')
        for n0 in range(0, 54, GR):
            VQ.wait(n0 + GR - 1)
            A('s_barrier')
            for n in range(n0 - GR + NS, n0 + NS):
                if NS <= n < 54:
                    dma(n)
            for n in range(n0, n0 + GR):
                for t in range(2):
                    for u in range(2):
                        A('ds_read_b64_tr_b16 %s, v%d offset:%d' % (wreg(2 * n + t, 108, u), 10 + t, (n % NS) * 2048 + u * 512))
            A('s_waitcnt lgkmcnt(0)')
        G.ts()
        G.wait_ready('v6', 'v7')
        A('v_lshlrev_b32 v4, 7, v1')
        for i in range(4):
            A('s_mov_b32 s48, %d' % (F_XN * 128 + i * 8192))
            G.spin('v4', 'v5', '1', 23, WS, 's48')
        A('s_mov_b32 %s, s37' % S_U)
        A('s_mul_i32 %s, s37, %d' % (S_DST, SEG_QKV))
        A('s_lshl_b32 s33, s36, 21')
        A('s_add_u32 %s, %s, s33' % (S_DST, S_DST))
        A('s_lshl_b32 s50, %s, 11' % S_W)
        A('s_add_u32 %s, %s, s50' % (S_DST, S_DST))
        A('s_add_u32 %s, %s, 0x%x' % (S_DST, S_DST, W_QKV))
        A('s_add_u32 s50, s50, 8192')
        A('s_mul_i32 %s, s37, %d' % (S_SRC, SEG_XN))
        A('s_mul_i32 s33, %s, 9216' % S_W)
        A('s_add_u32 %s, %s, s33' % (S_SRC, S_SRC))
        A('s_add_u32 %s, %s, 0x%x' % (S_SRC, S_SRC, W_XN))
        A('s_lshl_b32 s35, s36, 1')
        A('s_add_u32 s35, s35, s37')
        A('s_lshl_b32 s35, s35, 2')
        A('s_add_u32 s35, s35, %s' % S_W)
        A('s_lshr_b32 %s, s35, 2' % S_FLG)
        A('s_add_u32 %s, %s, %d' % (S_FLG, S_FLG, F_QKV))
        A('s_lshl_b32 %s, %s, 5' % (S_FLG, S_FLG))
        A('s_add_u32 %s, %s, %s' % (S_FLG, S_FLG, S_W))
        A('s_lshl_b32 %s, %s, 2' % (S_FLG, S_FLG))
        a, b = 8, 32
        A('s_mov_b32 s52, %s' % G.fbits(G.LOG2E / math.sqrt(128.0)))
        A('s_mov_b32 s53, s52')

        def scale(r, n):
            for i in range(r, r + n, 2):
                A('v_pk_mul_f32 %s, %s, s[52:53]' % (vr(i, 2), vr(i, 2)))

        def st(VQ, r, so, off):
            VQ.op('st', 'buffer_store_dwordx4 %s, v0, %s, %s offen offset:%d sc1' % (vr(r, 4), WS, so, off))

        def mid(j, VQ):
            if j == 19:
                return [lambda: [cvt(a + i, a + 2 * i) for i in range(2)], lambda: [cvt(a + i, a + 2 * i) for i in range(2, 4)],
                        lambda: st(VQ, a, S_DST, 0), lambda: A('s_add_u32 s49, %s, s50' % S_DST)]
            if j == 20:
                return [lambda: scale(a + 8, 4), lambda: scale(a + 12, 4)]
            if j == 21:
                return [lambda: [cvt(a + 8 + i, a + 8 + 2 * i) for i in range(2)], lambda: [cvt(a + 8 + i, a + 8 + 2 * i) for i in range(2, 4)],
                        lambda: st(VQ, a + 8, 's49', 0)]
            if j == 22:
                return [lambda: [cvt(a + 16 + i, a + 16 + 2 * i) for i in range(2)], lambda: [cvt(a + 20 + i, a + 20 + 2 * i) for i in range(2)]]
            return []

        def epi(VQ):
            for m, so in ((0, S_DST), (8, 's49')):
                if m:
                    scale(b + m, 8)
                for i in range(4):
                    cvt(b + m + i, b + m + 2 * i)
                st(VQ, b + m, so, 1024)
            for t in range(2):
                for i in range(2):
                    cvt(a + 18 + 4 * t + i, b + 16 + 4 * t + 2 * i)
                st(VQ, a + 16 + 4 * t, 's49', 2048 + 1024 * t)
        gemm('QKV', 18, 6, 2, 9, 9216, 65536, 2, 2 * SEG_XN, 2 * SEG_QKV, [], 7, 6, 4, (4, 5), epi, mid)

    def role_f1():
        A('s_lshl_b32 s35, s36, 1')
        A('s_add_u32 s35, s35, s37')
        A('s_mov_b32 s38, s36')
        A('s_cmp_ge_u32 s35, 64')
        A('s_cbranch_scc1 F1_NL')
        ln1()
        A.label('F1_NL')
        G.srd(12, G.P_WG, 576 * 9216)
        G.srd(16, G.P_WU, 576 * 9216)
        w_lane(9216, 'N', 'N')
        A('s_lshl_b32 s34, s38, 2')
        A('s_add_u32 s34, s34, %s' % S_W)
        A('s_lshl_b32 s33, s34, 6')
        A('v_add_u32 v8, s33, v8')
        units = []
        for k in range(18):
            for m in range(2):
                units.append((sr(12 + 4 * m, 4), 'v8', 0, k, [(k * 4 + 2 * m + t, 'v10', 8 * t) for t in range(2)]))
        load_weights(units, 72, 9216, 'N', OPT['d1'])
        G.ts()
        G.wait_ready('v6', 'v7')
        A('s_mov_b32 %s, 0' % S_U)
        A('s_mul_i32 %s, s37, 144' % S_DST)
        A('s_add_u32 %s, %s, s34' % (S_DST, S_DST))
        A('s_lshl_b32 %s, %s, 10' % (S_DST, S_DST))
        A('s_add_u32 %s, %s, 0x%x' % (S_DST, S_DST, W_ACT))
        A('s_mul_i32 %s, s37, 18432' % S_SRC)
        A('s_mul_i32 s33, %s, 4480' % S_W)
        A('s_add_u32 %s, %s, s33' % (S_SRC, S_SRC))
        A('s_add_u32 %s, %s, 0x%x' % (S_SRC, S_SRC, W_HN))
        A('s_mul_i32 %s, s37, 160' % S_FLG)
        A('s_add_u32 %s, %s, s34' % (S_FLG, S_FLG))
        A('s_add_u32 %s, %s, %d' % (S_FLG, S_FLG, F_F1))
        A('s_lshl_b32 %s, %s, 7' % (S_FLG, S_FLG))
        A('s_lshl_b32 s33, s37, 5')
        A('s_add_u32 s33, s33, %d' % F_LN2)
        A('v_min_u32 v4, 11, v1')
        A('v_add_u32 v4, s33, v4')
        A('v_lshlrev_b32 v4, 7, v4')
        A('s_mov_b32 s50, %s' % G.fbits(-G.LOG2E))

        def epi(VQ):
            g, u, t = 8, 16, 60
            for i in range(8):
                A('v_mul_f32 v%d, s50, v%d' % (t + i, g + i))
            for i in range(8):
                A('v_exp_f32 v%d, v%d' % (t + i, t + i))
            for i in range(8):
                A('v_add_f32 v%d, 1.0, v%d' % (t + i, t + i))
            for i in range(8):
                A('v_rcp_f32 v%d, v%d' % (t + i, t + i))
            for i in range(4):
                A('v_pk_mul_f32 %s, %s, %s' % (vr(g + 2 * i, 2), vr(g + 2 * i, 2), vr(u + 2 * i, 2)))
            for i in range(4):
                A('v_pk_mul_f32 %s, %s, %s' % (vr(g + 2 * i, 2), vr(g + 2 * i, 2), vr(t + 2 * i, 2)))
            for i in range(4):
                cvt(t + 8 + i, g + 2 * i)
            VQ.op('st', 'buffer_store_dwordx4 %s, v0, %s, %s offen sc1' % (vr(t + 8, 4), WS, S_DST))
        gemm('F1', 18, 4, 1, 5, 4480, 32768, 1, SEG_XN, SEG_ACT, [0, 5, 10, 14], 8, 8, 5, (), epi, late=10)

    def role_part(name):
        wo = name == 'WO'
        KS, NP = (32, NPW) if wo else (36, NPF)
        G.srd(12, G.P_WO if wo else G.P_WD, NP * KS * 32 * 1152)
        krow = 'D' if wo else 'N'
        w_lane(1152, krow, 'N')
        A('s_mul_i32 s33, s36, %d' % (KS * 32 * 1152))
        A('s_mul_i32 s34, s38, 384')
        A('s_add_u32 s33, s33, s34')
        A('s_lshr_b32 s34, %s, 1' % S_W)
        A('s_lshl_b32 s34, s34, 6')
        A('s_add_u32 s34, s34, s33')
        A('v_add_u32 v9, s34, v8')
        A('s_lshl_b32 s34, %s, 6' % S_W)
        A('s_add_u32 s34, s34, s33')
        A('v_add_u32 v8, s34, v8')
        A('s_and_b32 s34, %s, 1' % S_W)
        A('s_lshl_b32 s34, s34, 3')
        A('v_add_u32 v11, s34, v10')
        units = []
        for k in range(KS):
            units.append(('s[12:15]', 'v8', 0, k, [(k * 3 + t, 'v10', 8 * t) for t in range(2)]))
            units.append(('s[12:15]', 'v9', 256, k, [(k * 3 + 2, 'v11', 0)]))
        load_weights(units, KS * 3, 1152, krow, OPT['dw' if wo else 'd2'])
        G.ts()
        G.wait_ready('v6', 'v7')
        A('s_mov_b32 %s, 0' % S_U)
        A('s_mul_i32 s33, s37, %d' % NP)
        A('s_add_u32 s33, s33, s36')
        A('s_mul_i32 %s, s33, 18432' % S_DST)
        A('s_mul_i32 s34, s38, 6144')
        A('s_add_u32 %s, %s, s34' % (S_DST, S_DST))
        A('s_lshl_b32 s34, %s, 10' % S_W)
        A('s_add_u32 %s, %s, s34' % (S_DST, S_DST))
        A('s_add_u32 %s, %s, 0x%x' % (S_DST, S_DST, W_PW if wo else W_PF))
        A('s_lshl_b32 s34, %s, 9' % S_W)
        A('s_sub_u32 s34, 4096, s34')
        A('v_lshlrev_b32 v6, 3, v1')
        A('v_add_u32 v6, s34, v6')
        A('s_lshl_b32 s33, s33, 2')
        A('s_add_u32 s33, s33, %s' % S_W)
        A('s_mul_i32 %s, s33, %d' % (S_SRC, KS * 256))
        A('s_add_u32 %s, %s, 0x%x' % (S_SRC, S_SRC, W_O if wo else W_ACT))
        A('s_lshl_b32 s33, s36, 2')
        A('s_add_u32 s33, s33, %s' % S_W)
        A('s_lshl_b32 s34, s37, 2')
        A('s_add_u32 s34, s34, s38')
        A('s_lshl_b32 s34, s34, 4')
        A('s_add_u32 %s, s34, s33' % S_FLG)
        A('s_add_u32 %s, %s, %d' % (S_FLG, S_FLG, F_WO if wo else F_F2))
        A('s_lshl_b32 %s, %s, 7' % (S_FLG, S_FLG))
        if wo:
            A('s_lshl_b32 s33, s33, 3')
            A('s_add_u32 s33, s33, %d' % F_ATT)
            A('v_min_u32 v4, 7, v1')
        else:
            A('s_mul_i32 s33, s33, 9')
            A('s_mul_i32 s34, s37, 160')
            A('s_add_u32 s33, s33, s34')
            A('s_add_u32 s33, s33, %d' % F_F1)
            A('v_min_u32 v4, 8, v1')
        A('v_add_u32 v4, s33, v4')
        A('v_lshlrev_b32 v4, 7, v4')

        def epi(VQ):
            for i in range(4):
                cvt(60 + i, 8 + 2 * i)
            VQ.op('st', 'buffer_store_dwordx4 v[60:63], v0, %s, %s offen sc1' % (WS, S_DST))
            for i in range(2):
                cvt(64 + i, 16 + 2 * i)
            VQ.op('st', 'buffer_store_dwordx2 v[64:65], v6, %s, %s offen sc1' % (WS, S_DST))
        if wo:
            gemm(name, 32, 3, 1, 8, 8192, 32768, 1, SEG_O, SEG_PW, [0, 8, 16, 24], 12, 8, 6, (), epi, late=16)
        else:
            gemm(name, 36, 3, 1, 9, 9216, 65536, 1, SEG_ACT, SEG_PF, [0, 9, 18, 27], 12, 8, 6, (), epi, late=18)

    def role_am():
        SMF = 'v_smfmac_f32_16x16x64_bf16'
        IDX, SEL, MX, LX, AX, AQ = 6, 10, 12, 13, 13, 17
        QF, KF, VF, MF, SX, PB, O, KA, VA, KM, SM, PM, VP, OM = 24, 40, 72, 88, 124, 132, 136, 152, 160, 168, 184, 188, 192, 196
        L_QK, L_M, L_KM, L_VM = 0, 16384, 24576, 28672

        def FR(n, sub=None):
            k, b = ('a', 8 * n) if n < 32 else ('v', 224 + 8 * (n - 32))
            return vr(b, 8, k) if sub is None else vr(b + 2 * sub, 2, k)
        G.srd(16, G.P_WK, 576 * 8192)
        G.srd(20, G.P_WV, 576 * 8192)
        A('v_lshlrev_b32 v0, 4, v1')
        A('s_lshl_b32 s36, s35, 2')
        A('s_add_u32 s36, s36, %s' % S_W)
        A('s_mul_i32 s30, %s, 36864' % S_W)
        A('v_lshrrev_b32 v7, 2, v1')
        A('v_and_b32 v5, 3, v1')
        A('v_lshlrev_b32 v8, 13, v7')
        A('v_lshl_add_u32 v8, v5, 4, v8')
        A('s_lshl_b32 s33, s36, 6')
        A('v_add_u32 v8, s33, v8')
        VQ = Q(A, 'vmcnt')

        def dma(n):
            for i in range(4):
                A('s_add_u32 m0, s30, %d' % ((n % 9) * 4096 + i * 1024))
                if i:
                    A('s_add_u32 s31, s31, %d' % (16 * 8192))
                elif n % 9 < 8:
                    A('s_xor_b32 s31, %s, %d' % (S_W, n % 9))
                    A('s_lshl_b32 s31, s31, 19')
                else:
                    A('s_mov_b32 s31, %d' % (8 << 19))
                VQ.op(n, 'buffer_load_dwordx4 v8, %s, s31 offen lds' % ('s[16:19]', 's[20:23]')[n // 9])
        A('s_mov_b32 s51, 0x%x' % SENT)
        for i in range(4):
            A('v_mov_b32 v%d, s51' % (16 + i))
        A('s_mul_i32 s33, s36, 4608')
        A('s_add_u32 s33, s33, 0x%x' % W_ME)
        for o in (0, 1024, 2048, 3072, 3584):
            VQ.op('z', 'buffer_store_dwordx4 v[16:19], v0, %s, s33 offen offset:%d sc1' % (WS, o))
        for n in range(OPT['da']):
            dma(n)
        A('v_lshrrev_b32 v3, 5, v1')
        A('v_bfe_u32 v4, v1, 4, 1')
        A('v_lshl_add_u32 v9, v3, 3, v4')
        A('v_and_b32 v7, 3, v7')
        A('v_lshl_add_u32 v9, v7, 1, v9')
        A('v_lshlrev_b32 v9, 7, v9')
        A('v_lshl_add_u32 v9, v5, 3, v9')
        A('v_add_u32 v9, s30, v9')
        VQ.wait('z')
        A('s_barrier')
        A('s_cmp_lg_u32 %s, 0' % S_W)
        A('s_cbranch_scc1 AM_NA')
        A('v_mov_b32 v3, 1')
        A('v_mov_b32 v7, %d' % (D_CBAR * 4))
        A('s_mov_b64 exec, 1')
        A('buffer_atomic_add v3, v7, %s, 0 offen sc1' % G.DBG)
        A('s_mov_b64 exec, -1')
        A.label('AM_NA')
        for n in range(18):
            VQ.wait(n)
            for t in range(2):
                for z in range(2):
                    for u in range(2):
                        A('ds_read_b64_tr_b16 %s, v9 offset:%d' % (FR(2 * n + t, 2 * z + u), (n % 9) * 4096 + z * 2048 + u * 64 + t * 32))
            if n + OPT['da'] < 18:
                A('s_waitcnt lgkmcnt(0)')
                dma(n + OPT['da'])
        A('v_and_b32 v7, 8, v1')
        A('v_mov_b32 v%d, 0x4444' % IDX)
        A('v_mov_b32 v3, 0xeeee')
        A('v_cmp_ne_u32 vcc, 0, v7')
        A('v_cndmask_b32 v%d, v%d, v3, vcc' % (IDX, IDX))
        A('v_and_b32 v7, 7, v1')
        A('v_lshlrev_b32 v4, 2, v4')
        A('v_sub_u32 v7, v7, v4')
        A('v_mov_b32 v5, 0x3f80')
        A('v_mov_b32 v4, 0x3f800000')
        for i in range(2):
            A('v_mov_b32 v%d, 0' % (SEL + i))
            A('v_cmp_eq_u32 vcc, %d, v7' % (2 * i))
            A('v_cndmask_b32 v%d, v%d, v5, vcc' % (SEL + i, SEL + i))
            A('v_cmp_eq_u32 vcc, %d, v7' % (2 * i + 1))
            A('v_cndmask_b32 v%d, v%d, v4, vcc' % (SEL + i, SEL + i))
        A('v_and_b32 v7, 15, v1')
        A('v_lshrrev_b32 v5, 4, v1')
        A('v_lshlrev_b32 v5, 2, v5')
        A('v_sub_u32 v7, v7, v5')
        for r in range(4):
            A('v_cmp_le_i32 s[%d:%d], %d, v7' % (52 + 2 * r, 53 + 2 * r, r))
        A('v_mov_b32 v3, %s' % G.fbits(-1e9 * G.LOG2E))
        A('v_mov_b32 v%d, 0' % (PB + 2))
        A('v_mov_b32 v%d, 0' % (PB + 3))
        A('s_mov_b32 s50, %s' % G.fbits(G.LOG2E / math.sqrt(128.0)))
        A('s_add_u32 s45, s36, %d' % F_ATT)
        A('s_lshl_b32 s45, s45, 7')
        A('s_lshl_b32 s41, s35, 21')
        A('s_lshl_b32 s33, %s, 11' % S_W)
        A('s_add_u32 s41, s41, s33')
        A('s_add_u32 s41, s41, 0x%x' % W_QKV)
        A('s_add_u32 s46, s33, 8192')
        A('s_lshl_b32 s42, s36, 10')
        A('s_and_b32 s37, %s, 1' % S_W)
        A('s_lshl_b32 s33, s37, 17')
        A('s_add_u32 s42, s42, s33')
        A('s_add_u32 s42, s42, 0x%x' % W_O)
        A('s_lshl_b32 s43, %s, 10' % S_W)
        A('v_add_u32 v8, s43, v0')
        A('v_add_u32 v%d, s43, v8' % AQ)
        for j in range(1, 4):
            A('v_xor_b32 v%d, %d, v8' % (AX + j, 1024 * j))
            A('v_xor_b32 v%d, %d, v%d' % (AQ + j, 2048 * j, AQ))
        A('s_mov_b32 s43, 0x%x' % W_ME)
        A('s_and_b32 s44, s35, 8')
        A('s_mul_i32 s44, s44, 3')
        A('s_add_u32 s44, s44, s35')
        A('s_and_b32 s44, s44, 0x27')
        A('s_lshl_b32 s33, %s, 3' % S_W)
        A('s_add_u32 s44, s44, s33')
        A('s_lshl_b32 s44, s44, 7')
        A('s_mov_b32 s40, 0')
        A('s_waitcnt lgkmcnt(0)')
        A('v_and_b32 v9, 0x300, v0')
        A('v_and_b32 v4, 7, v1')
        A('v_lshl_add_u32 v9, v4, 5, v9')
        A('v_and_b32 v4, 8, v1')
        A('v_lshl_add_u32 v9, v4, 1, v9')
        G.ts()
        G.wait_ready('v4', 'v5')
        A('v_and_b32 v4, 0x23, v1')
        A('v_lshlrev_b32 v4, 2, v4')
        A('s_lshl_b32 s33, s35, 8')
        A('s_add_u32 s33, s33, %d' % (F_QKV * 128))
        G.spin('v4', 'v5', '2', 24, WS, 's33')
        A('v_mov_b32 v4, s44')
        A('s_barrier')

        def loads():
            o = ['s_add_u32 s47, s41, s46', 's_lshl_b32 m0, %s, 11' % S_W]
            o += ['buffer_load_dwordx4 v0, %s, s41 offen offset:%d sc1 lds' % (WS, T * 1024) for T in range(2)]
            o += ['s_add_u32 m0, m0, 8192', 's_xor_b32 s48, s47, 4096']
            o += ['buffer_load_dwordx4 v0, %s, s47 offen offset:%d sc1 lds' % (WS, T * 1024) for T in range(2)]
            o += ['buffer_load_dwordx4 %s, v0, %s, s%d offen offset:%d sc1' % (vr(VF + 4 * i, 4), WS, 47 + (i >> 1), 2048 + (i & 1) * 1024) for i in range(4)]
            return o + ['s_add_u32 s41, s41, %d' % SEG_QKV]

        def xred(r, t, op, sw):
            return ['v_mov_b32 v%d, v%d' % (t, r), 'v_permlane%d_swap_b32 v%d, v%d' % (sw, r, t), '%s v%d, v%d, v%d' % (op, r, r, t)]

        def emit(l):
            for x in l:
                A(x)

        def poll():
            A('v_mov_b32 v5, 0')
            A('s_mov_b64 exec, 1')
            A('buffer_atomic_or v5, v4, %s, s43 offen sc0 sc1' % WS)
            A('s_mov_b64 exec, -1')
        OWN = (MF + 32, MF, MF + 16)

        def mloads():
            A('s_lshl_b32 s47, %s, 10' % S_W)
            A('s_add_u32 s47, s47, s43')
            A('s_add_u32 s48, s47, 4096')
            A('buffer_load_dwordx4 %s, v9, %s, s47 offen sc1' % (vr(MF, 4), WS))
            A('s_add_u32 s47, s43, 8192')
            A('buffer_load_dwordx4 %s, v9, %s, s48 offen sc1' % (vr(MF + 16, 4), WS))
            A('buffer_load_dwordx4 %s, v9, %s, s47 offen sc1' % (vr(MF + 32, 4), WS))

        def bound():
            A('s_add_u32 s27, s27, 1')
            A('s_cmp_ge_u32 s27, %d' % G.SPIN_MAX)
            A('s_cbranch_scc1 FAIL')

        def step(T):
            P = 'AM%d_' % T
            A.label(P + 'L')
            A('v_readfirstlane_b32 s49, v5')
            A('s_cmp_ge_u32 s40, %d' % OPT['amd'])
            A('s_cselect_b32 s49, 0, s49')
            A('s_cmp_eq_u32 s49, s51')
            A('s_cbranch_scc1 %sN' % P)
            mloads()
            A('s_branch %sB' % P)
            A.label(P + 'N')
            poll()
            A.label(P + 'B')
            A('s_barrier')
            LQ = Q(A, 'lgkmcnt')
            for j in range(4):
                LQ.op(j, 'ds_read_b128 %s, v%d offset:%d' % (vr(QF + 4 * j, 4), AQ + j, L_QK + 1024 * T))
                for tk in range(T + 1):
                    LQ.op(j, 'ds_read_b128 %s, v%d offset:%d' % (vr(KF + 8 * j + 4 * tk, 4), AQ + j, L_QK + 8192 + 1024 * tk))
            for r in range(KA, KA + 16, 2):
                A('v_mov_b64 %s, 0' % vr(r, 2))
            for j in range(4):
                LQ.wait(j)
                for tk in range(T + 1):
                    d = vr(SX + 4 * tk, 4)
                    A('%s %s, %s, %s, %s' % (M32, d, vr(KF + 8 * j + 4 * tk, 4), vr(QF + 4 * j, 4), '0' if j == 0 else d))
            D = SX + 4 * T
            if T:
                A('v_max3_f32 v%d, v%d, v%d, v%d' % (MX, SX, SX + 1, SX + 2))
            for r in range(4):
                A('v_cndmask_b32 v%d, v3, v%d, s[%d:%d]' % (D + r, D + r, 52 + 2 * r, 53 + 2 * r))
            if T:
                A('v_max3_f32 v%d, v%d, v%d, v%d' % (MX, MX, SX + 3, D))
            A('v_max3_f32 v%d, v%d, v%d, v%d' % (MX, MX if T else D, D + 1, D + 2))
            A('v_max_f32 v%d, v%d, v%d' % (MX, MX, D + 3))
            emit(xred(MX, LX, 'v_max_f32', 16) + xred(MX, LX, 'v_max_f32', 32))
            for r in range(SX, D + 4):
                A('v_sub_f32 v%d, v%d, v%d' % (r, r, MX))
            for r in range(SX, D + 4):
                A('v_exp_f32 v%d, v%d' % (r, r))
            for i in range(2 * T + 2):
                cvt(PB + i, SX + 2 * i)
            sm = ['v_pk_add_f32 %s, %s, %s' % (vr(SX, 2), vr(SX, 2), vr(SX + 2 * i, 2)) for i in range(1, 2 * T + 2)]
            sm += ['v_add_f32 v%d, v%d, v%d' % (LX, SX, SX + 1)] + xred(LX, SX, 'v_add_f32', 16) + xred(LX, SX, 'v_add_f32', 32)
            for i in range(4):
                A('%s %s, %s, %s, 0' % (M32, vr(O + 4 * i, 4), vr(VF + 4 * i, 4), vr(PB, 4)))
                emit(sm[2 * i:2 * i + 2])
            emit(sm[8:])
            A('s_mov_b32 s27, 0')
            A('s_cmp_eq_u32 s49, s51')
            A('s_cbranch_scc1 %sP' % P)
            A('s_waitcnt vmcnt(3)')
            publish('s45', 's40')
            A('s_branch %sC' % P)
            A.label(P + 'X')
            for i, r in enumerate(x + j for x in OWN for j in range(4)):
                A('v_cmp_eq_u32 %s, s51, v%d' % ('s[38:39]' if i else 'vcc', r))
                if i:
                    A('s_or_b64 vcc, vcc, s[38:39]')
            A('s_cbranch_vccz %sK' % P)
            A('s_branch %sM' % P)
            A.label(P + 'P')
            A('s_waitcnt vmcnt(0)')
            A('v_readfirstlane_b32 s49, v5')
            A('s_cmp_eq_u32 s49, s51')
            A('s_cbranch_scc1 %sQ' % P)
            mloads()
            publish('s45', 's40')
            A('s_branch %sC' % P)
            A.label(P + 'Q')
            poll()
            publish('s45', 's40')
            A('s_waitcnt vmcnt(1)')
            A.label(P + 'R')
            A('v_readfirstlane_b32 s49, v5')
            A('s_cmp_lg_u32 s49, s51')
            A('s_cbranch_scc1 %sM' % P)
            poll()
            bound()
            A('s_waitcnt vmcnt(0)')
            A('s_branch %sR' % P)
            A.label(P + 'M')
            mloads()
            bound()
            A('s_waitcnt vmcnt(0)')
            A.label(P + 'C')
            a, b, c = MF, MF + 16, MF + 32
            mx = 'v_maximum3_f32 v%d, v%%d, v%%d, v%%d' % SM
            A('s_waitcnt vmcnt(3)')
            A('ds_write_b128 v8, %s offset:%d' % (vr(a, 4), L_M))
            A(mx % (a, a + 1, a + 2))
            A('s_waitcnt vmcnt(2)')
            A('ds_write_b128 v8, %s offset:%d' % (vr(b, 4), L_M + 4096))
            A(mx % (SM, a + 3, b))
            A(mx % (SM, b + 1, b + 2))
            A('s_waitcnt vmcnt(1)')
            A(mx % (SM, b + 3, c))
            A(mx % (SM, c + 1, c + 2))
            A('v_cmp_u_f32 vcc, v%d, v%d' % (SM, c + 3))
            A('s_cbranch_vccnz %sX' % P)
            A.label(P + 'K')
            G.ts()
            LQ = Q(A, 'lgkmcnt')
            F = {}

            def L(tag, text):
                return lambda: LQ.op(tag, text)
            oth = [(1, 0), (1, 4), (2, 0), (2, 4), (3, 0), (3, 4)]
            rd = [L(j + u, 'ds_read_b128 %s, v%d offset:%d' % (vr(MF + 4 * (j + u), 4), AX + j, L_M + 1024 * u)) for j, u in oth]
            ks = [(0, f, t) for f in (8, 0, 4, 1, 5, 2, 6) for t in range(2)] + [(0, f, t) for t in range(2) for f in (3, 7)]
            vs = [(1, f, t) for f in (8, 0, 4, 1, 5, 2, 6) for t in range(2)] + [(1, f, t) for t in range(2) for f in (3, 7)]
            seq = ks[:6] + vs[:2] + ks[6:] + vs[2:4] + ['T0'] + vs[4:5] + ['T1'] + vs[5:8] + ['S0'] + vs[8:16] + ['S1', 'S2'] + vs[16:17] + ['S3'] + vs[17:]
            F[0] = ['s_waitcnt lgkmcnt(0)', 's_barrier'] + rd[:1]
            F[1], F[2] = rd[1:4], rd[4:] + ['s_add_u32 s40, s40, 1']
            ld = loads() + ['s_add_u32 s43, s43, %d' % SEG_ME, poll]
            for i in range(0, len(ld), 2):
                F[3 + i // 2] = ld[i:i + 2]
            ck = [lambda r=KA + 4 * t + i, q=KA + 4 * t + 2 * i: cvt(r, q) for t in range(2) for i in range(2)]
            cm = [lambda i=i: cvt(KM + i, KM + 2 * i) for i in range(4)]
            F[20], F[21], F[22] = ck[:1], ck[1:2], ck[2:]
            F[25], F[26] = cm[:2], cm[2:]
            F[27] = [L('kw', 'ds_write_b128 v8, %s offset:%d' % (vr(KM, 4), L_KM))]
            F[32] = [lambda: LQ.wait('kw'), 's_barrier']
            F[33] = [L('k%d' % j, 'ds_read_b128 %s, v%d offset:%d' % (vr(KM + 4 * j, 4), AX + j, L_KM)) for j in range(1, 4)]
            F[39] = [lambda: cvt(VA, VA)]
            F[40] = [lambda: cvt(VA + 1, VA + 2)]
            for i, x in enumerate(seq):
                if x[0] == 'T':
                    t = int(x[1])
                    A('%s %s, %s, %s, 0' % (M16, vr(KM + 4 * t, 4), vr(KA + 4 * t, 2), vr(SEL, 2)))
                elif x[0] == 'S':
                    j = int(x[1])
                    LQ.wait('k%d' % j)
                    A('%s %s, %s, %s, %s' % (M32, vr(SM, 4), vr(KM + 4 * j, 4), vr(QF + 4 * j, 4), vr(SM, 4) if j else '0'))
                else:
                    kind, f, t = x
                    LQ.wait(f)
                    A('%s %s, %s, %s, v%d' % (SMF, vr((KA, VA)[kind] + 4 * t, 4), vr(MF + 4 * f, 4), FR(18 * kind + 2 * f + t), IDX))
                for y in F.pop(i, []):
                    y() if callable(y) else A(y)
            assert not F
            s, m, a = SM, SX, SX + 2
            emit(['v_max3_f32 v%d, v%d, v%d, v%d' % (m, s, s + 1, s + 2), 'v_max_f32 v%d, v%d, v%d' % (m, m, s + 3)])
            x = xred(m, a, 'v_max_f32', 16)
            A(x[0])
            cvt(VA + 2, VA + 4)
            cvt(VA + 3, VA + 6)
            A('ds_write_b128 v8, %s offset:%d' % (vr(VA, 4), L_VM))
            emit(x[1:])
            emit(['v_mul_f32 v%d, s50, v%d' % (m, m), 'v_max_f32 v%d, v%d, v%d' % (m, m, MX)])
            emit(['v_fma_f32 v%d, v%d, s50, -v%d' % (r, r, m) for r in range(s, s + 4)])
            A('v_sub_f32 v%d, v%d, v%d' % (a, MX, m))
            emit(['v_exp_f32 v%d, v%d' % (r, r) for r in range(s, s + 4)])
            A('s_waitcnt lgkmcnt(0)')
            A('s_barrier')
            A('ds_read_b128 %s, v%d offset:%d' % (vr(VP, 4), AX + 1, L_VM))
            A('v_exp_f32 v%d, v%d' % (a, a))
            cvt(PM, s)
            cvt(PM + 1, s + 2)

            def pv(i):
                A('%s %s, %s, %s, 0' % (M16, vr(OM + 4 * i, 4), vr((VA, VP)[i >> 1] + 2 * (i & 1), 2), vr(PM, 2)))
            A('v_pk_add_f32 %s, %s, %s' % (vr(s, 2), vr(s, 2), vr(s + 2, 2)))
            A('v_add_f32 v%d, v%d, v%d' % (m, s, s + 1))
            pv(0)
            x = xred(m, a + 1, 'v_add_f32', 16)
            A(x[0])
            pv(1)
            emit(x[1:])
            emit(['v_fmac_f32 v%d, v%d, v%d' % (m, a, LX), 'v_rcp_f32 v%d, v%d' % (m, m)])
            A('s_waitcnt lgkmcnt(0)')
            pv(2)
            A('v_mul_f32 v%d, v%d, v%d' % (a, a, m))
            pv(3)
            A('s_xor_b32 s47, s42, 1024')
            for j in range(2):
                rs = range(8 * j, 8 * j + 8, 2)
                emit(['v_pk_mul_f32 %s, %s, %s op_sel_hi:[1,0]' % (vr(O + r, 2), vr(O + r, 2), vr(a, 2)) for r in rs])
                emit(['v_pk_fma_f32 %s, %s, %s, %s op_sel_hi:[1,0,1]' % (vr(O + r, 2), vr(OM + r, 2), vr(m, 2), vr(O + r, 2)) for r in rs])
                for i in range(4):
                    cvt(KM + 4 * j + i, O + 8 * j + 2 * i)
                A('buffer_store_dwordx4 %s, v0, %s, %s offen sc1' % (vr(KM + 4 * j, 4), WS, ('s42', 's47')[j]))
            A('s_add_u32 s42, s42, %d' % SEG_O)
            A('s_waitcnt vmcnt(2)')
            A('s_cmp_lt_u32 s40, 64')
            A('s_cbranch_scc1 %sL' % P)
        emit(loads())
        poll()
        A('s_waitcnt vmcnt(0)')
        A('s_cmp_eq_u32 s37, 0')
        A('s_cbranch_scc1 AM0_L')
        step(1)
        A('s_branch AM_E')
        step(0)
        A.label('AM_E')
        A('s_waitcnt vmcnt(0)')
        publish('s45', 's40')

    A('s_sub_u32 s32, %s, 1' % S_X)
    A('s_cmp_lt_u32 %s, 6' % S_T)
    A('s_cbranch_scc1 R_TRIP')
    A('s_sub_u32 s33, %s, 6' % S_T)
    A('s_lshr_b32 s36, s33, 1')
    A('s_mul_i32 s36, s36, 7')
    A('s_add_u32 s36, s36, s32')
    A('s_and_b32 s37, s33, 1')
    A('s_cmp_lt_u32 s33, 18')
    A('s_cbranch_scc1 R_PAIR')
    A('s_sub_u32 s38, s33, 18')
    A('s_add_u32 s34, s32, 14')
    A('s_add_u32 s36, s32, 61')
    A('s_mul_i32 s35, s32, 6')
    A('s_add_u32 s35, s35, s38')
    A('s_add_u32 s33, s32, 3')
    A('s_min_u32 s33, s33, 4')
    A('s_sub_u32 s35, s35, s33')
    A('s_cmp_lt_u32 s32, 2')
    A('s_cselect_b32 s33, 3, 2')
    A('s_cmp_ge_u32 s38, s33')
    A('s_cbranch_scc1 R_SMALL')
    A('s_cmp_lt_u32 s32, 2')
    A('s_cbranch_scc1 R_TRIP2')
    A.label('R_PAIR')
    A('s_cmp_lt_u32 s36, 32')
    A('s_cbranch_scc1 R_QKV')
    A('s_sub_u32 s36, s36, 32')
    role_f1()
    G.finish()
    A.label('R_TRIP')
    A('s_cmp_ge_u32 %s, 3' % S_T)
    A('s_cselect_b32 s34, 7, 0')
    A('s_cselect_b32 s38, 3, 0')
    A('s_sub_u32 s38, %s, s38' % S_T)
    A('s_add_u32 s34, s34, s32')
    A.label('R_TRIP2')
    if OPT['pre']:
        A('s_cmp_eq_u32 s38, 1')
        A('s_cselect_b32 s12, s%d, s%d' % (G.P_WK, G.P_WQ))
        A('s_cselect_b32 s13, s%d, s%d' % (G.P_WK + 1, G.P_WQ + 1))
        A('s_cmp_eq_u32 s38, 2')
        A('s_cselect_b32 s12, s%d, s12' % G.P_WV)
        A('s_cselect_b32 s13, s%d, s13' % (G.P_WV + 1))
        A('s_mov_b32 s14, %d' % (576 * 8192))
        A('s_mov_b32 s15, 0x20000')
        A('v_lshrrev_b32 v5, 4, v1')
        A('v_and_b32 v6, 15, v1')
        A('v_lshlrev_b32 v6, 4, v6')
        A('v_lshl_add_u32 v7, v5, 10, v6')
        A('v_lshl_add_u32 v6, v5, 13, v6')
        A('s_lshl_b32 s30, s34, 2')
        A('s_add_u32 s30, s30, %s' % S_W)
        A('s_mul_i32 s30, s30, %d' % (9 * 8192))
        A('s_add_u32 s31, s30, 4096')
        for i in range(18):
            A('buffer_load_dwordx4 %s, v7, s[12:15], s30 offen offset:256' % vr(12 + 4 * i, 4))
            A('s_add_u32 s30, s30, 4096')
        for i in range(3):
            A('buffer_load_dwordx4 %s, v6, s[12:15], s31 offen offset:3840' % vr(84 + 4 * i, 4))
            A('s_add_u32 s31, s31, %d' % (3 * 8192))
        A('s_waitcnt vmcnt(0)')
    A('s_bfe_u32 s37, s34, 0x10001')
    A('s_lshr_b32 s36, s34, 2')
    A('s_bitcmp1_b32 s34, 0')
    A('s_cbranch_scc1 R_WO')
    role_part('F2')
    G.finish()
    A.label('R_WO')
    role_part('WO')
    G.finish()
    A.label('R_QKV')
    role_qkv()
    role_fin()
    G.finish()
    A.label('R_SMALL')
    A('s_mul_i32 s33, s35, 52')
    A('s_lshr_b32 s33, s33, 8')
    A('s_mul_i32 s34, s33, 5')
    A('s_add_u32 s34, s34, 4')
    A('s_cmp_eq_u32 s34, s35')
    A('s_cbranch_scc0 R_AM')
    A('s_mov_b32 s35, s33')
    role_ln2()
    G.finish()
    A.label('R_AM')
    A('s_sub_u32 s35, s35, s33')
    role_am()
    G.finish()
```

```python
import sys, math, struct
sys.path.insert(0, 'gen')
from asmlib import *
from layout import *

OPT = dict(win=8, la=3, cx=0, pre=1, lt=0, dq=20, d1=20, d2=20, dw=20, da=9, ts=0, ts0=6, chain=8, only=0, mixed=0, st=0, two=0, slow=0, dl=0, dm=0, pl=13, x=0, w1=0, dn=0, h1=4, h2=13, hq=3, pb=99, xl=0, mi=4, ml=2, t0=0, amd=62,
           pa1=3, pa2=7, ph=20, pe=16, bq=41, bk=47, bp=52, px=46, ps=51, h0=1, bo=1, nr=3, r0=12, r1=14, p0=3, p1=6, cr=0, sm=0, fr=0, rm=0,
           nk=6, ia2=-1, ih=5, nm=5, m1=1, s1=-1, s2=-1, nc=1, ms=0, np=3, xo=1, r3=18, ik=10, pe2=25, mg=2, bl=2, xb=1, vl=1, r2=16, cw=0, vf=2)
for a in sys.argv[2:]:
    k, v = a.split('=')
    OPT[k] = int(v, 0)

A = Asm()
WS, DBG, SA, SB, SC = 's[4:7]', 's[8:11]', 's[12:15]', 's[16:19]', 's[20:23]'
S_W, S_X, S_T, S_SPIN = 's24', 's25', 's26', 's27'
P_X, P_MEM, P_WQ, P_WK, P_WV, P_WO, P_WG, P_WU, P_WD, P_OUT, P_DBG, P_WS = 64, 66, 68, 70, 72, 74, 80, 82, 84, 86, 88, 90
SPIN_MAX = 400000
N_READY = 18
LOG2E = 1.4426950408889634


def fbits(x):
    return '0x%08x' % struct.unpack('<I', struct.pack('<f', x))[0]


def srd(d, p, size):
    A('s_mov_b32 s%d, s%d' % (d, p))
    A('s_mov_b32 s%d, s%d' % (d + 1, p + 1))
    A('s_mov_b32 s%d, 0x%x' % (d + 2, size))
    A('s_mov_b32 s%d, 0x20000' % (d + 3))


V_TS = 'v2'


def ts_init():
    if OPT['ts']:
        A('v_mov_b32 %s, 0' % V_TS)
        A('s_mov_b32 s63, 0')


def ts(real=True):
    if OPT['ts']:
        A('%s s[60:61]' % ('s_memrealtime' if (real and OPT['ts'] == 1) else 's_memtime'))
        A('s_waitcnt lgkmcnt(0)')
        A('s_mov_b32 s62, m0')
        A('s_mov_b32 m0, s63')
        A('v_writelane_b32 %s, s60, m0' % V_TS)
        A('s_mov_b32 m0, s62')
        A('s_add_u32 s63, s63, 1')
        A('s_min_u32 s63, s63, 63')


def dump_ts(vlane):
    A('s_lshl_b32 s60, %s, 5' % S_X)
    A('s_add_u32 s60, s60, %s' % S_T)
    A('s_lshl_b32 s60, s60, 2')
    A('s_add_u32 s60, s60, %s' % S_W)
    A('s_lshl_b32 s60, s60, 8')
    A('s_add_u32 s60, s60, 0x%x' % W_TS)
    A('v_lshlrev_b32 v9, 2, %s' % vlane)
    A('buffer_store_dword %s, v9, %s, s60 offen' % (V_TS, WS))


def finish():
    if OPT['ts']:
        ts()
        dump_ts('v1')
    A('s_endpgm')


def spin(vaddr, vtmp, need, code, srdname=WS, soff='0'):
    L, D = A.newlabel('SP'), A.newlabel('SD')
    A('s_mov_b32 %s, 0' % S_SPIN)
    A.label(L)
    A('buffer_load_dword %s, %s, %s, %s offen sc1' % (vtmp, vaddr, srdname, soff))
    A('s_waitcnt vmcnt(0)')
    A('v_cmp_gt_u32 vcc, %s, %s' % (need, vtmp))
    A('s_cbranch_vccz %s' % D)
    A('s_add_u32 %s, %s, 1' % (S_SPIN, S_SPIN))
    A('s_cmp_lt_u32 %s, %d' % (S_SPIN, SPIN_MAX))
    A('s_cbranch_scc1 %s' % L)
    A('s_movk_i32 %s, %d' % (S_SPIN, code))
    A('s_branch FAIL')
    A.label(D)


def wait_ready(v0, v1):
    A('v_mov_b32 %s, %d' % (v0, D_READY * 4))
    spin(v0, v1, str(N_READY), 1, DBG)


def publish(vaddr, vtmp, sval):
    A('v_mov_b32 %s, %s' % (vtmp, sval))
    A('s_mov_b64 exec, 1')
    A('buffer_store_dword %s, %s, %s, 0 offen sc1' % (vtmp, vaddr, WS))
    A('s_mov_b64 exec, -1')


def role_chain_stub():
    wait_ready('v6', 'v7')
    A('s_lshl_b32 s34, %s, 2' % S_T)
    A('s_add_u32 s34, s34, %s' % S_W)
    A('s_lshl_b32 s34, s34, 2')
    A('v_mov_b32 v9, s34')
    publish('v9', 'v12', '64')


def prologue():
    A('s_cmp_ge_u32 s2, 256')
    A('s_cbranch_scc1 EXIT')
    A('s_load_dwordx16 s[64:79], s[0:1], 0')
    A('s_load_dwordx8 s[80:87], s[0:1], 64')
    A('s_load_dwordx4 s[88:91], s[0:1], 96')
    A('v_and_b32 v1, 63, v0')
    A('v_lshrrev_b32 v3, 6, v0')
    A('v_readfirstlane_b32 %s, v3' % S_W)
    A('s_getreg_b32 s28, hwreg(HW_REG_XCC_ID, 0, 4)')
    A('s_sub_u32 s28, s28, %d' % OPT['cx'])
    A('s_and_b32 s28, s28, 7')
    ts_init()
    A('s_waitcnt lgkmcnt(0)')
    srd(4, P_WS, WS_SIZE)
    srd(8, P_DBG, 256)
    ts()
    A('s_cmp_lg_u32 %s, 0' % S_W)
    A('s_cbranch_scc1 P_WAIT')
    A('s_lshr_b32 s29, s2, 5' if OPT['mixed'] else 's_mov_b32 s29, s28')
    A('s_mov_b32 s30, 0')
    A.label('P_TRY')
    A('s_lshl_b32 s31, s29, %d' % (2 + OPT['la']))
    A('v_mov_b32 v3, s31')
    A('v_mov_b32 v4, 1')
    A('s_mov_b64 exec, 1')
    A('buffer_atomic_add v4, v3, %s, 0 offen sc0 sc1' % DBG)
    A('s_waitcnt vmcnt(0)')
    A('s_mov_b64 exec, -1')
    A('v_readfirstlane_b32 %s, v4' % S_T)
    A('s_cmp_lt_u32 %s, 32' % S_T)
    A('s_cbranch_scc1 P_GOT')
    A('s_add_u32 s29, s29, 1')
    A('s_and_b32 s29, s29, 7')
    A('s_add_u32 s30, s30, 1')
    A('s_cmp_lt_u32 s30, 8')
    A('s_cbranch_scc1 P_TRY')
    A('s_mov_b32 s29, 8')
    A.label('P_GOT')
    A('s_lshl_b32 s31, s29, 8')
    A('s_add_u32 s31, s31, %s' % S_T)
    A('v_mov_b32 v3, 0')
    A('v_mov_b32 v4, s31')
    A('ds_write_b32 v3, v4')
    A('s_waitcnt lgkmcnt(0)')
    A('s_branch P_JOIN')
    A.label('P_WAIT')
    A('s_cmp_ge_u32 s2, %d' % N_READY)
    A('s_cbranch_scc1 P_JOIN')
    A('s_cmp_lg_u32 %s, 1' % S_W)
    A('s_cbranch_scc1 P_JOIN')
    A('v_mov_b32 v4, 0')
    A('v_mov_b32 v5, 0')
    A('v_mov_b32 v6, 0')
    A('v_mov_b32 v7, 0')
    A('v_lshlrev_b32 v3, 7, v1')
    A('s_lshl_b32 s31, s2, 13')
    A('s_add_u32 s31, s31, 0x%x' % W_FLAGS)
    A('buffer_store_dwordx4 v[4:7], v3, %s, s31 offen sc1' % WS)
    A('v_mov_b32 v3, %d' % (D_READY * 4))
    A('v_mov_b32 v8, 1')
    A('s_waitcnt vmcnt(0)')
    A('s_mov_b64 exec, 1')
    A('buffer_atomic_add v8, v3, %s, 0 offen sc1' % DBG)
    A('s_mov_b64 exec, -1')
    A.label('P_JOIN')
    A('s_barrier')
    A('v_mov_b32 v3, 0')
    A('ds_read_b32 v4, v3')
    A('s_waitcnt lgkmcnt(0)')
    A('v_readfirstlane_b32 s31, v4')
    A('s_lshr_b32 %s, s31, 8' % S_X)
    A('s_and_b32 %s, s31, 255' % S_T)
    A('s_barrier')
    ts()


def main():
    me = sys.modules[__name__]
    prologue()
    A('s_cmp_eq_u32 %s, 0' % S_X)
    A('s_cbranch_scc1 R_CHAIN')
    A('s_cmp_gt_u32 %s, 7' % S_X)
    A('s_cbranch_scc1 EXIT')
    if OPT['only']:
        A('s_cmp_gt_u32 %s, 4' % S_X)
        A('s_cbranch_scc1 EXIT')
        A('s_lshl_b32 s30, %s, 21' % S_T)
        A('s_lshl_b32 s31, %s, 12' % S_X)
        A('s_add_u32 s30, s30, s31')
        A('s_add_u32 s30, s30, 0x%x' % (W_QKV + 4096))
        A('v_lshlrev_b32 v6, 4, v0')
        for i in range(64):
            A('buffer_load_dwordx4 %s, v6, %s, s30 offen' % (vr(8 + 4 * (i & 15), 4), WS))
            A('s_add_u32 s30, s30, %d' % SEG_QKV)
            if i & 15 == 15:
                A('s_sub_u32 s30, s30, %d' % (16 * SEG_QKV))
                A('s_waitcnt vmcnt(0)')
                for k in range(16):
                    A('buffer_store_dwordx4 %s, v6, %s, s30 offen sc1' % (vr(8 + 4 * k, 4), WS))
                    A('s_add_u32 s30, s30, %d' % SEG_QKV)
                A('s_waitcnt vmcnt(0)')
        A('s_cmp_lg_u32 %s, 1' % S_X)
        A('s_cbranch_scc1 EXIT')
        A('s_cmp_lg_u32 %s, 0' % S_T)
        A('s_cbranch_scc1 EXIT')
        wait_ready('v6', 'v7')
        A('v_lshlrev_b32 v6, 7, v1')
        A('s_lshl_b32 s30, %s, 2' % S_W)
        A('s_add_u32 s30, s30, %d' % (F_QKV * 128))
        A('v_add_u32 v6, s30, v6')
        A('v_mov_b32 v7, 64')
        A('buffer_store_dword v7, v6, %s, 0 offen sc1' % WS)
        A('s_endpgm')
    else:
        import workers
        workers.roles(me)
    A.label('R_CHAIN')
    if OPT['chain']:
        import importlib
        importlib.import_module('chain%d' % OPT['chain']).role_chain(me)
    else:
        role_chain_stub()
        finish()
    A.label('FAIL')
    A('s_mov_b64 exec, 1')
    A('v_mov_b32 v3, %d' % (D_ERR * 4))
    A('v_mov_b32 v4, %s' % S_SPIN)
    A('buffer_store_dword v4, v3, %s, 0 offen sc1' % DBG)
    A.label('EXIT')
    A('s_endpgm')
    lines, nn = fix_hazards(A.lines)
    ref = open('cdna_kernels/%s.s.ref' % NAME).read()
    head = ref[:ref.index(NAME + '_kernel:')]
    head = head.replace('grid=(4608,1,1) block=(256,1,1) lds=0', 'grid=(256,1,1) block=(256,1,1) lds=163840')
    tail = ref[ref.index('.section .rodata'):].replace('next_free_vgpr 256', 'next_free_vgpr 512')
    with open(sys.argv[1], 'w') as f:
        f.write(head + NAME + '_kernel:\n' + '\n'.join(l if l.endswith(':') else '    ' + l for l in lines) + '\n' + tail)
    print('lines', len(lines), 'nop states', nn)


if __name__ == '__main__':
    main()
```

```python
import re

REG_RE = re.compile(r'^(v|a|s)(?:(\d+)|\[(\d+):(\d+)\])$')
TRANS = ('v_exp_', 'v_log_', 'v_rcp_', 'v_rsq_', 'v_sqrt_', 'v_sin_', 'v_cos_')


def regs_of(tok):
    tok = tok.strip()
    if tok.startswith('-'):
        tok = tok[1:]
    if tok.startswith('|') and tok.endswith('|'):
        tok = tok[1:-1]
    if tok == 'vcc':
        return {('s', 106), ('s', 107)}
    if tok == 'vcc_lo':
        return {('s', 106)}
    if tok == 'vcc_hi':
        return {('s', 107)}
    if tok == 'exec':
        return {('s', 126), ('s', 127)}
    if tok == 'exec_lo':
        return {('s', 126)}
    if tok == 'exec_hi':
        return {('s', 127)}
    if tok == 'm0':
        return {('s', 124)}
    m = REG_RE.match(tok)
    if not m:
        return set()
    k = m.group(1)
    if m.group(2) is not None:
        return {(k, int(m.group(2)))}
    return {(k, i) for i in range(int(m.group(3)), int(m.group(4)) + 1)}


EXEC = {('s', 126), ('s', 127)}
VCC = {('s', 106), ('s', 107)}
M0 = {('s', 124)}


def vec(rs):
    return {r for r in rs if r[0] in 'va'}


def sca(rs):
    return {r for r in rs if r[0] == 's'}


class Ins:
    def __init__(self, text):
        self.text = text
        t = text.split(';')[0].strip()
        self.label = None
        self.kind = 'other'
        self.w = set()
        self.r = set()
        self.states = 1
        self.target = None
        self.uncond = False
        if t.endswith(':'):
            self.label = t[:-1]
            self.kind = 'label'
            self.states = 0
            return
        if not t or t.startswith('.'):
            self.kind = 'dir'
            self.states = 0
            return
        parts = t.split(None, 1)
        op = parts[0]
        self.op = op
        rest = parts[1] if len(parts) > 1 else ''
        ops = []
        for i, x in enumerate(rest.split(',')):
            x = x.strip()
            ops.append(x)
        mods = ''
        if ops:
            sp = ops[-1].split(None, 1)
            if sp:
                ops[-1] = sp[0]
                mods = sp[1] if len(sp) > 1 else ''
        full = rest
        self.mods = full
        R = [regs_of(x.split()[0]) if x else set() for x in ops]
        self.dpp = ('row_' in full or 'quad_perm' in full or 'wave_' in full or op.endswith('_dpp'))
        if op.startswith('v_mfma') or op.startswith('v_smfmac'):
            self.kind = 'mfma'
            self.passes = 8 if '32x32' in op else 4
            self.D = R[0]
            self.w = set(R[0])
            if op.startswith('v_smfmac'):
                self.C = R[0]
                self.AB = R[1] | R[2] | R[3]
            else:
                self.C = R[3]
                self.AB = R[1] | R[2]
            self.r = self.C | self.AB
        elif op.startswith('v_'):
            self.kind = 'valu'
            self.trans = op.startswith(TRANS)
            if op.startswith('v_permlane') or op.startswith('v_swap'):
                self.w = R[0] | R[1]
                self.r = R[0] | R[1]
            elif op.startswith('v_cmpx'):
                self.w = set(EXEC) | R[0]
                self.r = set().union(*R[1:])
            elif op.startswith(('v_add_co', 'v_sub_co', 'v_addc_co', 'v_subb_co', 'v_subrev_co', 'v_div_scale')):
                self.w = R[0] | R[1]
                self.r = set().union(*R[2:])
            elif op == 'v_nop':
                pass
            else:
                self.w = set(R[0])
                self.r = set().union(*R[1:]) if len(R) > 1 else set()
                if op.startswith(('v_fmac', 'v_mac', 'v_dot2c', 'v_writelane', 'v_pk_fmac')):
                    self.r |= R[0]
        elif op.startswith(('buffer_', 'global_')):
            self.kind = 'vmem'
            allr = set().union(*R) if R else set()
            self.lds = bool(re.search(r'\blds\b', full)) or '_lds_' in op
            self.wide = set()
            if 'load' in op and not self.lds:
                self.w = set(R[0])
                self.r = set().union(*R[1:])
            elif 'atomic' in op:
                self.r = allr
                if re.search(r'\bsc0\b', full):
                    self.w = set(R[0])
            else:
                self.r = allr
                if 'store' in op and ('x4' in op or 'x3' in op):
                    self.wide = R[0] if op.startswith('buffer_') else R[1]
            if self.lds:
                self.r |= M0
        elif op.startswith('ds_'):
            self.kind = 'ds'
            if op.startswith(('ds_read', 'ds_bpermute', 'ds_permute', 'ds_swizzle')) or '_rtn' in op:
                self.w = set(R[0])
                self.r = set().union(*R[1:])
            else:
                self.r = set().union(*R)
        elif op.startswith('s_'):
            self.kind = 'salu'
            if op == 's_nop':
                self.states = int(ops[0], 0) + 1
            elif op.startswith('s_cbranch') or op == 's_branch':
                self.target = ops[0]
                self.uncond = op == 's_branch'
            elif op == 's_endpgm':
                self.uncond = True
            elif op.startswith(('s_cmp', 's_waitcnt', 's_barrier', 's_setprio', 's_sleep', 's_bitcmp')):
                self.r = set().union(*R) if R else set()
            else:
                self.w = set(R[0]) if R else set()
                self.r = set().union(*R[1:]) if len(R) > 1 else set()
                if 'saveexec' in op:
                    self.w |= EXEC
        else:
            raise ValueError('unknown instr: ' + t)


def need(p, c):
    n = 0
    if p.kind == 'valu':
        pw_v = vec(p.w)
        pw_s = sca(p.w)
        if c.kind == 'mfma':
            if pw_v & c.r:
                n = max(n, 2)
            if pw_s & EXEC:
                n = max(n, 4)
        elif c.kind == 'valu':
            if c.dpp and (pw_v & c.r):
                n = max(n, 2)
            if c.dpp and (pw_s & EXEC):
                n = max(n, 5)
            if c.op.startswith('v_permlane'):
                if pw_v & c.r:
                    n = max(n, 2)
                if pw_s & EXEC:
                    n = max(n, 4)
            if c.op.startswith(('v_readlane', 'v_readfirstlane', 'v_writelane')):
                if pw_v & c.r:
                    n = max(n, 1)
                if pw_s & sca(c.r):
                    n = max(n, 4)
                if pw_s & EXEC:
                    n = max(n, 4)
            if p.trans and (pw_v & c.r):
                n = max(n, 1)
            if pw_s & sca(c.r):
                n = max(n, 2)
            if 'op_sel' in p.mods or 'sdwa' in p.op:
                if pw_v & (c.r | c.w):
                    n = max(n, 1)
            if c.op.startswith('v_div_fmas') and (pw_s & VCC):
                n = max(n, 4)
        elif c.kind == 'vmem':
            if pw_s & sca(c.r):
                n = max(n, 5)
    elif p.kind == 'mfma':
        big = p.passes == 8
        if c.kind == 'mfma':
            if p.D & c.C:
                if not (p.D == c.C and p.op == c.op):
                    n = max(n, 10 if big else 6)
            if p.D & c.AB:
                n = max(n, 12 if big else 8)
            if (p.D & c.D) and not (p.D & c.C):
                n = max(n, 10 if big else 6)
        elif c.kind in ('valu', 'vmem', 'ds'):
            if p.D & (c.r | c.w):
                n = max(n, 12 if big else 8)
            if c.kind == 'valu' and (p.C & c.w):
                n = max(n, 7 if big else 3)
    elif p.kind == 'vmem':
        if p.wide:
            if c.kind == 'valu' and (p.wide & c.w):
                n = max(n, 2)
            elif c.kind in ('mfma', 'vmem', 'ds') and (p.wide & c.w):
                n = max(n, 1)
    elif p.kind == 'salu':
        if (p.w & M0) and c.kind == 'vmem' and c.lds:
            n = max(n, 1)
    return n


MAXW = 12


def fix_hazards(lines):
    ins = [Ins(l) for l in lines]
    prev = None
    for x in ins:
        x.prev = prev
        prev = x
    labels = {x.label: x for x in ins if x.kind == 'label'}
    srcs = {}
    for x in ins:
        if x.target is not None:
            srcs.setdefault(id(labels[x.target]), []).append(x)
    out = []
    total = 0
    for c in ins:
        if c.kind in ('valu', 'mfma', 'vmem', 'ds'):
            worst = 0
            stack = [(c.prev, 0, None)]
            seen = set()
            while stack:
                p, dist, md = stack.pop()
                while p is not None and dist < MAXW:
                    if (id(p), dist, md) in seen:
                        break
                    seen.add((id(p), dist, md))
                    if p.kind == 'mfma':
                        if md is not None:
                            dist = max(dist, md + p.passes)
                        md = dist
                    if p.kind == 'label':
                        for sx in srcs.get(id(p), ()):
                            stack.append((sx, dist, md))
                        k = p.prev
                        while k is not None and k.kind == 'dir':
                            k = k.prev
                        if k is not None and k.uncond:
                            break
                        p = p.prev
                        continue
                    if p.kind == 'dir':
                        p = p.prev
                        continue
                    nd = need(p, c)
                    if nd - dist > worst:
                        worst = nd - dist
                    dist += p.states
                    p = p.prev
            if worst > 0:
                nop = Ins('s_nop %d' % (worst - 1))
                nop.prev = c.prev
                c.prev = nop
                out.append(nop)
                total += worst
        out.append(c)
    return [x.text for x in out], total


class Asm:
    def __init__(self):
        self.lines = []
        self.uid = 0

    def __call__(self, text):
        for l in text.split('\n'):
            l = l.strip()
            if l.startswith('s_waitcnt') and self.lines and self.lines[-1].startswith('s_waitcnt'):
                d = {}
                for k, v in re.findall(r'(\w+)\((\d+)\)', self.lines.pop() + ' ' + l):
                    d[k] = min(int(v), d.get(k, 99))
                l = 's_waitcnt ' + ' '.join('%s(%d)' % x for x in sorted(d.items(), reverse=True))
            if l:
                self.lines.append(l)

    def label(self, name):
        self.lines.append(name + ':')

    def newlabel(self, base='L'):
        self.uid += 1
        return '%s_%d' % (base, self.uid)


def vr(b, n=1, k='v'):
    return '%s%d' % (k, b) if n == 1 else '%s[%d:%d]' % (k, b, b + n - 1)


def ar(b, n=1):
    return vr(b, n, 'a')


def sr(b, n=1):
    return vr(b, n, 's')
```

```python
import math
from asmlib import *
from layout import *
from chain import Q

M16 = 'v_mfma_f32_16x16x16_bf16'
M32 = 'v_mfma_f32_16x16x32_bf16'


def roles(G):
    A, WS, OPT = G.A, G.WS, G.OPT
    S_W, S_X, S_T = G.S_W, G.S_X, G.S_T

    def cvt(d, s, s2=None):
        A('v_cvt_pk_bf16_f32 v%d, v%d, v%d' % (d, s, s + 1 if s2 is None else s2))

    def publish(soff, sval, q=None):
        A('v_mov_b32 v7, %s' % sval)
        A('s_mov_b64 exec, 1')
        t = 'buffer_store_dword v7, off, %s, %s sc1' % (WS, soff)
        if q is None:
            A(t)
        else:
            q.op('pub', t)
        A('s_mov_b64 exec, -1')

    def wreg(f, nf, sub=None):
        k, b = ('a', 4 * f) if f < 64 else ('v', 256 - 4 * (nf - f))
        return vr(b, 4, k) if sub is None else vr(b + 2 * sub, 2, k)

    def load_weights(units, nf, stride, krow, NS=20):
        VQ = Q(A, 'vmcnt')
        A('s_mul_i32 s30, %s, %d' % (S_W, 20 * 2048))

        def dma(n):
            sd, vo, col, k, _ = units[n]
            for i in range(2):
                A('s_add_u32 m0, s30, %d' % ((n % NS) * 2048 + i * 1024))
                A('s_mov_b32 s31, %d' % ((32 * k + 16 * i) * stride + col))
                VQ.op(n, 'buffer_load_dwordx4 %s, %s, s31 offen lds' % (vo, sd))
        for n in range(min(NS, len(units))):
            dma(n)
        GR = 3 if NS > 5 else 1
        usep = 256 if krow == 'N' else 1024
        for n0 in range(0, len(units), GR):
            ns = list(range(n0, min(n0 + GR, len(units))))
            VQ.wait(ns[-1])
            for n in ns:
                for f, va, off in units[n][4]:
                    for u in range(2):
                        A('ds_read_b64_tr_b16 %s, %s offset:%d' % (wreg(f, nf, u), va, (n % NS) * 2048 + u * usep + off))
            A('s_waitcnt lgkmcnt(0)')
            for n in ns:
                if n + NS < len(units):
                    dma(n + NS)

    def w_lane(stride, krow, ccol):
        A('v_lshrrev_b32 v7, 2, v1')
        A('v_mul_u32_u24 v8, %d, v7' % stride)
        A('v_and_b32 v6, 3, v1')
        A('v_lshl_add_u32 v8, v6, 4, v8')
        A('v_lshrrev_b32 v5, 4, v1')
        A('v_and_b32 v7, 3, v7')
        A('v_lshl_add_u32 v7, v5, %d, v7' % (3 if krow == 'N' else 2))
        A('v_lshlrev_b32 v10, 6, v7')
        A('v_lshl_add_u32 v10, v6, %d, v10' % (4 if ccol == 'N' else 3))
        A('s_mul_i32 s30, %s, %d' % (S_W, 20 * 2048))
        A('v_add_u32 v10, s30, v10')

    S_U, S_DST, S_SRC, S_LDS, S_NEED, S_FLG, S_PUB = ['s%d' % i for i in range(40, 47)]

    def gemm(name, KS, NT, TS, ND, WPART, BUF, STEP, dsrc, ddst, checks, pubk, NB, PF, swaps, epi, mid=None, late=None):
        NF = KS * TS
        nf = KS * NT
        ACC = 8
        RING = ACC + 4 * NT * TS
        always = not checks
        A('v_lshlrev_b32 v0, 4, v1')
        A('v_mov_b32 v3, v0')
        A('v_mov_b32 v5, 0')
        A('s_mul_i32 %s, %s, %d' % (S_LDS, S_W, WPART))
        A('s_mov_b32 %s, 0' % S_PUB)
        A('s_barrier')

        def dma(i, VQ):
            if i % 4 == 0:
                A('s_add_u32 m0, %s, %d' % (S_LDS, i * 1024))
                if i:
                    A('s_add_u32 s47, %s, %d' % (S_SRC, i * 1024))
            VQ.op('dma', 'buffer_load_dwordx4 v0, %s, %s offen offset:%d sc1 lds' % (WS, 's47' if i >= 4 else S_SRC, (i % 4) * 1024))
            if i == ND - 1:
                A('s_add_u32 %s, %s, %d' % (S_SRC, S_SRC, dsrc))
                A('s_xor_b32 %s, %s, %d' % (S_LDS, S_LDS, BUF))

        def poll(VQ):
            VQ.op('poll', 'buffer_load_dword v5, v4, %s, 0 offen sc1' % WS)

        def body(j0, VQ, LQ, issued, nst):
            pieces = {}
            if issued is not None:
                gap = max(1, min(3, (NF - 1 - j0) // ND))
                for i in range(ND):
                    pieces.setdefault(min(j0 + i * gap, NF - 1), []).append(i)
                pollk = max(max(pieces) + 1, NF - (700 // (16 * NT)))
            for j in range(j0, NF):
                T, k = divmod(j, KS)
                if issued is None and j in (checks or [0]) and (j > j0 or j == 0):
                    if always:
                        A('s_cmp_lt_u32 %s, 64' % S_NEED)
                        A('s_cbranch_scc1 %s_V%d' % (name, j))
                    else:
                        A('s_cbranch_vccz %s_V%d' % (name, j))
                    variants.append((j, list(VQ.q), list(LQ.q)))
                    if not always:
                        poll(VQ)
                LQ.wait('f%d' % j)
                b = vr(RING + 4 * (j % NB), 4)
                fill = []
                if j + PF < NF:
                    fill.append(lambda j=j: LQ.op('f%d' % (j + PF), 'ds_read_b128 %s, v3 offset:%d' % (vr(RING + 4 * ((j + PF) % NB), 4), (j + PF) * 1024)))
                for i in pieces.get(j, ()):
                    fill.append(lambda i=i: dma(i, VQ))
                if j == pubk:
                    def pub():
                        L = A.newlabel('NP')
                        A('s_cmp_eq_u32 %s, 0' % S_PUB)
                        A('s_cbranch_scc1 %s' % L)
                        VQ.wait('st')
                        publish(S_FLG, S_U)
                        A('s_mov_b32 %s, 0' % S_PUB)
                        A.label(L)
                        VQ.q.append('pub?')
                    fill.append(pub)
                if issued is not None and not always and j == pollk:
                    fill.append(lambda: poll(VQ))
                if mid:
                    fill += mid(j, VQ)
                if issued is None and (j + 1) in checks:
                    fill.append(lambda: A('v_cmp_ge_u32 vcc, %s, v5' % S_NEED))
                for t in range(NT):
                    d = vr(ACC + 4 * (T * NT + t), 4)
                    w = wreg(k * NT + t, nf)
                    x, y = (b, w) if t in swaps else (w, b)
                    A('%s %s, %s, %s, %s' % (M32, d, x, y, '0' if k == 0 else d))
                    n = 1 if t < NT - 1 else len(fill)
                    for f in fill[:n]:
                        f()
                    fill = fill[n:]
            A('v_xor_b32 v3, %d, v3' % BUF)
            epi(VQ)
            A('s_add_u32 %s, %s, %d' % (S_DST, S_DST, ddst))
            A('s_add_u32 %s, %s, %d' % (S_U, S_U, STEP))

        def strict(VQ, tag):
            VQ.q = [x for x in VQ.q if x != 'pub?']
            VQ.wait(tag)

        variants = []
        A.label(name + '_S')
        if not always:
            A('s_add_u32 s48, %s, 1' % S_U)
            G.spin('v4', 'v5', 's48', 20)
        VQ = Q(A, 'vmcnt')
        for i in range(ND):
            dma(i, VQ)
        A('s_waitcnt vmcnt(0)')
        A.label(name + '_L')
        A('s_barrier')
        if OPT['ts']:
            L = A.newlabel('TS')
            if STEP == 1:
                A('s_cmp_lt_u32 %s, %d' % (S_U, OPT['ts0']))
                A('s_cbranch_scc1 %s' % L)
            G.ts()
            A.label(L)
        LQ = Q(A, 'lgkmcnt')
        for j in range(PF):
            LQ.op('f%d' % j, 'ds_read_b128 %s, v3 offset:%d' % (vr(RING + 4 * (j % NB), 4), j * 1024))
        A('s_add_u32 %s, %s, %d' % (S_NEED, S_U, STEP))
        if not always:
            A('s_cmp_lt_u32 %s, 64' % S_NEED)
            A('s_cselect_b32 %s, %s, -1' % (S_NEED, S_NEED))
            A('v_cmp_ge_u32 vcc, %s, v5' % S_NEED)
        VQ = Q(A, 'vmcnt')
        VQ.q = ['st']
        body(0, VQ, LQ, None, 0)
        if not always:
            poll(VQ)
        strict(VQ, 'st')
        publish(S_FLG, S_U)
        A('s_cmp_ge_u32 %s, 64' % S_U)
        A('s_cbranch_scc1 %s_E' % name)
        A('s_branch %s_S' % name)
        for j, vq, lq in variants:
            A.label('%s_V%d' % (name, j))
            VQ = Q(A, 'vmcnt')
            VQ.q = vq
            LQ = Q(A, 'lgkmcnt')
            LQ.q = lq
            body(j, VQ, LQ, j, 0)
            if late is not None and j >= late:
                A('s_waitcnt vmcnt(0)')
                publish(S_FLG, S_U)
            else:
                strict(VQ, 'dma')
                A('s_mov_b32 %s, 1' % S_PUB)
            A('s_branch %s_L' % name)
        A.label(name + '_E')
        G.ts()

    def red(r, t):
        A('v_add_f32_dpp v%d, v%d, v%d row_ror:8 row_mask:0xf bank_mask:0xf' % (r, r, r))
        A('v_mov_b32 v%d, v%d' % (t, r))
        A('v_permlane16_swap_b32 v%d, v%d' % (r, t))
        A('v_add_f32 v%d, v%d, v%d' % (r, r, t))
        A('v_mov_b32 v%d, v%d' % (t, r))
        A('v_permlane32_swap_b32 v%d, v%d' % (r, t))
        A('v_add_f32 v%d, v%d, v%d' % (r, r, t))

    def oct_lanes(vrow, vfrag, vhalf=None):
        A('v_and_b32 v7, 7, v1')
        A('v_bfe_u32 v6, v1, 3, 1')
        A('v_lshrrev_b32 v5, 4, v1')
        A('v_mul_u32_u24 %s, 1152, v7' % vrow)
        A('v_lshl_add_u32 %s, v6, 6, %s' % (vrow, vrow))
        A('v_lshl_add_u32 %s, v5, 4, %s' % (vrow, vrow))
        A('v_lshl_add_u32 v7, v5, 4, v7')
        A('v_lshlrev_b32 v6, 10, v6')
        A('v_lshl_add_u32 %s, v7, 4, v6' % vfrag)
        if vhalf:
            A('v_lshl_add_u32 %s, v7, 3, v6' % vhalf)

    def ln1():
        G.srd(20, G.P_X, 2048 * 1152)
        oct_lanes('v3', 'v4')
        A('s_lshl_b32 s36, s35, 2')
        A('s_add_u32 s36, s36, %s' % S_W)
        A('s_mul_i32 s32, s36, %d' % (8 * 1152))
        A('s_lshr_b32 s33, s36, 1')
        A('s_mul_i32 s33, s33, 18432')
        A('s_and_b32 s34, %s, 1' % S_W)
        A('s_lshl_b32 s34, s34, 7')
        A('s_add_u32 s33, s33, s34')
        A('s_add_u32 s33, s33, 0x%x' % W_XN)
        X, F = 16, 52
        for i in range(9):
            A('buffer_load_dwordx4 %s, v3, s[20:23], s32 offen offset:%d' % (vr(X + 4 * i, 4), i * 128))
        for i in range(9):
            A('s_waitcnt vmcnt(%d)' % (8 - i))
            for j in range(4):
                r = X + 4 * i + j
                A('v_lshlrev_b32 v%d, 16, v%d' % (F + 2 * (4 * i + j), r))
                A('v_and_b32 v%d, 0xffff0000, v%d' % (F + 2 * (4 * i + j) + 1, r))
            for j in range(4):
                p = F + 2 * (4 * i + j)
                acc = 8 + 2 * (j & 1)
                if i == 0 and j < 2:
                    A('v_pk_add_f32 %s, %s, %s' % (vr(acc, 2), vr(p, 2), vr(p + 4, 2)))
                elif i > 0:
                    A('v_pk_add_f32 %s, %s, %s' % (vr(acc, 2), vr(acc, 2), vr(p, 2)))
        if OPT['lt']:
            G.ts()
        A('v_pk_add_f32 v[8:9], v[8:9], v[10:11]')
        A('v_add_f32 v8, v8, v9')
        red(8, 9)
        A('v_mul_f32 v12, %s, v8' % G.fbits(-1.0 / 576))
        A('v_mov_b32 v13, v12')
        for i in range(36):
            p = F + 2 * i
            A('v_pk_add_f32 %s, %s, v[12:13]' % (vr(p, 2), vr(p, 2)))
        for i in range(36):
            p = F + 2 * i
            acc = 8 + 2 * (i & 1)
            if i < 2:
                A('v_pk_mul_f32 %s, %s, %s' % (vr(acc, 2), vr(p, 2), vr(p, 2)))
            else:
                A('v_pk_fma_f32 %s, %s, %s, %s' % (vr(acc, 2), vr(p, 2), vr(p, 2), vr(acc, 2)))
        A('v_pk_add_f32 v[8:9], v[8:9], v[10:11]')
        A('v_add_f32 v8, v8, v9')
        red(8, 9)
        A('v_mov_b32 v9, %s' % G.fbits(1e-5))
        A('v_fmac_f32 v9, %s, v8' % G.fbits(1.0 / 576))
        A('v_rsq_f32 v12, v9')
        A('v_mov_b32 v13, v12')
        for i in range(9):
            for j in range(4):
                p = F + 2 * (4 * i + j)
                A('v_pk_mul_f32 %s, %s, v[12:13]' % (vr(p, 2), vr(p, 2)))
            for j in range(4):
                cvt(X + 4 * i + j, F + 2 * (4 * i + j))
            if i and i % 2 == 0:
                A('s_add_u32 s33, s33, 4096')
            A('buffer_store_dwordx4 %s, v4, %s, s33 offen offset:%d sc1' % (vr(X + 4 * i, 4), WS, (i & 1) * 2048))
        if OPT['lt']:
            G.ts()
            A('s_waitcnt vmcnt(0)')
            G.ts()
        G.wait_ready('v6', 'v7')
        A('s_add_u32 s36, s36, %d' % F_XN)
        A('s_lshl_b32 s36, s36, 7')
        publish('s36', '1')
        G.ts()

    ID, RA, RB = 10, 12, 40

    def ident():
        A('v_and_b32 v7, 15, v1')
        A('v_lshrrev_b32 v6, 4, v1')
        A('v_lshlrev_b32 v6, 2, v6')
        A('v_sub_u32 v7, v7, v6')
        A('v_mov_b32 v5, 0x3f80')
        A('v_mov_b32 v6, 0x3f800000')
        for i in range(2):
            A('v_mov_b32 v%d, 0' % (ID + i))
            A('v_cmp_eq_u32 vcc, %d, v7' % (2 * i))
            A('v_cndmask_b32 v%d, v%d, v5, vcc' % (ID + i, ID + i))
            A('v_cmp_eq_u32 vcc, %d, v7' % (2 * i + 1))
            A('v_cndmask_b32 v%d, v%d, v6, vcc' % (ID + i, ID + i))

    def part_loads(VQ, np_, sbase):
        for n in range(np_):
            r = RB + 12 * (n + 1)
            if n:
                A('s_add_u32 %s, %s, 18432' % (sbase, sbase))
            for p in range(2):
                VQ.op((n + 1, p), 'buffer_load_dwordx4 %s, v8, %s, %s offen offset:%d sc1' % (vr(r + 4 * p, 4), WS, sbase, p * 2048))
            for i in range(2):
                VQ.op((n + 1, 2), 'buffer_load_dwordx2 %s, v9, %s, %s offen offset:%d sc1' % (vr(r + 8 + 2 * i, 2), WS, sbase, i * 512))

    def part_sum(VQ, np_):
        for n in range(np_ + 1):
            for p in range(3):
                VQ.wait((n, p))
                for i in range(2):
                    d = vr(RA + 8 * p + 4 * i, 4)
                    A('%s %s, %s, %s, %s' % (M16, d, vr(ID, 2), vr(RB + 12 * n + 4 * p + 2 * i, 2), '0' if n == 0 else d))

    def role_ln2():
        A('s_cmp_eq_u32 %s, 3' % S_W)
        A('s_cbranch_scc1 EXIT')
        G.srd(20, G.P_X, 2048 * 1152)
        ident()
        oct_lanes('v3', 'v8', 'v9')
        A('s_lshr_b32 s40, s35, 2')
        A('s_and_b32 s36, s35, 3')
        A('s_lshr_b32 s37, s36, 1')
        A('s_and_b32 s38, s36, 1')
        A('s_mul_i32 s32, s36, %d' % (8 * 1152))
        A('s_mul_i32 s33, %s, 384' % S_W)
        A('s_add_u32 s32, s32, s33')
        A('v_add_u32 v3, s32, v3')
        A('s_mul_i32 s33, %s, 6144' % S_W)
        A('s_lshl_b32 s34, s38, 7')
        A('s_add_u32 s34, s34, s33')
        A('v_add_u32 v8, s34, v8')
        A('s_lshl_b32 s34, s38, 6')
        A('s_add_u32 s34, s34, s33')
        A('s_add_u32 s34, s34, 4096')
        A('v_add_u32 v9, s34, v9')
        A('s_lshl_b32 s34, s37, 2')
        A('s_add_u32 s34, s34, %s' % S_W)
        A('s_lshl_b32 s34, s34, 4')
        A('s_add_u32 s34, s34, %d' % F_WO)
        A('v_min_u32 v4, 15, v1')
        A('v_add_u32 v4, s34, v4')
        A('v_lshlrev_b32 v4, 7, v4')
        A('s_lshl_b32 s45, s40, 1')
        A('s_add_u32 s45, s45, s38')
        A('s_mul_i32 s45, s45, 3')
        A('s_add_u32 s45, s45, %s' % S_W)
        A('s_lshl_b32 s34, s37, 5')
        A('s_add_u32 s45, s45, s34')
        A('s_add_u32 s45, s45, %d' % F_LN2)
        A('s_lshl_b32 s45, s45, 7')
        A('v_and_b32 v0, 7, v1')
        A('v_lshlrev_b32 v0, 3, v0')
        A('s_lshl_b32 s34, %s, 6' % S_W)
        A('s_mul_i32 s41, s37, %d' % (NPW * 18432))
        A('s_add_u32 s41, s41, 0x%x' % W_PW)
        A('s_mul_i32 s42, s37, 18432')
        G.wait_ready('v6', 'v7')
        A('v_add_u32 v6, s34, v0')
        A.label('LN2_L')
        VQ = Q(A, 'vmcnt')
        A('s_mul_i32 s43, s40, %d' % SEG_XN)
        for p in range(3):
            A('buffer_load_dwordx4 %s, v3, s[20:23], s43 offen offset:%d' % (vr(RB + 4 * p, 4), p * 128))
        A('s_mul_i32 s44, s40, %d' % SEG_PW)
        A('s_add_u32 s44, s44, s41')
        A('s_add_u32 s48, s40, 1')
        G.spin('v4', 'v5', 's48', 21)
        G.ts()
        part_loads(VQ, NPW, 's44')
        part_sum(VQ, NPW)
        A('s_add_u32 s43, s43, s42')
        A('s_add_u32 s44, s43, 0x%x' % W_HB)
        A('s_add_u32 s43, s43, 0x%x' % W_HN)
        A('s_add_u32 s46, s44, 4096')
        A('s_add_u32 s47, s43, 4096')
        t = RB + 12
        for i in range(3):
            A('v_pk_add_f32 %s, %s, %s' % (vr(t + 2 * i, 2), vr(RA + 2 * i, 2), vr(RA + 6 + 2 * i, 2)))
        for i in range(6):
            A('v_pk_add_f32 %s, %s, %s' % (vr(t + 2 * (i % 3), 2), vr(t + 2 * (i % 3), 2), vr(RA + 12 + 2 * i, 2)))
        A('v_pk_add_f32 %s, %s, %s' % (vr(t, 2), vr(t, 2), vr(t + 2, 2)))
        A('v_pk_add_f32 %s, %s, %s' % (vr(t, 2), vr(t, 2), vr(t + 4, 2)))
        A('v_add_f32 v%d, v%d, v%d' % (t, t, t + 1))
        for i in range(12):
            cvt(RB + i, RA + 2 * i)
        red(t, t + 1)
        A('v_mul_f32 v%d, %s, v%d' % (t + 8, G.fbits(1.0 / 192), t))
        A('v_mul_f32 v%d, %s, v%d' % (t + 6, G.fbits(-1.0 / 192), t))
        A('v_mov_b32 v%d, v%d' % (t + 7, t + 6))
        for i in range(12):
            A('v_pk_add_f32 %s, %s, %s' % (vr(RA + 2 * i, 2), vr(RA + 2 * i, 2), vr(t + 6, 2)))
        for i in range(12):
            a = vr(t + 2 * (i % 3), 2)
            p = vr(RA + 2 * i, 2)
            if i < 3:
                A('v_pk_mul_f32 %s, %s, %s' % (a, p, p))
            else:
                A('v_pk_fma_f32 %s, %s, %s, %s' % (a, p, p, a))
        A('v_pk_add_f32 %s, %s, %s' % (vr(t, 2), vr(t, 2), vr(t + 2, 2)))
        A('v_pk_add_f32 %s, %s, %s' % (vr(t, 2), vr(t, 2), vr(t + 4, 2)))
        A('v_add_f32 v%d, v%d, v%d' % (t + 9, t, t + 1))
        red(t + 9, t + 1)
        A('ds_write_b64 v6, %s' % vr(t + 8, 2))
        for p in range(3):
            A('buffer_store_dwordx4 %s, v8, %s, %s offen offset:%d sc1' % (vr(RB + 4 * p, 4), WS, 's44' if p < 2 else 's46', (p & 1) * 2048))
        A('s_waitcnt lgkmcnt(0)')
        A('s_barrier')
        for j in range(3):
            A('ds_read_b64 %s, v0 offset:%d' % (vr(t + 2 * j, 2), j * 64))
        A('v_xor_b32 v0, 256, v0')
        A('v_xor_b32 v6, 256, v6')
        A('s_waitcnt lgkmcnt(0)')
        m, v = t + 10, t + 11
        A('v_add_f32 v%d, v%d, v%d' % (m, t, t + 2))
        A('v_add_f32 v%d, v%d, v%d' % (v, t + 1, t + 3))
        A('v_add_f32 v%d, v%d, v%d' % (m, m, t + 4))
        A('v_add_f32 v%d, v%d, v%d' % (v, v, t + 5))
        A('v_mul_f32 v%d, %s, v%d' % (m, G.fbits(1.0 / 3), m))
        A('v_mul_f32 v%d, %s, v%d' % (v, G.fbits(1.0 / 192), v))
        for j in range(3):
            A('v_sub_f32 v%d, v%d, v%d' % (t + 2 * j, t + 2 * j, m))
        for j in range(3):
            A('v_fmac_f32 v%d, v%d, v%d' % (v, t + 2 * j, t + 2 * j))
        A('v_mov_b32 v%d, %s' % (t, G.fbits(1e-5)))
        A('v_fmac_f32 v%d, %s, v%d' % (t, G.fbits(1.0 / 3), v))
        A('v_rsq_f32 v%d, v%d' % (t, t))
        A('v_sub_f32 v%d, v%d, v%d' % (t + 2, t + 8, m))
        A('v_mov_b32 v%d, v%d' % (t + 1, t))
        A('v_mul_f32 v%d, v%d, v%d' % (t + 2, t + 2, t))
        A('v_mov_b32 v%d, v%d' % (t + 3, t + 2))
        H = RB + 24
        for p in range(3):
            for i in range(4):
                a = vr(RA + 8 * p + 2 * i, 2)
                A('v_pk_fma_f32 %s, %s, %s, %s' % (a, a, vr(t, 2), vr(t + 2, 2)))
            for i in range(4):
                cvt(H + 4 * p + i, RA + 8 * p + 2 * i)
            A('buffer_store_dwordx4 %s, v8, %s, %s offen offset:%d sc1' % (vr(H + 4 * p, 4), WS, 's43' if p < 2 else 's47', (p & 1) * 2048))
        A('s_add_u32 s40, s40, 2')
        A('s_waitcnt vmcnt(0)')
        publish('s45', 's40')
        G.ts()
        A('s_cmp_lt_u32 s40, 64')
        A('s_cbranch_scc1 LN2_L')

    def role_fin():
        G.srd(20, G.P_OUT, 2048 * 1152)
        ident()
        oct_lanes('v3', 'v0', 'v4')
        A('v_add_u32 v36, 4096, v4')
        A('v_min_u32 v4, 15, v1')
        A('v_lshlrev_b32 v4, 7, v4')
        A.label('FIN_L')
        A('s_mul_i32 s40, s35, 43691')
        A('s_lshr_b32 s40, s40, 19')
        A('s_mul_i32 s36, s40, 12')
        A('s_sub_u32 s36, s35, s36')
        A('s_and_b32 s37, s36, 3')
        A('s_lshr_b32 s36, s36, 2')
        A('s_lshr_b32 s38, s37, 1')
        A('s_and_b32 s39, s37, 1')
        A('s_mul_i32 s33, s36, 6144')
        A('s_lshl_b32 s34, s39, 7')
        A('s_add_u32 s34, s34, s33')
        A('v_add_u32 v8, s34, v0')
        A('s_lshl_b32 s34, s39, 6')
        A('s_add_u32 s34, s34, s33')
        A('v_add_u32 v9, s34, v36')
        A('s_lshl_b32 s34, s38, 2')
        A('s_add_u32 s34, s34, s36')
        A('s_lshl_b32 s34, s34, 11')
        A('s_add_u32 s34, s34, %d' % (F_F2 * 128))
        A('s_lshl_b32 s41, s40, 1')
        A('s_add_u32 s41, s41, s38')
        A('s_mul_i32 s43, s41, 18432')
        A('s_add_u32 s43, s43, 0x%x' % W_HB)
        A('s_add_u32 s46, s43, 4096')
        A('s_mul_i32 s44, s41, %d' % (NPF * 18432))
        A('s_add_u32 s44, s44, 0x%x' % W_PF)
        A('s_add_u32 s48, s40, 1')
        G.spin('v4', 'v5', 's48', 22, WS, 's34')
        G.ts()
        VQ = Q(A, 'vmcnt')
        for p in range(3):
            VQ.op((0, p), 'buffer_load_dwordx4 %s, v8, %s, %s offen offset:%d sc1' % (vr(RB + 4 * p, 4), WS, 's43' if p < 2 else 's46', (p & 1) * 2048))
        part_loads(VQ, NPF, 's44')
        A('s_lshl_b32 s41, s40, 2')
        A('s_add_u32 s41, s41, s37')
        A('s_mul_i32 s41, s41, %d' % (8 * 1152))
        A('s_mul_i32 s33, s36, 384')
        A('s_add_u32 s41, s41, s33')
        part_sum(VQ, NPF)
        for p in range(3):
            for i in range(4):
                cvt(RB + 4 * p + i, RA + 8 * p + 2 * i)
            A('buffer_store_dwordx4 %s, v3, s[20:23], s41 offen offset:%d' % (vr(RB + 4 * p, 4), p * 128))
        A('s_add_u32 s35, s35, 256')
        A('s_cmp_lt_u32 s35, 768')
        A('s_cbranch_scc1 FIN_L')

    def role_qkv():
        G.srd(12, G.P_WQ, 576 * 8192)
        G.srd(16, G.P_WK, 576 * 8192)
        G.srd(20, G.P_WV, 576 * 8192)
        NS, GR = 18, 3
        A('v_lshrrev_b32 v7, 3, v1')
        A('v_and_b32 v6, 3, v7')
        A('v_lshlrev_b32 v6, 1, v6')
        A('v_and_b32 v5, 7, v1')
        A('v_xor_b32 v6, v6, v5')
        A('v_lshlrev_b32 v8, 13, v7')
        A('v_lshl_add_u32 v8, v6, 4, v8')
        A('s_and_b32 s32, %s, 1' % S_W)
        A('s_and_b32 s33, %s, 2' % S_W)
        A('s_lshl_b32 s34, s36, 2')
        A('s_add_u32 s34, s34, s33')
        A('s_lshl_b32 s34, s34, 6')
        A('s_lshl_b32 s31, s32, 17')
        A('s_add_u32 s34, s34, s31')
        A('v_add_u32 v8, s34, v8')
        A('s_mul_i32 s30, %s, %d' % (S_W, NS * 2048))
        VQ = Q(A, 'vmcnt')

        def dma(n):
            for i in range(2):
                A('s_add_u32 m0, s30, %d' % ((n % NS) * 2048 + i * 1024))
                A('s_mov_b32 s31, %d' % ((32 * (n // 3) + 8 * i) * 8192))
                VQ.op(n, 'buffer_load_dwordx4 v8, %s, s31 offen lds' % sr(12 + 4 * (n % 3), 4))
        for n in range(NS):
            dma(n)
        A('v_lshrrev_b32 v5, 5, v1')
        A('v_add_u32 v5, s33, v5')
        A('v_mul_u32_u24 v10, %d, v5' % (NS * 2048))
        A('v_bfe_u32 v5, v1, 4, 1')
        A('v_bfe_u32 v6, v1, 2, 2')
        A('v_lshl_add_u32 v5, v5, 3, v6')
        A('v_lshl_add_u32 v10, v5, 7, v10')
        A('s_lshl_b32 s32, s32, 1')
        A('v_xor_b32 v6, s32, v6')
        A('v_lshl_add_u32 v10, v6, 5, v10')
        A('v_and_b32 v6, 3, v1')
        A('v_lshl_add_u32 v10, v6, 3, v10')
        A('v_xor_b32 v11, 32, v10')
        for n0 in range(0, 54, GR):
            VQ.wait(n0 + GR - 1)
            A('s_barrier')
            for n in range(n0 - GR + NS, n0 + NS):
                if NS <= n < 54:
                    dma(n)
            for n in range(n0, n0 + GR):
                for t in range(2):
                    for u in range(2):
                        A('ds_read_b64_tr_b16 %s, v%d offset:%d' % (wreg(2 * n + t, 108, u), 10 + t, (n % NS) * 2048 + u * 512))
            A('s_waitcnt lgkmcnt(0)')
        G.ts()
        G.wait_ready('v6', 'v7')
        A('v_lshlrev_b32 v4, 7, v1')
        for i in range(4):
            A('s_mov_b32 s48, %d' % (F_XN * 128 + i * 8192))
            G.spin('v4', 'v5', '1', 23, WS, 's48')
        A('s_mov_b32 %s, s37' % S_U)
        A('s_mul_i32 %s, s37, %d' % (S_DST, SEG_QKV))
        A('s_lshl_b32 s33, s36, 21')
        A('s_add_u32 %s, %s, s33' % (S_DST, S_DST))
        A('s_lshl_b32 s50, %s, 11' % S_W)
        A('s_add_u32 %s, %s, s50' % (S_DST, S_DST))
        A('s_add_u32 %s, %s, 0x%x' % (S_DST, S_DST, W_QKV))
        A('s_add_u32 s50, s50, 8192')
        A('s_mul_i32 %s, s37, %d' % (S_SRC, SEG_XN))
        A('s_mul_i32 s33, %s, 9216' % S_W)
        A('s_add_u32 %s, %s, s33' % (S_SRC, S_SRC))
        A('s_add_u32 %s, %s, 0x%x' % (S_SRC, S_SRC, W_XN))
        A('s_lshl_b32 s35, s36, 1')
        A('s_add_u32 s35, s35, s37')
        A('s_lshl_b32 s35, s35, 2')
        A('s_add_u32 s35, s35, %s' % S_W)
        A('s_lshr_b32 %s, s35, 2' % S_FLG)
        A('s_add_u32 %s, %s, %d' % (S_FLG, S_FLG, F_QKV))
        A('s_lshl_b32 %s, %s, 5' % (S_FLG, S_FLG))
        A('s_add_u32 %s, %s, %s' % (S_FLG, S_FLG, S_W))
        A('s_lshl_b32 %s, %s, 2' % (S_FLG, S_FLG))
        a, b = 8, 32
        A('s_mov_b32 s52, %s' % G.fbits(G.LOG2E / math.sqrt(128.0)))
        A('s_mov_b32 s53, s52')

        def scale(r, n):
            for i in range(r, r + n, 2):
                A('v_pk_mul_f32 %s, %s, s[52:53]' % (vr(i, 2), vr(i, 2)))

        def st(VQ, r, so, off):
            VQ.op('st', 'buffer_store_dwordx4 %s, v0, %s, %s offen offset:%d sc1' % (vr(r, 4), WS, so, off))

        def mid(j, VQ):
            if j == 19:
                return [lambda: [cvt(a + i, a + 2 * i) for i in range(2)], lambda: [cvt(a + i, a + 2 * i) for i in range(2, 4)],
                        lambda: st(VQ, a, S_DST, 0), lambda: A('s_add_u32 s49, %s, s50' % S_DST)]
            if j == 20:
                return [lambda: scale(a + 8, 4), lambda: scale(a + 12, 4)]
            if j == 21:
                return [lambda: [cvt(a + 8 + i, a + 8 + 2 * i) for i in range(2)], lambda: [cvt(a + 8 + i, a + 8 + 2 * i) for i in range(2, 4)],
                        lambda: st(VQ, a + 8, 's49', 0)]
            if j == 22:
                return [lambda: [cvt(a + 16 + i, a + 16 + 2 * i) for i in range(2)], lambda: [cvt(a + 20 + i, a + 20 + 2 * i) for i in range(2)]]
            return []

        def epi(VQ):
            for m, so in ((0, S_DST), (8, 's49')):
                if m:
                    scale(b + m, 8)
                for i in range(4):
                    cvt(b + m + i, b + m + 2 * i)
                st(VQ, b + m, so, 1024)
            for t in range(2):
                for i in range(2):
                    cvt(a + 18 + 4 * t + i, b + 16 + 4 * t + 2 * i)
                st(VQ, a + 16 + 4 * t, 's49', 2048 + 1024 * t)
        gemm('QKV', 18, 6, 2, 9, 9216, 65536, 2, 2 * SEG_XN, 2 * SEG_QKV, [], 7, 6, 4, (4, 5), epi, mid)

    def role_f1():
        A('s_lshl_b32 s35, s36, 1')
        A('s_add_u32 s35, s35, s37')
        A('s_mov_b32 s38, s36')
        A('s_cmp_ge_u32 s35, 64')
        A('s_cbranch_scc1 F1_NL')
        ln1()
        A.label('F1_NL')
        G.srd(12, G.P_WG, 576 * 9216)
        G.srd(16, G.P_WU, 576 * 9216)
        w_lane(9216, 'N', 'N')
        A('s_lshl_b32 s34, s38, 2')
        A('s_add_u32 s34, s34, %s' % S_W)
        A('s_lshl_b32 s33, s34, 6')
        A('v_add_u32 v8, s33, v8')
        units = []
        for k in range(18):
            for m in range(2):
                units.append((sr(12 + 4 * m, 4), 'v8', 0, k, [(k * 4 + 2 * m + t, 'v10', 8 * t) for t in range(2)]))
        load_weights(units, 72, 9216, 'N', OPT['d1'])
        G.ts()
        G.wait_ready('v6', 'v7')
        A('s_mov_b32 %s, 0' % S_U)
        A('s_mul_i32 %s, s37, 144' % S_DST)
        A('s_add_u32 %s, %s, s34' % (S_DST, S_DST))
        A('s_lshl_b32 %s, %s, 10' % (S_DST, S_DST))
        A('s_add_u32 %s, %s, 0x%x' % (S_DST, S_DST, W_ACT))
        A('s_mul_i32 %s, s37, 18432' % S_SRC)
        A('s_mul_i32 s33, %s, 4480' % S_W)
        A('s_add_u32 %s, %s, s33' % (S_SRC, S_SRC))
        A('s_add_u32 %s, %s, 0x%x' % (S_SRC, S_SRC, W_HN))
        A('s_mul_i32 %s, s37, 160' % S_FLG)
        A('s_add_u32 %s, %s, s34' % (S_FLG, S_FLG))
        A('s_add_u32 %s, %s, %d' % (S_FLG, S_FLG, F_F1))
        A('s_lshl_b32 %s, %s, 7' % (S_FLG, S_FLG))
        A('s_lshl_b32 s33, s37, 5')
        A('s_add_u32 s33, s33, %d' % F_LN2)
        A('v_min_u32 v4, 11, v1')
        A('v_add_u32 v4, s33, v4')
        A('v_lshlrev_b32 v4, 7, v4')
        A('s_mov_b32 s50, %s' % G.fbits(-G.LOG2E))

        def epi(VQ):
            g, u, t = 8, 16, 60
            for i in range(8):
                A('v_mul_f32 v%d, s50, v%d' % (t + i, g + i))
            for i in range(8):
                A('v_exp_f32 v%d, v%d' % (t + i, t + i))
            for i in range(8):
                A('v_add_f32 v%d, 1.0, v%d' % (t + i, t + i))
            for i in range(8):
                A('v_rcp_f32 v%d, v%d' % (t + i, t + i))
            for i in range(4):
                A('v_pk_mul_f32 %s, %s, %s' % (vr(g + 2 * i, 2), vr(g + 2 * i, 2), vr(u + 2 * i, 2)))
            for i in range(4):
                A('v_pk_mul_f32 %s, %s, %s' % (vr(g + 2 * i, 2), vr(g + 2 * i, 2), vr(t + 2 * i, 2)))
            for i in range(4):
                cvt(t + 8 + i, g + 2 * i)
            VQ.op('st', 'buffer_store_dwordx4 %s, v0, %s, %s offen sc1' % (vr(t + 8, 4), WS, S_DST))
        gemm('F1', 18, 4, 1, 5, 4480, 32768, 1, SEG_XN, SEG_ACT, [0, 5, 10, 14], 8, 8, 5, (), epi, late=10)

    def role_part(name):
        wo = name == 'WO'
        KS, NP = (32, NPW) if wo else (36, NPF)
        G.srd(12, G.P_WO if wo else G.P_WD, NP * KS * 32 * 1152)
        krow = 'D' if wo else 'N'
        w_lane(1152, krow, 'N')
        A('s_mul_i32 s33, s36, %d' % (KS * 32 * 1152))
        A('s_mul_i32 s34, s38, 384')
        A('s_add_u32 s33, s33, s34')
        A('s_lshr_b32 s34, %s, 1' % S_W)
        A('s_lshl_b32 s34, s34, 6')
        A('s_add_u32 s34, s34, s33')
        A('v_add_u32 v9, s34, v8')
        A('s_lshl_b32 s34, %s, 6' % S_W)
        A('s_add_u32 s34, s34, s33')
        A('v_add_u32 v8, s34, v8')
        A('s_and_b32 s34, %s, 1' % S_W)
        A('s_lshl_b32 s34, s34, 3')
        A('v_add_u32 v11, s34, v10')
        units = []
        for k in range(KS):
            units.append(('s[12:15]', 'v8', 0, k, [(k * 3 + t, 'v10', 8 * t) for t in range(2)]))
            units.append(('s[12:15]', 'v9', 256, k, [(k * 3 + 2, 'v11', 0)]))
        load_weights(units, KS * 3, 1152, krow, OPT['dw' if wo else 'd2'])
        G.ts()
        G.wait_ready('v6', 'v7')
        A('s_mov_b32 %s, 0' % S_U)
        A('s_mul_i32 s33, s37, %d' % NP)
        A('s_add_u32 s33, s33, s36')
        A('s_mul_i32 %s, s33, 18432' % S_DST)
        A('s_mul_i32 s34, s38, 6144')
        A('s_add_u32 %s, %s, s34' % (S_DST, S_DST))
        A('s_lshl_b32 s34, %s, 10' % S_W)
        A('s_add_u32 %s, %s, s34' % (S_DST, S_DST))
        A('s_add_u32 %s, %s, 0x%x' % (S_DST, S_DST, W_PW if wo else W_PF))
        A('s_lshl_b32 s34, %s, 9' % S_W)
        A('s_sub_u32 s34, 4096, s34')
        A('v_lshlrev_b32 v6, 3, v1')
        A('v_add_u32 v6, s34, v6')
        A('s_lshl_b32 s33, s33, 2')
        A('s_add_u32 s33, s33, %s' % S_W)
        A('s_mul_i32 %s, s33, %d' % (S_SRC, KS * 256))
        A('s_add_u32 %s, %s, 0x%x' % (S_SRC, S_SRC, W_O if wo else W_ACT))
        A('s_lshl_b32 s33, s36, 2')
        A('s_add_u32 s33, s33, %s' % S_W)
        A('s_lshl_b32 s34, s37, 2')
        A('s_add_u32 s34, s34, s38')
        A('s_lshl_b32 s34, s34, 4')
        A('s_add_u32 %s, s34, s33' % S_FLG)
        A('s_add_u32 %s, %s, %d' % (S_FLG, S_FLG, F_WO if wo else F_F2))
        A('s_lshl_b32 %s, %s, 7' % (S_FLG, S_FLG))
        if wo:
            A('s_lshl_b32 s33, s33, 3')
            A('s_add_u32 s33, s33, %d' % F_ATT)
            A('v_min_u32 v4, 7, v1')
        else:
            A('s_mul_i32 s33, s33, 9')
            A('s_mul_i32 s34, s37, 160')
            A('s_add_u32 s33, s33, s34')
            A('s_add_u32 s33, s33, %d' % F_F1)
            A('v_min_u32 v4, 8, v1')
        A('v_add_u32 v4, s33, v4')
        A('v_lshlrev_b32 v4, 7, v4')

        def epi(VQ):
            for i in range(4):
                cvt(60 + i, 8 + 2 * i)
            VQ.op('st', 'buffer_store_dwordx4 v[60:63], v0, %s, %s offen sc1' % (WS, S_DST))
            for i in range(2):
                cvt(64 + i, 16 + 2 * i)
            VQ.op('st', 'buffer_store_dwordx2 v[64:65], v6, %s, %s offen sc1' % (WS, S_DST))
        if wo:
            gemm(name, 32, 3, 1, 8, 8192, 32768, 1, SEG_O, SEG_PW, [0, 8, 16, 24], 12, 8, 6, (), epi, late=16)
        else:
            gemm(name, 36, 3, 1, 9, 9216, 65536, 1, SEG_ACT, SEG_PF, [0, 9, 18, 27], 12, 8, 6, (), epi, late=18)

    def role_am():
        SMF = 'v_smfmac_f32_16x16x64_bf16'
        IDX, SEL, MX, LX, AX, AQ = 6, 10, 12, 13, 13, 17
        QF, KF, VF, MF, SX, PB, O, KA, VA, KM, SM, PM, VP, OM = 24, 40, 72, 88, 124, 132, 136, 152, 160, 168, 184, 188, 192, 196
        L_QK, L_M, L_KM, L_VM = 0, 16384, 24576, 28672

        def FR(n, sub=None):
            k, b = ('a', 8 * n) if n < 32 else ('v', 224 + 8 * (n - 32))
            return vr(b, 8, k) if sub is None else vr(b + 2 * sub, 2, k)
        G.srd(16, G.P_WK, 576 * 8192)
        G.srd(20, G.P_WV, 576 * 8192)
        A('v_lshlrev_b32 v0, 4, v1')
        A('s_lshl_b32 s36, s35, 2')
        A('s_add_u32 s36, s36, %s' % S_W)
        A('s_mul_i32 s30, %s, 36864' % S_W)
        A('v_lshrrev_b32 v7, 2, v1')
        A('v_and_b32 v5, 3, v1')
        A('v_lshlrev_b32 v8, 13, v7')
        A('v_lshl_add_u32 v8, v5, 4, v8')
        A('s_lshl_b32 s33, s36, 6')
        A('v_add_u32 v8, s33, v8')
        VQ = Q(A, 'vmcnt')

        def dma(n):
            for i in range(4):
                A('s_add_u32 m0, s30, %d' % ((n % 9) * 4096 + i * 1024))
                if i:
                    A('s_add_u32 s31, s31, %d' % (16 * 8192))
                elif n % 9 < 8:
                    A('s_xor_b32 s31, %s, %d' % (S_W, n % 9))
                    A('s_lshl_b32 s31, s31, 19')
                else:
                    A('s_mov_b32 s31, %d' % (8 << 19))
                VQ.op(n, 'buffer_load_dwordx4 v8, %s, s31 offen lds' % ('s[16:19]', 's[20:23]')[n // 9])
        A('s_mov_b32 s51, 0x%x' % SENT)
        for i in range(4):
            A('v_mov_b32 v%d, s51' % (16 + i))
        A('s_mul_i32 s33, s36, 4608')
        A('s_add_u32 s33, s33, 0x%x' % W_ME)
        for o in (0, 1024, 2048, 3072, 3584):
            VQ.op('z', 'buffer_store_dwordx4 v[16:19], v0, %s, s33 offen offset:%d sc1' % (WS, o))
        for n in range(OPT['da']):
            dma(n)
        A('v_lshrrev_b32 v3, 5, v1')
        A('v_bfe_u32 v4, v1, 4, 1')
        A('v_lshl_add_u32 v9, v3, 3, v4')
        A('v_and_b32 v7, 3, v7')
        A('v_lshl_add_u32 v9, v7, 1, v9')
        A('v_lshlrev_b32 v9, 7, v9')
        A('v_lshl_add_u32 v9, v5, 3, v9')
        A('v_add_u32 v9, s30, v9')
        VQ.wait('z')
        A('s_barrier')
        A('s_cmp_lg_u32 %s, 0' % S_W)
        A('s_cbranch_scc1 AM_NA')
        A('v_mov_b32 v3, 1')
        A('v_mov_b32 v7, %d' % (D_CBAR * 4))
        A('s_mov_b64 exec, 1')
        A('buffer_atomic_add v3, v7, %s, 0 offen sc1' % G.DBG)
        A('s_mov_b64 exec, -1')
        A.label('AM_NA')
        for n in range(18):
            VQ.wait(n)
            for t in range(2):
                for z in range(2):
                    for u in range(2):
                        A('ds_read_b64_tr_b16 %s, v9 offset:%d' % (FR(2 * n + t, 2 * z + u), (n % 9) * 4096 + z * 2048 + u * 64 + t * 32))
            if n + OPT['da'] < 18:
                A('s_waitcnt lgkmcnt(0)')
                dma(n + OPT['da'])
        A('v_and_b32 v7, 8, v1')
        A('v_mov_b32 v%d, 0x4444' % IDX)
        A('v_mov_b32 v3, 0xeeee')
        A('v_cmp_ne_u32 vcc, 0, v7')
        A('v_cndmask_b32 v%d, v%d, v3, vcc' % (IDX, IDX))
        A('v_and_b32 v7, 7, v1')
        A('v_lshlrev_b32 v4, 2, v4')
        A('v_sub_u32 v7, v7, v4')
        A('v_mov_b32 v5, 0x3f80')
        A('v_mov_b32 v4, 0x3f800000')
        for i in range(2):
            A('v_mov_b32 v%d, 0' % (SEL + i))
            A('v_cmp_eq_u32 vcc, %d, v7' % (2 * i))
            A('v_cndmask_b32 v%d, v%d, v5, vcc' % (SEL + i, SEL + i))
            A('v_cmp_eq_u32 vcc, %d, v7' % (2 * i + 1))
            A('v_cndmask_b32 v%d, v%d, v4, vcc' % (SEL + i, SEL + i))
        A('v_and_b32 v7, 15, v1')
        A('v_lshrrev_b32 v5, 4, v1')
        A('v_lshlrev_b32 v5, 2, v5')
        A('v_sub_u32 v7, v7, v5')
        for r in range(4):
            A('v_cmp_le_i32 s[%d:%d], %d, v7' % (52 + 2 * r, 53 + 2 * r, r))
        A('v_mov_b32 v3, %s' % G.fbits(-1e9 * G.LOG2E))
        A('v_mov_b32 v%d, 0' % (PB + 2))
        A('v_mov_b32 v%d, 0' % (PB + 3))
        A('s_mov_b32 s50, %s' % G.fbits(G.LOG2E / math.sqrt(128.0)))
        A('s_add_u32 s45, s36, %d' % F_ATT)
        A('s_lshl_b32 s45, s45, 7')
        A('s_lshl_b32 s41, s35, 21')
        A('s_lshl_b32 s33, %s, 11' % S_W)
        A('s_add_u32 s41, s41, s33')
        A('s_add_u32 s41, s41, 0x%x' % W_QKV)
        A('s_add_u32 s46, s33, 8192')
        A('s_lshl_b32 s42, s36, 10')
        A('s_and_b32 s37, %s, 1' % S_W)
        A('s_lshl_b32 s33, s37, 17')
        A('s_add_u32 s42, s42, s33')
        A('s_add_u32 s42, s42, 0x%x' % W_O)
        A('s_lshl_b32 s43, %s, 10' % S_W)
        A('v_add_u32 v8, s43, v0')
        A('v_add_u32 v%d, s43, v8' % AQ)
        for j in range(1, 4):
            A('v_xor_b32 v%d, %d, v8' % (AX + j, 1024 * j))
            A('v_xor_b32 v%d, %d, v%d' % (AQ + j, 2048 * j, AQ))
        A('s_mov_b32 s43, 0x%x' % W_ME)
        A('s_and_b32 s44, s35, 8')
        A('s_mul_i32 s44, s44, 3')
        A('s_add_u32 s44, s44, s35')
        A('s_and_b32 s44, s44, 0x27')
        A('s_lshl_b32 s33, %s, 3' % S_W)
        A('s_add_u32 s44, s44, s33')
        A('s_lshl_b32 s44, s44, 7')
        A('s_mov_b32 s40, 0')
        A('s_waitcnt lgkmcnt(0)')
        A('v_and_b32 v9, 0x300, v0')
        A('v_and_b32 v4, 7, v1')
        A('v_lshl_add_u32 v9, v4, 5, v9')
        A('v_and_b32 v4, 8, v1')
        A('v_lshl_add_u32 v9, v4, 1, v9')
        G.ts()
        G.wait_ready('v4', 'v5')
        A('v_mov_b32 v4, %d' % (D_CBAR * 4))
        G.spin('v4', 'v5', '64', 25, G.DBG, op='ushort')
        A('v_and_b32 v4, 0x23, v1')
        A('v_lshlrev_b32 v4, 2, v4')
        A('s_lshl_b32 s33, s35, 8')
        A('s_add_u32 s33, s33, %d' % (F_QKV * 128))
        G.spin('v4', 'v5', '2', 24, WS, 's33')
        A('v_mov_b32 v4, s44')
        A('s_barrier')

        def loads():
            o = ['s_add_u32 s47, s41, s46', 's_lshl_b32 m0, %s, 11' % S_W]
            o += ['buffer_load_dwordx4 v0, %s, s41 offen offset:%d sc1 lds' % (WS, T * 1024) for T in range(2)]
            o += ['s_add_u32 m0, m0, 8192', 's_xor_b32 s48, s47, 4096']
            o += ['buffer_load_dwordx4 v0, %s, s47 offen offset:%d sc1 lds' % (WS, T * 1024) for T in range(2)]
            o += ['buffer_load_dwordx4 %s, v0, %s, s%d offen offset:%d sc1' % (vr(VF + 4 * i, 4), WS, 47 + (i >> 1), 2048 + (i & 1) * 1024) for i in range(4)]
            return o + ['s_add_u32 s41, s41, %d' % SEG_QKV]

        def xred(r, t, op, sw):
            return ['v_mov_b32 v%d, v%d' % (t, r), 'v_permlane%d_swap_b32 v%d, v%d' % (sw, r, t), '%s v%d, v%d, v%d' % (op, r, r, t)]

        def emit(l):
            for x in l:
                A(x)

        def poll():
            A('v_mov_b32 v5, 0')
            A('s_mov_b64 exec, 1')
            A('buffer_atomic_or v5, v4, %s, s43 offen sc0 sc1' % WS)
            A('s_mov_b64 exec, -1')
        SP = 212

        def mloads():
            return ['s_lshl_b32 s47, %s, 10' % S_W, 's_add_u32 s47, s47, s43', 's_add_u32 s48, s47, 4096',
                    'buffer_load_dwordx4 %s, v9, %s, s47 offen sc1' % (vr(SP, 4), WS), 's_add_u32 s47, s43, 8192',
                    'buffer_load_dwordx4 %s, v9, %s, s48 offen sc1' % (vr(SP + 4, 4), WS),
                    'buffer_load_dwordx4 %s, v9, %s, s47 offen sc1' % (vr(SP + 8, 4), WS)]

        def bound():
            A('s_add_u32 s27, s27, 1')
            A('s_cmp_ge_u32 s27, %d' % G.SPIN_MAX)
            A('s_cbranch_scc1 FAIL')

        def step(T):
            P = 'AM%d_' % T
            A.label(P + 'L')
            A('s_barrier')
            LQ = Q(A, 'lgkmcnt')
            for j in range(4):
                LQ.op(j, 'ds_read_b128 %s, v%d offset:%d' % (vr(QF + 4 * j, 4), AQ + j, L_QK + 1024 * T))
                for tk in range(T + 1):
                    LQ.op(j, 'ds_read_b128 %s, v%d offset:%d' % (vr(KF + 8 * j + 4 * tk, 4), AQ + j, L_QK + 8192 + 1024 * tk))
            for r in range(KA, KA + 16, 2):
                A('v_mov_b64 %s, 0' % vr(r, 2))
            for j in range(4):
                LQ.wait(j)
                for tk in range(T + 1):
                    d = vr(SX + 4 * tk, 4)
                    A('%s %s, %s, %s, %s' % (M32, d, vr(KF + 8 * j + 4 * tk, 4), vr(QF + 4 * j, 4), '0' if j == 0 else d))
            D = SX + 4 * T
            if T:
                A('v_max3_f32 v%d, v%d, v%d, v%d' % (MX, SX, SX + 1, SX + 2))
            for r in range(4):
                A('v_cndmask_b32 v%d, v3, v%d, s[%d:%d]' % (D + r, D + r, 52 + 2 * r, 53 + 2 * r))
            if T:
                A('v_max3_f32 v%d, v%d, v%d, v%d' % (MX, MX, SX + 3, D))
            A('v_max3_f32 v%d, v%d, v%d, v%d' % (MX, MX if T else D, D + 1, D + 2))
            A('v_max_f32 v%d, v%d, v%d' % (MX, MX, D + 3))
            emit(xred(MX, LX, 'v_max_f32', 16) + xred(MX, LX, 'v_max_f32', 32))
            for r in range(SX, D + 4):
                A('v_sub_f32 v%d, v%d, v%d' % (r, r, MX))
            for r in range(SX, D + 4):
                A('v_exp_f32 v%d, v%d' % (r, r))
            for i in range(2 * T + 2):
                cvt(PB + i, SX + 2 * i)
            sm = ['v_pk_add_f32 %s, %s, %s' % (vr(SX, 2), vr(SX, 2), vr(SX + 2 * i, 2)) for i in range(1, 2 * T + 2)]
            sm += ['v_add_f32 v%d, v%d, v%d' % (LX, SX, SX + 1)] + xred(LX, SX, 'v_add_f32', 16) + xred(LX, SX, 'v_add_f32', 32)
            for i in range(4):
                A('%s %s, %s, %s, 0' % (M32, vr(O + 4 * i, 4), vr(VF + 4 * i, 4), vr(PB, 4)))
                emit(sm[2 * i:2 * i + 2])
            emit(sm[8:])
            A('s_mov_b32 s27, 0')
            A('s_waitcnt vmcnt(0)')
            publish('s45', 's40')
            A('s_branch %sC' % P)
            A.label(P + 'X')
            for i in range(12):
                A('v_cmp_eq_u32 %s, s51, v%d' % ('s[38:39]' if i else 'vcc', SP + i))
                if i:
                    A('s_or_b64 vcc, vcc, s[38:39]')
            A('s_cbranch_vccz %sK' % P)
            A('s_cmp_ge_u32 s40, %d' % OPT['amd'])
            A('s_cbranch_scc1 %sM' % P)
            A.label(P + 'R')
            poll()
            bound()
            A('s_waitcnt vmcnt(0)')
            A('v_readfirstlane_b32 s49, v5')
            A('s_cmp_eq_u32 s49, s51')
            A('s_cbranch_scc1 %sR' % P)
            A.label(P + 'M')
            emit(mloads())
            bound()
            A('s_waitcnt vmcnt(0)')
            A.label(P + 'C')
            a, b, c = SP, SP + 4, SP + 8
            mx = 'v_maximum3_f32 v%d, v%%d, v%%d, v%%d' % SM
            A('ds_write_b128 v8, %s offset:%d' % (vr(a, 4), L_M))
            A(mx % (a, a + 1, a + 2))
            A('ds_write_b128 v8, %s offset:%d' % (vr(b, 4), L_M + 4096))
            A(mx % (SM, a + 3, b))
            A(mx % (SM, b + 1, b + 2))
            A(mx % (SM, b + 3, c))
            A(mx % (SM, c + 1, c + 2))
            A('v_cmp_u_f32 vcc, v%d, v%d' % (SM, c + 3))
            A('s_cbranch_vccnz %sX' % P)
            A.label(P + 'K')
            G.ts()
            LQ = Q(A, 'lgkmcnt')
            F = {}

            def L(tag, text):
                return lambda: LQ.op(tag, text)
            oth = [(1, 0), (1, 4), (2, 0), (2, 4), (3, 0), (3, 4)]
            rd = [L(j + u, 'ds_read_b128 %s, v%d offset:%d' % (vr(MF + 4 * (j + u), 4), AX + j, L_M + 1024 * u)) for j, u in oth]
            ks = [(0, f, t) for f in (8, 0, 4, 1, 5, 2, 6) for t in range(2)] + [(0, f, t) for t in range(2) for f in (3, 7)]
            vs = [(1, f, t) for f in (8, 0, 4, 1, 5, 2, 6) for t in range(2)] + [(1, f, t) for t in range(2) for f in (3, 7)]
            seq = ks[:6] + vs[:2] + ks[6:] + vs[2:4] + ['T0'] + vs[4:5] + ['T1'] + vs[5:8] + ['S0'] + vs[8:16] + ['S1', 'S2'] + vs[16:17] + ['S3'] + vs[17:]
            F[0] = ['s_waitcnt lgkmcnt(0)', 's_barrier'] + rd[:1]
            F[1], F[2] = rd[1:4], rd[4:] + ['s_add_u32 s40, s40, 1']
            ld = loads() + ['s_add_u32 s43, s43, %d' % SEG_ME] + mloads()
            for i in range(0, len(ld), 2):
                F[3 + i // 2] = ld[i:i + 2]
            for i in range(4):
                F[1 + i].append('v_mov_b64 %s, %s' % (vr(MF + 16 * (i >> 1) + 2 * (i & 1), 2), vr(SP + 2 * i, 2)))
            ck = [lambda r=KA + 4 * t + i, q=KA + 4 * t + 2 * i: cvt(r, q) for t in range(2) for i in range(2)]
            cm = [lambda i=i: cvt(KM + i, KM + 2 * i) for i in range(4)]
            F[20], F[21], F[22] = ck[:1], ck[1:2], ck[2:]
            F[25], F[26] = cm[:2], cm[2:]
            F[27] = [L('kw', 'ds_write_b128 v8, %s offset:%d' % (vr(KM, 4), L_KM))]
            F[32] = [lambda: LQ.wait('kw'), 's_barrier']
            F[33] = [L('k%d' % j, 'ds_read_b128 %s, v%d offset:%d' % (vr(KM + 4 * j, 4), AX + j, L_KM)) for j in range(1, 4)]
            F[39] = [lambda: cvt(VA, VA)]
            F[40] = [lambda: cvt(VA + 1, VA + 2)]
            for i, x in enumerate(seq):
                if x[0] == 'T':
                    t = int(x[1])
                    A('%s %s, %s, %s, 0' % (M16, vr(KM + 4 * t, 4), vr(KA + 4 * t, 2), vr(SEL, 2)))
                elif x[0] == 'S':
                    j = int(x[1])
                    LQ.wait('k%d' % j)
                    A('%s %s, %s, %s, %s' % (M32, vr(SM, 4), vr(KM + 4 * j, 4), vr(QF + 4 * j, 4), vr(SM, 4) if j else '0'))
                else:
                    kind, f, t = x
                    LQ.wait(f)
                    A('%s %s, %s, %s, v%d' % (SMF, vr((KA, VA)[kind] + 4 * t, 4), vr(SP + f if i < 8 else MF + 4 * f, 4), FR(18 * kind + 2 * f + t), IDX))
                for y in F.pop(i, []):
                    y() if callable(y) else A(y)
            assert not F
            s, m, a = SM, SX, SX + 2
            emit(['v_max3_f32 v%d, v%d, v%d, v%d' % (m, s, s + 1, s + 2), 'v_max_f32 v%d, v%d, v%d' % (m, m, s + 3)])
            x = xred(m, a, 'v_max_f32', 16)
            A(x[0])
            cvt(VA + 2, VA + 4)
            cvt(VA + 3, VA + 6)
            A('ds_write_b128 v8, %s offset:%d' % (vr(VA, 4), L_VM))
            emit(x[1:])
            emit(['v_mul_f32 v%d, s50, v%d' % (m, m), 'v_max_f32 v%d, v%d, v%d' % (m, m, MX)])
            emit(['v_fma_f32 v%d, v%d, s50, -v%d' % (r, r, m) for r in range(s, s + 4)])
            A('v_sub_f32 v%d, v%d, v%d' % (a, MX, m))
            emit(['v_exp_f32 v%d, v%d' % (r, r) for r in range(s, s + 4)])
            A('s_waitcnt lgkmcnt(0)')
            A('s_barrier')
            A('ds_read_b128 %s, v%d offset:%d' % (vr(VP, 4), AX + 1, L_VM))
            A('v_exp_f32 v%d, v%d' % (a, a))
            cvt(PM, s)
            cvt(PM + 1, s + 2)

            def pv(i):
                A('%s %s, %s, %s, 0' % (M16, vr(OM + 4 * i, 4), vr((VA, VP)[i >> 1] + 2 * (i & 1), 2), vr(PM, 2)))
            A('v_pk_add_f32 %s, %s, %s' % (vr(s, 2), vr(s, 2), vr(s + 2, 2)))
            A('v_add_f32 v%d, v%d, v%d' % (m, s, s + 1))
            pv(0)
            x = xred(m, a + 1, 'v_add_f32', 16)
            A(x[0])
            pv(1)
            emit(x[1:])
            emit(['v_fmac_f32 v%d, v%d, v%d' % (m, a, LX), 'v_rcp_f32 v%d, v%d' % (m, m)])
            A('s_waitcnt lgkmcnt(0)')
            pv(2)
            A('v_mul_f32 v%d, v%d, v%d' % (a, a, m))
            pv(3)
            A('s_xor_b32 s47, s42, 1024')
            for j in range(2):
                rs = range(8 * j, 8 * j + 8, 2)
                emit(['v_pk_mul_f32 %s, %s, %s op_sel_hi:[1,0]' % (vr(O + r, 2), vr(O + r, 2), vr(a, 2)) for r in rs])
                emit(['v_pk_fma_f32 %s, %s, %s, %s op_sel_hi:[1,0,1]' % (vr(O + r, 2), vr(OM + r, 2), vr(m, 2), vr(O + r, 2)) for r in rs])
                for i in range(4):
                    cvt(KM + 4 * j + i, O + 8 * j + 2 * i)
                A('buffer_store_dwordx4 %s, v0, %s, %s offen sc1' % (vr(KM + 4 * j, 4), WS, ('s42', 's47')[j]))
            A('s_add_u32 s42, s42, %d' % SEG_O)
            A('s_waitcnt vmcnt(5)')
            A('s_cmp_lt_u32 s40, 64')
            A('s_cbranch_scc1 %sL' % P)
        emit(loads() + mloads())
        A('s_waitcnt vmcnt(0)')
        A('s_cmp_eq_u32 s37, 0')
        A('s_cbranch_scc1 AM0_L')
        step(1)
        A('s_branch AM_E')
        step(0)
        A.label('AM_E')
        A('s_waitcnt vmcnt(0)')
        publish('s45', 's40')

    A('s_sub_u32 s32, %s, 1' % S_X)
    A('s_cmp_lt_u32 %s, 6' % S_T)
    A('s_cbranch_scc1 R_TRIP')
    A('s_sub_u32 s33, %s, 6' % S_T)
    A('s_lshr_b32 s36, s33, 1')
    A('s_mul_i32 s36, s36, 7')
    A('s_add_u32 s36, s36, s32')
    A('s_and_b32 s37, s33, 1')
    A('s_cmp_lt_u32 s33, 18')
    A('s_cbranch_scc1 R_PAIR')
    A('s_sub_u32 s38, s33, 18')
    A('s_add_u32 s34, s32, 14')
    A('s_add_u32 s36, s32, 61')
    A('s_mul_i32 s35, s32, 6')
    A('s_add_u32 s35, s35, s38')
    A('s_add_u32 s33, s32, 3')
    A('s_min_u32 s33, s33, 4')
    A('s_sub_u32 s35, s35, s33')
    A('s_cmp_lt_u32 s32, 2')
    A('s_cselect_b32 s33, 3, 2')
    A('s_cmp_ge_u32 s38, s33')
    A('s_cbranch_scc1 R_SMALL')
    A('s_cmp_lt_u32 s32, 2')
    A('s_cbranch_scc1 R_TRIP2')
    A.label('R_PAIR')
    A('s_cmp_lt_u32 s36, 32')
    A('s_cbranch_scc1 R_QKV')
    A('s_sub_u32 s36, s36, 32')
    role_f1()
    G.finish()
    A.label('R_TRIP')
    A('s_cmp_ge_u32 %s, 3' % S_T)
    A('s_cselect_b32 s34, 7, 0')
    A('s_cselect_b32 s38, 3, 0')
    A('s_sub_u32 s38, %s, s38' % S_T)
    A('s_add_u32 s34, s34, s32')
    A.label('R_TRIP2')
    if OPT['pre']:
        A('s_cmp_eq_u32 s38, 1')
        A('s_cselect_b32 s12, s%d, s%d' % (G.P_WK, G.P_WQ))
        A('s_cselect_b32 s13, s%d, s%d' % (G.P_WK + 1, G.P_WQ + 1))
        A('s_cmp_eq_u32 s38, 2')
        A('s_cselect_b32 s12, s%d, s12' % G.P_WV)
        A('s_cselect_b32 s13, s%d, s13' % (G.P_WV + 1))
        A('s_mov_b32 s14, %d' % (576 * 8192))
        A('s_mov_b32 s15, 0x20000')
        A('v_lshrrev_b32 v5, 4, v1')
        A('v_and_b32 v6, 15, v1')
        A('v_lshlrev_b32 v6, 4, v6')
        A('v_lshl_add_u32 v7, v5, 10, v6')
        A('v_lshl_add_u32 v6, v5, 13, v6')
        A('s_lshl_b32 s30, s34, 2')
        A('s_add_u32 s30, s30, %s' % S_W)
        A('s_mul_i32 s30, s30, %d' % (9 * 8192))
        A('s_add_u32 s31, s30, 4096')
        for i in range(18):
            A('buffer_load_dwordx4 %s, v7, s[12:15], s30 offen offset:256' % vr(12 + 4 * i, 4))
            A('s_add_u32 s30, s30, 4096')
        for i in range(3):
            A('buffer_load_dwordx4 %s, v6, s[12:15], s31 offen offset:3840' % vr(84 + 4 * i, 4))
            A('s_add_u32 s31, s31, %d' % (3 * 8192))
        A('s_waitcnt vmcnt(0)')
    A('s_bfe_u32 s37, s34, 0x10001')
    A('s_lshr_b32 s36, s34, 2')
    A('s_bitcmp1_b32 s34, 0')
    A('s_cbranch_scc1 R_WO')
    role_part('F2')
    G.finish()
    A.label('R_WO')
    role_part('WO')
    G.finish()
    A.label('R_QKV')
    role_qkv()
    role_fin()
    G.finish()
    A.label('R_SMALL')
    A('s_mul_i32 s33, s35, 52')
    A('s_lshr_b32 s33, s33, 8')
    A('s_mul_i32 s34, s33, 5')
    A('s_add_u32 s34, s34, 4')
    A('s_cmp_eq_u32 s34, s35')
    A('s_cbranch_scc0 R_AM')
    A('s_mov_b32 s35, s33')
    role_ln2()
    G.finish()
    A.label('R_AM')
    A('s_sub_u32 s35, s35, s33')
    role_am()
    G.finish()
```

```python
import sys, math, struct
sys.path.insert(0, 'gen')
from asmlib import *
from layout import *

OPT = dict(ar=0, eb=0, bg=0, ag=1, xe=12, i0=4, win=8, la=3, cx=1, pre=1, lt=0, dq=20, d1=20, d2=20, dw=20, da=9, ts=0, ts0=6, chain=8, only=0, mixed=0, st=0, two=0, slow=0, dl=0, dm=0, pl=13, x=0, w1=0, dn=0, h1=4, h2=13, hq=3, pb=1, xl=0, mi=4, ml=2, t0=0, amd=62,
           pa1=3, pa2=7, ph=20, pe=16, bq=41, bk=47, bp=52, px=46, ps=51, h0=1, bo=1, nr=3, r0=12, r1=14, p0=3, p1=6, cr=0, sm=0, fr=0, rm=0,
           nk=6, ia2=-1, ih=5, nm=5, m1=1, s1=-1, s2=-1, nc=1, ms=0, np=3, xo=1, r3=18, ik=10, pe2=25, mg=2, bl=2, xb=1, vl=1, r2=16, cw=0, vf=2)
OPT.update(n9=0, xr=99, y0=0)
if 'n9=1' in sys.argv:
    OPT.update(nk=0, px=43, ps=55, cb=14, la9=0, sw=5, y0=1, pe=17, pe2=21, xe=18, pd=1, wb=12, ws=0, ih=5, vl=9, ik=14, iz=3, g0=26, j0=20, g1=32, j1=26, g2=38, j2=32, g3=45, j3=41,
               qb=0, kb=1, xb=0, bq=38, bk=50, bp=50)
for a in sys.argv[2:]:
    k, v = a.split('=')
    OPT[k] = int(v, 0)

A = Asm()
WS, DBG, SA, SB, SC = 's[4:7]', 's[8:11]', 's[12:15]', 's[16:19]', 's[20:23]'
S_W, S_X, S_T, S_SPIN = 's24', 's25', 's26', 's27'
P_X, P_MEM, P_WQ, P_WK, P_WV, P_WO, P_WG, P_WU, P_WD, P_OUT, P_DBG, P_WS = 64, 66, 68, 70, 72, 74, 80, 82, 84, 86, 88, 90
SPIN_MAX = 400000
N_READY = 18
LOG2E = 1.4426950408889634


def fbits(x):
    return '0x%08x' % struct.unpack('<I', struct.pack('<f', x))[0]


def srd(d, p, size):
    A('s_mov_b32 s%d, s%d' % (d, p))
    A('s_mov_b32 s%d, s%d' % (d + 1, p + 1))
    A('s_mov_b32 s%d, 0x%x' % (d + 2, size))
    A('s_mov_b32 s%d, 0x20000' % (d + 3))


V_TS = 'v2'


def ts_init():
    if OPT['ts']:
        A('v_mov_b32 %s, 0' % V_TS)
        A('s_mov_b32 s63, 0')


def ts(real=True):
    if OPT['ts']:
        A('%s s[60:61]' % ('s_memrealtime' if (real and OPT['ts'] == 1) else 's_memtime'))
        A('s_waitcnt lgkmcnt(0)')
        A('s_mov_b32 s62, m0')
        A('s_mov_b32 m0, s63')
        A('v_writelane_b32 %s, s60, m0' % V_TS)
        A('s_mov_b32 m0, s62')
        A('s_add_u32 s63, s63, 1')
        A('s_min_u32 s63, s63, 63')


def dump_ts(vlane):
    A('s_lshl_b32 s60, %s, 5' % S_X)
    A('s_add_u32 s60, s60, %s' % S_T)
    A('s_lshl_b32 s60, s60, 2')
    A('s_add_u32 s60, s60, %s' % S_W)
    A('s_lshl_b32 s60, s60, 8')
    A('s_add_u32 s60, s60, 0x%x' % W_TS)
    A('v_lshlrev_b32 v9, 2, %s' % vlane)
    A('buffer_store_dword %s, v9, %s, s60 offen' % (V_TS, WS))


def finish():
    if OPT['ts']:
        ts()
        dump_ts('v1')
    A('s_endpgm')


def spin(vaddr, vtmp, need, code, srdname=WS, soff='0', op='dword'):
    L, D = A.newlabel('SP'), A.newlabel('SD')
    A('s_mov_b32 %s, 0' % S_SPIN)
    A.label(L)
    A('buffer_load_%s %s, %s, %s, %s offen sc1' % (op, vtmp, vaddr, srdname, soff))
    A('s_waitcnt vmcnt(0)')
    A('v_cmp_gt_u32 vcc, %s, %s' % (need, vtmp))
    A('s_cbranch_vccz %s' % D)
    A('s_add_u32 %s, %s, 1' % (S_SPIN, S_SPIN))
    A('s_cmp_lt_u32 %s, %d' % (S_SPIN, SPIN_MAX))
    A('s_cbranch_scc1 %s' % L)
    A('s_movk_i32 %s, %d' % (S_SPIN, code))
    A('s_branch FAIL')
    A.label(D)


def wait_ready(v0, v1):
    A('v_mov_b32 %s, %d' % (v0, D_READY * 4))
    spin(v0, v1, str(N_READY), 1, DBG)


def publish(vaddr, vtmp, sval):
    A('v_mov_b32 %s, %s' % (vtmp, sval))
    A('s_mov_b64 exec, 1')
    A('buffer_store_dword %s, %s, %s, 0 offen sc1' % (vtmp, vaddr, WS))
    A('s_mov_b64 exec, -1')


def role_chain_stub():
    wait_ready('v6', 'v7')
    A('s_lshl_b32 s34, %s, 2' % S_T)
    A('s_add_u32 s34, s34, %s' % S_W)
    A('s_lshl_b32 s34, s34, 2')
    A('v_mov_b32 v9, s34')
    publish('v9', 'v12', '64')


def prologue():
    A('s_cmp_ge_u32 s2, 256')
    A('s_cbranch_scc1 EXIT')
    A('s_load_dwordx16 s[64:79], s[0:1], 0')
    A('s_load_dwordx8 s[80:87], s[0:1], 64')
    A('s_load_dwordx4 s[88:91], s[0:1], 96')
    A('v_and_b32 v1, 63, v0')
    A('v_lshrrev_b32 v3, 6, v0')
    A('v_readfirstlane_b32 %s, v3' % S_W)
    A('s_getreg_b32 s28, hwreg(HW_REG_XCC_ID, 0, 4)')
    A('s_xor_b32 s28, s28, %d' % OPT['cx'])
    A('s_and_b32 s28, s28, 7')
    ts_init()
    A('s_waitcnt lgkmcnt(0)')
    srd(4, P_WS, WS_SIZE)
    srd(8, P_DBG, 256)
    ts()
    A('s_cmp_lg_u32 %s, 0' % S_W)
    A('s_cbranch_scc1 P_WAIT')
    A('s_lshr_b32 s29, s2, 5' if OPT['mixed'] else 's_mov_b32 s29, s28')
    A('s_mov_b32 s30, 0')
    A.label('P_TRY')
    A('s_lshl_b32 s31, s29, %d' % (2 + OPT['la']))
    A('v_mov_b32 v3, s31')
    A('v_mov_b32 v4, 1')
    A('s_mov_b64 exec, 1')
    A('buffer_atomic_add v4, v3, %s, 0 offen sc0 sc1' % DBG)
    A('s_waitcnt vmcnt(0)')
    A('s_mov_b64 exec, -1')
    A('v_readfirstlane_b32 %s, v4' % S_T)
    A('s_cmp_lt_u32 %s, 32' % S_T)
    A('s_cbranch_scc1 P_GOT')
    A('s_add_u32 s29, s29, 1')
    A('s_and_b32 s29, s29, 7')
    A('s_add_u32 s30, s30, 1')
    A('s_cmp_lt_u32 s30, 8')
    A('s_cbranch_scc1 P_TRY')
    A('s_mov_b32 s29, 8')
    A.label('P_GOT')
    A('s_lshl_b32 s31, s29, 8')
    A('s_add_u32 s31, s31, %s' % S_T)
    A('v_mov_b32 v3, 0')
    A('v_mov_b32 v4, s31')
    A('ds_write_b32 v3, v4')
    A('s_waitcnt lgkmcnt(0)')
    A('s_branch P_JOIN')
    A.label('P_WAIT')
    A('s_cmp_ge_u32 s2, %d' % N_READY)
    A('s_cbranch_scc1 P_JOIN')
    A('s_cmp_lg_u32 %s, 1' % S_W)
    A('s_cbranch_scc1 P_JOIN')
    A('v_mov_b32 v4, 0')
    A('v_mov_b32 v5, 0')
    A('v_mov_b32 v6, 0')
    A('v_mov_b32 v7, 0')
    A('v_lshlrev_b32 v3, 7, v1')
    A('s_lshl_b32 s31, s2, 13')
    A('s_add_u32 s31, s31, 0x%x' % W_FLAGS)
    A('buffer_store_dwordx4 v[4:7], v3, %s, s31 offen sc1' % WS)
    A('v_mov_b32 v3, %d' % (D_READY * 4))
    A('v_mov_b32 v8, 1')
    A('s_waitcnt vmcnt(0)')
    A('s_mov_b64 exec, 1')
    A('buffer_atomic_add v8, v3, %s, 0 offen sc1' % DBG)
    A('s_mov_b64 exec, -1')
    A.label('P_JOIN')
    A('s_barrier')
    A('v_mov_b32 v3, 0')
    A('ds_read_b32 v4, v3')
    A('s_waitcnt lgkmcnt(0)')
    A('v_readfirstlane_b32 s31, v4')
    A('s_lshr_b32 %s, s31, 8' % S_X)
    A('s_and_b32 %s, s31, 255' % S_T)
    A('s_barrier')
    ts()


def main():
    me = sys.modules[__name__]
    prologue()
    A('s_cmp_eq_u32 %s, 0' % S_X)
    A('s_cbranch_scc1 R_CHAIN')
    A('s_cmp_gt_u32 %s, 7' % S_X)
    A('s_cbranch_scc1 EXIT')
    if OPT['only']:
        A('s_cmp_gt_u32 %s, 4' % S_X)
        A('s_cbranch_scc1 EXIT')
        A('s_lshl_b32 s30, %s, 21' % S_T)
        A('s_lshl_b32 s31, %s, 12' % S_X)
        A('s_add_u32 s30, s30, s31')
        A('s_add_u32 s30, s30, 0x%x' % (W_QKV + 4096))
        A('v_lshlrev_b32 v6, 4, v0')
        for i in range(64):
            A('buffer_load_dwordx4 %s, v6, %s, s30 offen' % (vr(8 + 4 * (i & 15), 4), WS))
            A('s_add_u32 s30, s30, %d' % SEG_QKV)
            if i & 15 == 15:
                A('s_sub_u32 s30, s30, %d' % (16 * SEG_QKV))
                A('s_waitcnt vmcnt(0)')
                for k in range(16):
                    A('buffer_store_dwordx4 %s, v6, %s, s30 offen sc1' % (vr(8 + 4 * k, 4), WS))
                    A('s_add_u32 s30, s30, %d' % SEG_QKV)
                A('s_waitcnt vmcnt(0)')
        A('s_cmp_lg_u32 %s, 1' % S_X)
        A('s_cbranch_scc1 EXIT')
        A('s_cmp_lg_u32 %s, 0' % S_T)
        A('s_cbranch_scc1 EXIT')
        wait_ready('v6', 'v7')
        A('v_lshlrev_b32 v6, 7, v1')
        A('s_lshl_b32 s30, %s, 2' % S_W)
        A('s_add_u32 s30, s30, %d' % (F_QKV * 128))
        A('v_add_u32 v6, s30, v6')
        A('v_mov_b32 v7, 64')
        A('buffer_store_dword v7, v6, %s, 0 offen sc1' % WS)
        A('s_endpgm')
    else:
        import workers
        workers.roles(me)
    A.label('R_CHAIN')
    if OPT['chain']:
        import importlib
        importlib.import_module('chain%d' % OPT['chain']).role_chain(me)
    else:
        role_chain_stub()
        finish()
    A.label('FAIL')
    A('s_mov_b64 exec, 1')
    A('v_mov_b32 v3, %d' % (D_ERR * 4))
    A('v_mov_b32 v4, %s' % S_SPIN)
    A('buffer_store_dword v4, v3, %s, 0 offen sc1' % DBG)
    A.label('EXIT')
    A('s_endpgm')
    lines, nn = fix_hazards(A.lines)
    ref = open('cdna_kernels/%s.s.ref' % NAME).read()
    head = ref[:ref.index(NAME + '_kernel:')]
    head = head.replace('grid=(4608,1,1) block=(256,1,1) lds=0', 'grid=(256,1,1) block=(256,1,1) lds=163840')
    tail = ref[ref.index('.section .rodata'):].replace('next_free_vgpr 256', 'next_free_vgpr 512')
    with open(sys.argv[1], 'w') as f:
        f.write(head + NAME + '_kernel:\n' + '\n'.join(l if l.endswith(':') else '    ' + l for l in lines) + '\n' + tail)
    print('lines', len(lines), 'nop states', nn)


if __name__ == '__main__':
    main()
```

```python
import math
from asmlib import *
from layout import *
from chain import Q

M16 = 'v_mfma_f32_16x16x16_bf16'
M32 = 'v_mfma_f32_16x16x32_bf16'


def roles(G):
    A, WS, OPT = G.A, G.WS, G.OPT
    S_W, S_X, S_T = G.S_W, G.S_X, G.S_T

    def cvt(d, s, s2=None):
        A('v_cvt_pk_bf16_f32 v%d, v%d, v%d' % (d, s, s + 1 if s2 is None else s2))

    def publish(soff, sval, q=None):
        A('v_mov_b32 v7, %s' % sval)
        A('s_mov_b64 exec, 1')
        t = 'buffer_store_dword v7, off, %s, %s sc1' % (WS, soff)
        if q is None:
            A(t)
        else:
            q.op('pub', t)
        A('s_mov_b64 exec, -1')

    def wreg(f, nf, sub=None):
        k, b = ('a', 4 * f) if f < 64 else ('v', 256 - 4 * (nf - f))
        return vr(b, 4, k) if sub is None else vr(b + 2 * sub, 2, k)

    def load_weights(units, nf, stride, krow, NS=20):
        VQ = Q(A, 'vmcnt')
        A('s_mul_i32 s30, %s, %d' % (S_W, 20 * 2048))

        def dma(n):
            sd, vo, col, k, _ = units[n]
            for i in range(2):
                A('s_add_u32 m0, s30, %d' % ((n % NS) * 2048 + i * 1024))
                A('s_mov_b32 s31, %d' % ((32 * k + 16 * i) * stride + col))
                VQ.op(n, 'buffer_load_dwordx4 %s, %s, s31 offen lds' % (vo, sd))
        for n in range(min(NS, len(units))):
            dma(n)
        GR = 3 if NS > 5 else 1
        usep = 256 if krow == 'N' else 1024
        for n0 in range(0, len(units), GR):
            ns = list(range(n0, min(n0 + GR, len(units))))
            VQ.wait(ns[-1])
            for n in ns:
                for f, va, off in units[n][4]:
                    for u in range(2):
                        A('ds_read_b64_tr_b16 %s, %s offset:%d' % (wreg(f, nf, u), va, (n % NS) * 2048 + u * usep + off))
            A('s_waitcnt lgkmcnt(0)')
            for n in ns:
                if n + NS < len(units):
                    dma(n + NS)

    def w_lane(stride, krow, ccol):
        A('v_lshrrev_b32 v7, 2, v1')
        A('v_mul_u32_u24 v8, %d, v7' % stride)
        A('v_and_b32 v6, 3, v1')
        A('v_lshl_add_u32 v8, v6, 4, v8')
        A('v_lshrrev_b32 v5, 4, v1')
        A('v_and_b32 v7, 3, v7')
        A('v_lshl_add_u32 v7, v5, %d, v7' % (3 if krow == 'N' else 2))
        A('v_lshlrev_b32 v10, 6, v7')
        A('v_lshl_add_u32 v10, v6, %d, v10' % (4 if ccol == 'N' else 3))
        A('s_mul_i32 s30, %s, %d' % (S_W, 20 * 2048))
        A('v_add_u32 v10, s30, v10')

    S_U, S_DST, S_SRC, S_LDS, S_NEED, S_FLG, S_PUB = ['s%d' % i for i in range(40, 47)]

    def gemm(name, KS, NT, TS, ND, WPART, BUF, STEP, dsrc, ddst, checks, pubk, NB, PF, swaps, epi, mid=None, late=None):
        NF = KS * TS
        nf = KS * NT
        ACC = 8
        RING = ACC + 4 * NT * TS
        always = not checks
        A('v_lshlrev_b32 v0, 4, v1')
        A('v_mov_b32 v3, v0')
        A('v_mov_b32 v5, 0')
        A('s_mul_i32 %s, %s, %d' % (S_LDS, S_W, WPART))
        A('s_mov_b32 %s, 0' % S_PUB)
        A('s_barrier')

        def dma(i, VQ):
            if i % 4 == 0:
                A('s_add_u32 m0, %s, %d' % (S_LDS, i * 1024))
                if i:
                    A('s_add_u32 s47, %s, %d' % (S_SRC, i * 1024))
            VQ.op('dma', 'buffer_load_dwordx4 v0, %s, %s offen offset:%d sc1 lds' % (WS, 's47' if i >= 4 else S_SRC, (i % 4) * 1024))
            if i == ND - 1:
                A('s_add_u32 %s, %s, %d' % (S_SRC, S_SRC, dsrc))
                A('s_xor_b32 %s, %s, %d' % (S_LDS, S_LDS, BUF))

        def poll(VQ):
            VQ.op('poll', 'buffer_load_dword v5, v4, %s, 0 offen sc1' % WS)

        def body(j0, VQ, LQ, issued, nst):
            pieces = {}
            if issued is not None:
                gap = max(1, min(3, (NF - 1 - j0) // ND))
                for i in range(ND):
                    pieces.setdefault(min(j0 + i * gap, NF - 1), []).append(i)
                pollk = max(max(pieces) + 1, NF - (700 // (16 * NT)))
            for j in range(j0, NF):
                T, k = divmod(j, KS)
                if issued is None and j in (checks or [0]) and (j > j0 or j == 0):
                    if always:
                        A('s_cmp_lt_u32 %s, 64' % S_NEED)
                        A('s_cbranch_scc1 %s_V%d' % (name, j))
                    else:
                        A('s_cbranch_vccz %s_V%d' % (name, j))
                    variants.append((j, list(VQ.q), list(LQ.q)))
                    if not always:
                        poll(VQ)
                LQ.wait('f%d' % j)
                b = vr(RING + 4 * (j % NB), 4)
                fill = []
                if j + PF < NF:
                    fill.append(lambda j=j: LQ.op('f%d' % (j + PF), 'ds_read_b128 %s, v3 offset:%d' % (vr(RING + 4 * ((j + PF) % NB), 4), (j + PF) * 1024)))
                for i in pieces.get(j, ()):
                    fill.append(lambda i=i: dma(i, VQ))
                if j == pubk:
                    def pub():
                        L = A.newlabel('NP')
                        A('s_cmp_eq_u32 %s, 0' % S_PUB)
                        A('s_cbranch_scc1 %s' % L)
                        VQ.wait('st')
                        publish(S_FLG, S_U)
                        A('s_mov_b32 %s, 0' % S_PUB)
                        A.label(L)
                        VQ.q.append('pub?')
                    fill.append(pub)
                if issued is not None and not always and j == pollk:
                    fill.append(lambda: poll(VQ))
                if mid:
                    fill += mid(j, VQ)
                if issued is None and (j + 1) in checks:
                    fill.append(lambda: A('v_cmp_ge_u32 vcc, %s, v5' % S_NEED))
                for t in range(NT):
                    d = vr(ACC + 4 * (T * NT + t), 4)
                    w = wreg(k * NT + t, nf)
                    x, y = (b, w) if t in swaps else (w, b)
                    A('%s %s, %s, %s, %s' % (M32, d, x, y, '0' if k == 0 else d))
                    n = 1 if t < NT - 1 else len(fill)
                    for f in fill[:n]:
                        f()
                    fill = fill[n:]
            A('v_xor_b32 v3, %d, v3' % BUF)
            epi(VQ)
            A('s_add_u32 %s, %s, %d' % (S_DST, S_DST, ddst))
            A('s_add_u32 %s, %s, %d' % (S_U, S_U, STEP))

        def strict(VQ, tag):
            VQ.q = [x for x in VQ.q if x != 'pub?']
            VQ.wait(tag)

        variants = []
        A.label(name + '_S')
        if not always:
            A('s_add_u32 s48, %s, 1' % S_U)
            G.spin('v4', 'v5', 's48', 20)
        VQ = Q(A, 'vmcnt')
        for i in range(ND):
            dma(i, VQ)
        A('s_waitcnt vmcnt(0)')
        A.label(name + '_L')
        A('s_barrier')
        if OPT['ts']:
            L = A.newlabel('TS')
            if STEP == 1:
                A('s_cmp_lt_u32 %s, %d' % (S_U, OPT['ts0']))
                A('s_cbranch_scc1 %s' % L)
            G.ts()
            A.label(L)
        LQ = Q(A, 'lgkmcnt')
        for j in range(PF):
            LQ.op('f%d' % j, 'ds_read_b128 %s, v3 offset:%d' % (vr(RING + 4 * (j % NB), 4), j * 1024))
        A('s_add_u32 %s, %s, %d' % (S_NEED, S_U, STEP))
        if not always:
            A('s_cmp_lt_u32 %s, 64' % S_NEED)
            A('s_cselect_b32 %s, %s, -1' % (S_NEED, S_NEED))
            A('v_cmp_ge_u32 vcc, %s, v5' % S_NEED)
        VQ = Q(A, 'vmcnt')
        VQ.q = ['st']
        body(0, VQ, LQ, None, 0)
        if not always:
            poll(VQ)
        strict(VQ, 'st')
        publish(S_FLG, S_U)
        A('s_cmp_ge_u32 %s, 64' % S_U)
        A('s_cbranch_scc1 %s_E' % name)
        A('s_branch %s_S' % name)
        for j, vq, lq in variants:
            A.label('%s_V%d' % (name, j))
            VQ = Q(A, 'vmcnt')
            VQ.q = vq
            LQ = Q(A, 'lgkmcnt')
            LQ.q = lq
            body(j, VQ, LQ, j, 0)
            if late is not None and j >= late:
                A('s_waitcnt vmcnt(0)')
                publish(S_FLG, S_U)
            else:
                strict(VQ, 'dma')
                A('s_mov_b32 %s, 1' % S_PUB)
            A('s_branch %s_L' % name)
        A.label(name + '_E')
        G.ts()

    def red(r, t):
        A('v_add_f32_dpp v%d, v%d, v%d row_ror:8 row_mask:0xf bank_mask:0xf' % (r, r, r))
        A('v_mov_b32 v%d, v%d' % (t, r))
        A('v_permlane16_swap_b32 v%d, v%d' % (r, t))
        A('v_add_f32 v%d, v%d, v%d' % (r, r, t))
        A('v_mov_b32 v%d, v%d' % (t, r))
        A('v_permlane32_swap_b32 v%d, v%d' % (r, t))
        A('v_add_f32 v%d, v%d, v%d' % (r, r, t))

    def oct_lanes(vrow, vfrag, vhalf=None):
        A('v_and_b32 v7, 7, v1')
        A('v_bfe_u32 v6, v1, 3, 1')
        A('v_lshrrev_b32 v5, 4, v1')
        A('v_mul_u32_u24 %s, 1152, v7' % vrow)
        A('v_lshl_add_u32 %s, v6, 6, %s' % (vrow, vrow))
        A('v_lshl_add_u32 %s, v5, 4, %s' % (vrow, vrow))
        A('v_lshl_add_u32 v7, v5, 4, v7')
        A('v_lshlrev_b32 v6, 10, v6')
        A('v_lshl_add_u32 %s, v7, 4, v6' % vfrag)
        if vhalf:
            A('v_lshl_add_u32 %s, v7, 3, v6' % vhalf)

    def ln1():
        G.srd(20, G.P_X, 2048 * 1152)
        oct_lanes('v3', 'v4')
        A('s_lshl_b32 s36, s35, 2')
        A('s_add_u32 s36, s36, %s' % S_W)
        A('s_mul_i32 s32, s36, %d' % (8 * 1152))
        A('s_lshr_b32 s33, s36, 1')
        A('s_mul_i32 s33, s33, 18432')
        A('s_and_b32 s34, %s, 1' % S_W)
        A('s_lshl_b32 s34, s34, 7')
        A('s_add_u32 s33, s33, s34')
        A('s_add_u32 s33, s33, 0x%x' % W_XN)
        X, F = 16, 52
        for i in range(9):
            A('buffer_load_dwordx4 %s, v3, s[20:23], s32 offen offset:%d' % (vr(X + 4 * i, 4), i * 128))
        for i in range(9):
            A('s_waitcnt vmcnt(%d)' % (8 - i))
            for j in range(4):
                r = X + 4 * i + j
                A('v_lshlrev_b32 v%d, 16, v%d' % (F + 2 * (4 * i + j), r))
                A('v_and_b32 v%d, 0xffff0000, v%d' % (F + 2 * (4 * i + j) + 1, r))
            for j in range(4):
                p = F + 2 * (4 * i + j)
                acc = 8 + 2 * (j & 1)
                if i == 0 and j < 2:
                    A('v_pk_add_f32 %s, %s, %s' % (vr(acc, 2), vr(p, 2), vr(p + 4, 2)))
                elif i > 0:
                    A('v_pk_add_f32 %s, %s, %s' % (vr(acc, 2), vr(acc, 2), vr(p, 2)))
        if OPT['lt']:
            G.ts()
        A('v_pk_add_f32 v[8:9], v[8:9], v[10:11]')
        A('v_add_f32 v8, v8, v9')
        red(8, 9)
        A('v_mul_f32 v12, %s, v8' % G.fbits(-1.0 / 576))
        A('v_mov_b32 v13, v12')
        for i in range(36):
            p = F + 2 * i
            A('v_pk_add_f32 %s, %s, v[12:13]' % (vr(p, 2), vr(p, 2)))
        for i in range(36):
            p = F + 2 * i
            acc = 8 + 2 * (i & 1)
            if i < 2:
                A('v_pk_mul_f32 %s, %s, %s' % (vr(acc, 2), vr(p, 2), vr(p, 2)))
            else:
                A('v_pk_fma_f32 %s, %s, %s, %s' % (vr(acc, 2), vr(p, 2), vr(p, 2), vr(acc, 2)))
        A('v_pk_add_f32 v[8:9], v[8:9], v[10:11]')
        A('v_add_f32 v8, v8, v9')
        red(8, 9)
        A('v_mov_b32 v9, %s' % G.fbits(1e-5))
        A('v_fmac_f32 v9, %s, v8' % G.fbits(1.0 / 576))
        A('v_rsq_f32 v12, v9')
        A('v_mov_b32 v13, v12')
        for i in range(9):
            for j in range(4):
                p = F + 2 * (4 * i + j)
                A('v_pk_mul_f32 %s, %s, v[12:13]' % (vr(p, 2), vr(p, 2)))
            for j in range(4):
                cvt(X + 4 * i + j, F + 2 * (4 * i + j))
            if i and i % 2 == 0:
                A('s_add_u32 s33, s33, 4096')
            A('buffer_store_dwordx4 %s, v4, %s, s33 offen offset:%d sc1' % (vr(X + 4 * i, 4), WS, (i & 1) * 2048))
        if OPT['lt']:
            G.ts()
            A('s_waitcnt vmcnt(0)')
            G.ts()
        G.wait_ready('v6', 'v7')
        A('s_add_u32 s36, s36, %d' % F_XN)
        A('s_lshl_b32 s36, s36, 7')
        publish('s36', '1')
        G.ts()

    ID, RA, RB = 10, 12, 40

    def ident():
        A('v_and_b32 v7, 15, v1')
        A('v_lshrrev_b32 v6, 4, v1')
        A('v_lshlrev_b32 v6, 2, v6')
        A('v_sub_u32 v7, v7, v6')
        A('v_mov_b32 v5, 0x3f80')
        A('v_mov_b32 v6, 0x3f800000')
        for i in range(2):
            A('v_mov_b32 v%d, 0' % (ID + i))
            A('v_cmp_eq_u32 vcc, %d, v7' % (2 * i))
            A('v_cndmask_b32 v%d, v%d, v5, vcc' % (ID + i, ID + i))
            A('v_cmp_eq_u32 vcc, %d, v7' % (2 * i + 1))
            A('v_cndmask_b32 v%d, v%d, v6, vcc' % (ID + i, ID + i))

    def part_loads(VQ, np_, sbase):
        for n in range(np_):
            r = RB + 12 * (n + 1)
            if n:
                A('s_add_u32 %s, %s, 18432' % (sbase, sbase))
            for p in range(2):
                VQ.op((n + 1, p), 'buffer_load_dwordx4 %s, v8, %s, %s offen offset:%d sc1' % (vr(r + 4 * p, 4), WS, sbase, p * 2048))
            for i in range(2):
                VQ.op((n + 1, 2), 'buffer_load_dwordx2 %s, v9, %s, %s offen offset:%d sc1' % (vr(r + 8 + 2 * i, 2), WS, sbase, i * 512))

    def part_sum(VQ, np_):
        for n in range(np_ + 1):
            for p in range(3):
                VQ.wait((n, p))
                for i in range(2):
                    d = vr(RA + 8 * p + 4 * i, 4)
                    A('%s %s, %s, %s, %s' % (M16, d, vr(ID, 2), vr(RB + 12 * n + 4 * p + 2 * i, 2), '0' if n == 0 else d))

    def role_ln2():
        A('s_cmp_eq_u32 %s, 3' % S_W)
        A('s_cbranch_scc1 EXIT')
        G.srd(20, G.P_X, 2048 * 1152)
        ident()
        oct_lanes('v3', 'v8', 'v9')
        A('s_lshr_b32 s40, s35, 2')
        A('s_and_b32 s36, s35, 3')
        A('s_lshr_b32 s37, s36, 1')
        A('s_and_b32 s38, s36, 1')
        A('s_mul_i32 s32, s36, %d' % (8 * 1152))
        A('s_mul_i32 s33, %s, 384' % S_W)
        A('s_add_u32 s32, s32, s33')
        A('v_add_u32 v3, s32, v3')
        A('s_mul_i32 s33, %s, 6144' % S_W)
        A('s_lshl_b32 s34, s38, 7')
        A('s_add_u32 s34, s34, s33')
        A('v_add_u32 v8, s34, v8')
        A('s_lshl_b32 s34, s38, 6')
        A('s_add_u32 s34, s34, s33')
        A('s_add_u32 s34, s34, 4096')
        A('v_add_u32 v9, s34, v9')
        A('s_lshl_b32 s34, s37, 2')
        A('s_add_u32 s34, s34, %s' % S_W)
        A('s_lshl_b32 s34, s34, 4')
        A('s_add_u32 s34, s34, %d' % F_WO)
        A('v_min_u32 v4, 15, v1')
        A('v_add_u32 v4, s34, v4')
        A('v_lshlrev_b32 v4, 7, v4')
        A('s_lshl_b32 s45, s40, 1')
        A('s_add_u32 s45, s45, s38')
        A('s_mul_i32 s45, s45, 3')
        A('s_add_u32 s45, s45, %s' % S_W)
        A('s_lshl_b32 s34, s37, 5')
        A('s_add_u32 s45, s45, s34')
        A('s_add_u32 s45, s45, %d' % F_LN2)
        A('s_lshl_b32 s45, s45, 7')
        A('v_and_b32 v0, 7, v1')
        A('v_lshlrev_b32 v0, 3, v0')
        A('s_lshl_b32 s34, %s, 6' % S_W)
        A('s_mul_i32 s41, s37, %d' % (NPW * 18432))
        A('s_add_u32 s41, s41, 0x%x' % W_PW)
        A('s_mul_i32 s42, s37, 18432')
        G.wait_ready('v6', 'v7')
        A('v_add_u32 v6, s34, v0')
        A.label('LN2_L')
        VQ = Q(A, 'vmcnt')
        A('s_mul_i32 s43, s40, %d' % SEG_XN)
        for p in range(3):
            A('buffer_load_dwordx4 %s, v3, s[20:23], s43 offen offset:%d' % (vr(RB + 4 * p, 4), p * 128))
        A('s_mul_i32 s44, s40, %d' % SEG_PW)
        A('s_add_u32 s44, s44, s41')
        A('s_add_u32 s48, s40, 1')
        G.spin('v4', 'v5', 's48', 21)
        G.ts()
        part_loads(VQ, NPW, 's44')
        part_sum(VQ, NPW)
        A('s_add_u32 s43, s43, s42')
        A('s_add_u32 s44, s43, 0x%x' % W_HB)
        A('s_add_u32 s43, s43, 0x%x' % W_HN)
        A('s_add_u32 s46, s44, 4096')
        A('s_add_u32 s47, s43, 4096')
        t = RB + 12
        for i in range(3):
            A('v_pk_add_f32 %s, %s, %s' % (vr(t + 2 * i, 2), vr(RA + 2 * i, 2), vr(RA + 6 + 2 * i, 2)))
        for i in range(6):
            A('v_pk_add_f32 %s, %s, %s' % (vr(t + 2 * (i % 3), 2), vr(t + 2 * (i % 3), 2), vr(RA + 12 + 2 * i, 2)))
        A('v_pk_add_f32 %s, %s, %s' % (vr(t, 2), vr(t, 2), vr(t + 2, 2)))
        A('v_pk_add_f32 %s, %s, %s' % (vr(t, 2), vr(t, 2), vr(t + 4, 2)))
        A('v_add_f32 v%d, v%d, v%d' % (t, t, t + 1))
        for i in range(12):
            cvt(RB + i, RA + 2 * i)
        red(t, t + 1)
        A('v_mul_f32 v%d, %s, v%d' % (t + 8, G.fbits(1.0 / 192), t))
        A('v_mul_f32 v%d, %s, v%d' % (t + 6, G.fbits(-1.0 / 192), t))
        A('v_mov_b32 v%d, v%d' % (t + 7, t + 6))
        for i in range(12):
            A('v_pk_add_f32 %s, %s, %s' % (vr(RA + 2 * i, 2), vr(RA + 2 * i, 2), vr(t + 6, 2)))
        for i in range(12):
            a = vr(t + 2 * (i % 3), 2)
            p = vr(RA + 2 * i, 2)
            if i < 3:
                A('v_pk_mul_f32 %s, %s, %s' % (a, p, p))
            else:
                A('v_pk_fma_f32 %s, %s, %s, %s' % (a, p, p, a))
        A('v_pk_add_f32 %s, %s, %s' % (vr(t, 2), vr(t, 2), vr(t + 2, 2)))
        A('v_pk_add_f32 %s, %s, %s' % (vr(t, 2), vr(t, 2), vr(t + 4, 2)))
        A('v_add_f32 v%d, v%d, v%d' % (t + 9, t, t + 1))
        red(t + 9, t + 1)
        A('ds_write_b64 v6, %s' % vr(t + 8, 2))
        for p in range(3):
            A('buffer_store_dwordx4 %s, v8, %s, %s offen offset:%d sc1' % (vr(RB + 4 * p, 4), WS, 's44' if p < 2 else 's46', (p & 1) * 2048))
        A('s_waitcnt lgkmcnt(0)')
        A('s_barrier')
        for j in range(3):
            A('ds_read_b64 %s, v0 offset:%d' % (vr(t + 2 * j, 2), j * 64))
        A('v_xor_b32 v0, 256, v0')
        A('v_xor_b32 v6, 256, v6')
        A('s_waitcnt lgkmcnt(0)')
        m, v = t + 10, t + 11
        A('v_add_f32 v%d, v%d, v%d' % (m, t, t + 2))
        A('v_add_f32 v%d, v%d, v%d' % (v, t + 1, t + 3))
        A('v_add_f32 v%d, v%d, v%d' % (m, m, t + 4))
        A('v_add_f32 v%d, v%d, v%d' % (v, v, t + 5))
        A('v_mul_f32 v%d, %s, v%d' % (m, G.fbits(1.0 / 3), m))
        A('v_mul_f32 v%d, %s, v%d' % (v, G.fbits(1.0 / 192), v))
        for j in range(3):
            A('v_sub_f32 v%d, v%d, v%d' % (t + 2 * j, t + 2 * j, m))
        for j in range(3):
            A('v_fmac_f32 v%d, v%d, v%d' % (v, t + 2 * j, t + 2 * j))
        A('v_mov_b32 v%d, %s' % (t, G.fbits(1e-5)))
        A('v_fmac_f32 v%d, %s, v%d' % (t, G.fbits(1.0 / 3), v))
        A('v_rsq_f32 v%d, v%d' % (t, t))
        A('v_sub_f32 v%d, v%d, v%d' % (t + 2, t + 8, m))
        A('v_mov_b32 v%d, v%d' % (t + 1, t))
        A('v_mul_f32 v%d, v%d, v%d' % (t + 2, t + 2, t))
        A('v_mov_b32 v%d, v%d' % (t + 3, t + 2))
        H = RB + 24
        for p in range(3):
            for i in range(4):
                a = vr(RA + 8 * p + 2 * i, 2)
                A('v_pk_fma_f32 %s, %s, %s, %s' % (a, a, vr(t, 2), vr(t + 2, 2)))
            for i in range(4):
                cvt(H + 4 * p + i, RA + 8 * p + 2 * i)
            A('buffer_store_dwordx4 %s, v8, %s, %s offen offset:%d sc1' % (vr(H + 4 * p, 4), WS, 's43' if p < 2 else 's47', (p & 1) * 2048))
        A('s_add_u32 s40, s40, 2')
        A('s_waitcnt vmcnt(0)')
        publish('s45', 's40')
        G.ts()
        A('s_cmp_lt_u32 s40, 64')
        A('s_cbranch_scc1 LN2_L')

    def role_fin():
        G.srd(20, G.P_OUT, 2048 * 1152)
        ident()
        oct_lanes('v3', 'v0', 'v4')
        A('v_add_u32 v36, 4096, v4')
        A('v_min_u32 v4, 15, v1')
        A('v_lshlrev_b32 v4, 7, v4')
        A.label('FIN_L')
        A('s_mul_i32 s40, s35, 43691')
        A('s_lshr_b32 s40, s40, 19')
        A('s_mul_i32 s36, s40, 12')
        A('s_sub_u32 s36, s35, s36')
        A('s_and_b32 s37, s36, 3')
        A('s_lshr_b32 s36, s36, 2')
        A('s_lshr_b32 s38, s37, 1')
        A('s_and_b32 s39, s37, 1')
        A('s_mul_i32 s33, s36, 6144')
        A('s_lshl_b32 s34, s39, 7')
        A('s_add_u32 s34, s34, s33')
        A('v_add_u32 v8, s34, v0')
        A('s_lshl_b32 s34, s39, 6')
        A('s_add_u32 s34, s34, s33')
        A('v_add_u32 v9, s34, v36')
        A('s_lshl_b32 s34, s38, 2')
        A('s_add_u32 s34, s34, s36')
        A('s_lshl_b32 s34, s34, 11')
        A('s_add_u32 s34, s34, %d' % (F_F2 * 128))
        A('s_lshl_b32 s41, s40, 1')
        A('s_add_u32 s41, s41, s38')
        A('s_mul_i32 s43, s41, 18432')
        A('s_add_u32 s43, s43, 0x%x' % W_HB)
        A('s_add_u32 s46, s43, 4096')
        A('s_mul_i32 s44, s41, %d' % (NPF * 18432))
        A('s_add_u32 s44, s44, 0x%x' % W_PF)
        A('s_add_u32 s48, s40, 1')
        G.spin('v4', 'v5', 's48', 22, WS, 's34')
        G.ts()
        VQ = Q(A, 'vmcnt')
        for p in range(3):
            VQ.op((0, p), 'buffer_load_dwordx4 %s, v8, %s, %s offen offset:%d sc1' % (vr(RB + 4 * p, 4), WS, 's43' if p < 2 else 's46', (p & 1) * 2048))
        part_loads(VQ, NPF, 's44')
        A('s_lshl_b32 s41, s40, 2')
        A('s_add_u32 s41, s41, s37')
        A('s_mul_i32 s41, s41, %d' % (8 * 1152))
        A('s_mul_i32 s33, s36, 384')
        A('s_add_u32 s41, s41, s33')
        part_sum(VQ, NPF)
        for p in range(3):
            for i in range(4):
                cvt(RB + 4 * p + i, RA + 8 * p + 2 * i)
            A('buffer_store_dwordx4 %s, v3, s[20:23], s41 offen offset:%d' % (vr(RB + 4 * p, 4), p * 128))
        A('s_add_u32 s35, s35, 256')
        A('s_cmp_lt_u32 s35, 768')
        A('s_cbranch_scc1 FIN_L')

    def role_qkv():
        G.srd(12, G.P_WQ, 576 * 8192)
        G.srd(16, G.P_WK, 576 * 8192)
        G.srd(20, G.P_WV, 576 * 8192)
        NS, GR = 18, 3
        A('v_lshrrev_b32 v7, 3, v1')
        A('v_and_b32 v6, 3, v7')
        A('v_lshlrev_b32 v6, 1, v6')
        A('v_and_b32 v5, 7, v1')
        A('v_xor_b32 v6, v6, v5')
        A('v_lshlrev_b32 v8, 13, v7')
        A('v_lshl_add_u32 v8, v6, 4, v8')
        A('s_and_b32 s32, %s, 1' % S_W)
        A('s_and_b32 s33, %s, 2' % S_W)
        A('s_lshl_b32 s34, s36, 2')
        A('s_add_u32 s34, s34, s33')
        A('s_lshl_b32 s34, s34, 6')
        A('s_lshl_b32 s31, s32, 17')
        A('s_add_u32 s34, s34, s31')
        A('v_add_u32 v8, s34, v8')
        A('s_mul_i32 s30, %s, %d' % (S_W, NS * 2048))
        VQ = Q(A, 'vmcnt')

        def dma(n):
            for i in range(2):
                A('s_add_u32 m0, s30, %d' % ((n % NS) * 2048 + i * 1024))
                A('s_mov_b32 s31, %d' % ((32 * (n // 3) + 8 * i) * 8192))
                VQ.op(n, 'buffer_load_dwordx4 v8, %s, s31 offen lds' % sr(12 + 4 * (n % 3), 4))
        for n in range(NS):
            dma(n)
        A('v_lshrrev_b32 v5, 5, v1')
        A('v_add_u32 v5, s33, v5')
        A('v_mul_u32_u24 v10, %d, v5' % (NS * 2048))
        A('v_bfe_u32 v5, v1, 4, 1')
        A('v_bfe_u32 v6, v1, 2, 2')
        A('v_lshl_add_u32 v5, v5, 3, v6')
        A('v_lshl_add_u32 v10, v5, 7, v10')
        A('s_lshl_b32 s32, s32, 1')
        A('v_xor_b32 v6, s32, v6')
        A('v_lshl_add_u32 v10, v6, 5, v10')
        A('v_and_b32 v6, 3, v1')
        A('v_lshl_add_u32 v10, v6, 3, v10')
        A('v_xor_b32 v11, 32, v10')
        for n0 in range(0, 54, GR):
            VQ.wait(n0 + GR - 1)
            A('s_barrier')
            for n in range(n0 - GR + NS, n0 + NS):
                if NS <= n < 54:
                    dma(n)
            for n in range(n0, n0 + GR):
                for t in range(2):
                    for u in range(2):
                        A('ds_read_b64_tr_b16 %s, v%d offset:%d' % (wreg(2 * n + t, 108, u), 10 + t, (n % NS) * 2048 + u * 512))
            A('s_waitcnt lgkmcnt(0)')
        G.ts()
        G.wait_ready('v6', 'v7')
        A('v_lshlrev_b32 v4, 7, v1')
        for i in range(4):
            A('s_mov_b32 s48, %d' % (F_XN * 128 + i * 8192))
            G.spin('v4', 'v5', '1', 23, WS, 's48')
        A('s_mov_b32 %s, s37' % S_U)
        A('s_mul_i32 %s, s37, %d' % (S_DST, SEG_QKV))
        A('s_lshl_b32 s33, s36, 21')
        A('s_add_u32 %s, %s, s33' % (S_DST, S_DST))
        A('s_lshl_b32 s50, %s, 11' % S_W)
        A('s_add_u32 %s, %s, s50' % (S_DST, S_DST))
        A('s_add_u32 %s, %s, 0x%x' % (S_DST, S_DST, W_QKV))
        A('s_add_u32 s50, s50, 8192')
        A('s_mul_i32 %s, s37, %d' % (S_SRC, SEG_XN))
        A('s_mul_i32 s33, %s, 9216' % S_W)
        A('s_add_u32 %s, %s, s33' % (S_SRC, S_SRC))
        A('s_add_u32 %s, %s, 0x%x' % (S_SRC, S_SRC, W_XN))
        A('s_lshl_b32 s35, s36, 1')
        A('s_add_u32 s35, s35, s37')
        A('s_lshl_b32 s35, s35, 2')
        A('s_add_u32 s35, s35, %s' % S_W)
        A('s_lshr_b32 %s, s35, 2' % S_FLG)
        A('s_add_u32 %s, %s, %d' % (S_FLG, S_FLG, F_QKV))
        A('s_lshl_b32 %s, %s, 5' % (S_FLG, S_FLG))
        A('s_add_u32 %s, %s, %s' % (S_FLG, S_FLG, S_W))
        A('s_lshl_b32 %s, %s, 2' % (S_FLG, S_FLG))
        a, b = 8, 32
        A('s_mov_b32 s52, %s' % G.fbits(G.LOG2E / math.sqrt(128.0)))
        A('s_mov_b32 s53, s52')

        def scale(r, n):
            for i in range(r, r + n, 2):
                A('v_pk_mul_f32 %s, %s, s[52:53]' % (vr(i, 2), vr(i, 2)))

        def st(VQ, r, so, off):
            VQ.op('st', 'buffer_store_dwordx4 %s, v0, %s, %s offen offset:%d sc1' % (vr(r, 4), WS, so, off))

        def mid(j, VQ):
            if j == 19:
                return [lambda: [cvt(a + i, a + 2 * i) for i in range(2)], lambda: [cvt(a + i, a + 2 * i) for i in range(2, 4)],
                        lambda: st(VQ, a, S_DST, 0), lambda: A('s_add_u32 s49, %s, s50' % S_DST)]
            if j == 20:
                return [lambda: scale(a + 8, 4), lambda: scale(a + 12, 4)]
            if j == 21:
                return [lambda: [cvt(a + 8 + i, a + 8 + 2 * i) for i in range(2)], lambda: [cvt(a + 8 + i, a + 8 + 2 * i) for i in range(2, 4)],
                        lambda: st(VQ, a + 8, 's49', 0)]
            if j == 22:
                return [lambda: [cvt(a + 16 + i, a + 16 + 2 * i) for i in range(2)], lambda: [cvt(a + 20 + i, a + 20 + 2 * i) for i in range(2)]]
            return []

        def epi(VQ):
            for m, so in ((0, S_DST), (8, 's49')):
                if m:
                    scale(b + m, 8)
                for i in range(4):
                    cvt(b + m + i, b + m + 2 * i)
                st(VQ, b + m, so, 1024)
            for t in range(2):
                for i in range(2):
                    cvt(a + 18 + 4 * t + i, b + 16 + 4 * t + 2 * i)
                st(VQ, a + 16 + 4 * t, 's49', 2048 + 1024 * t)
        gemm('QKV', 18, 6, 2, 9, 9216, 65536, 2, 2 * SEG_XN, 2 * SEG_QKV, [], 7, 6, 4, (4, 5), epi, mid)

    def role_f1():
        G.srd(12, G.P_WG, 576 * 9216)
        G.srd(16, G.P_WU, 576 * 9216)
        w_lane(9216, 'N', 'N')
        A('s_mul_i32 s33, s36, 384')
        A('s_lshr_b32 s34, %s, 1' % S_W)
        A('s_lshl_b32 s34, s34, 6')
        A('s_add_u32 s34, s34, s33')
        A('v_add_u32 v9, s34, v8')
        A('s_lshl_b32 s34, %s, 6' % S_W)
        A('s_add_u32 s34, s34, s33')
        A('v_add_u32 v8, s34, v8')
        A('s_and_b32 s34, %s, 1' % S_W)
        A('s_lshl_b32 s34, s34, 5')
        A('v_lshlrev_b32 v6, 3, v6')
        A('v_sub_u32 v11, v10, v6')
        A('v_add_u32 v11, s34, v11')
        units = []
        for k in range(18):
            for m in range(2):
                units.append((sr(12 + 4 * m, 4), 'v8', 0, k, [(k * 6 + 3 * m + t, 'v10', 8 * t) for t in range(2)]))
                units.append((sr(12 + 4 * m, 4), 'v9', 256, k, [(k * 6 + 3 * m + 2, 'v11', 0)]))
        load_weights(units, 108, 9216, 'N', OPT['d1'])
        G.ts()
        G.wait_ready('v6', 'v7')
        A('s_mov_b32 %s, 0' % S_U)
        A('s_mul_i32 %s, s37, 144' % S_DST)
        A('s_mul_i32 s34, s36, 6')
        A('s_add_u32 s34, s34, %s' % S_W)
        A('s_add_u32 %s, %s, s34' % (S_DST, S_DST))
        A('s_lshl_b32 s34, %s, 9' % S_W)
        A('s_sub_u32 s34, 4096, s34')
        A('v_and_b32 v6, 15, v1')
        A('v_lshlrev_b32 v6, 4, v6')
        A('v_lshrrev_b32 v5, 5, v1')
        A('v_lshl_add_u32 v6, v5, 8, v6')
        A('v_bfe_u32 v5, v1, 4, 1')
        A('v_lshl_add_u32 v6, v5, 3, v6')
        A('v_add_u32 v6, s34, v6')
        A('s_lshl_b32 s34, s36, 2')
        A('s_add_u32 s34, s34, %s' % S_W)
        A('s_lshl_b32 %s, %s, 10' % (S_DST, S_DST))
        A('s_add_u32 %s, %s, 0x%x' % (S_DST, S_DST, W_ACT))
        A('s_mul_i32 %s, s37, 18432' % S_SRC)
        A('s_mul_i32 s33, %s, 4480' % S_W)
        A('s_add_u32 %s, %s, s33' % (S_SRC, S_SRC))
        A('s_add_u32 %s, %s, 0x%x' % (S_SRC, S_SRC, W_HN))
        A('s_mul_i32 %s, s37, 160' % S_FLG)
        A('s_add_u32 %s, %s, s34' % (S_FLG, S_FLG))
        A('s_add_u32 %s, %s, %d' % (S_FLG, S_FLG, F_F1))
        A('s_lshl_b32 %s, %s, 7' % (S_FLG, S_FLG))
        A('s_lshl_b32 s33, s37, 5')
        A('s_add_u32 s33, s33, %d' % F_LN2)
        A('v_min_u32 v4, 11, v1')
        A('v_add_u32 v4, s33, v4')
        A('v_lshlrev_b32 v4, 7, v4')
        A('s_mov_b32 s50, %s' % G.fbits(-G.LOG2E))

        def epi(VQ):
            g, u, t = 8, 20, 64
            for lo, n in ((0, 8), (8, 4)):
                for i in range(lo, lo + n):
                    A('v_mul_f32 v%d, s50, v%d' % (t + i, g + i))
                for i in range(lo, lo + n):
                    A('v_exp_f32 v%d, v%d' % (t + i, t + i))
                for i in range(lo, lo + n):
                    A('v_add_f32 v%d, 1.0, v%d' % (t + i, t + i))
                for i in range(lo, lo + n):
                    A('v_rcp_f32 v%d, v%d' % (t + i, t + i))
                for i in range(lo, lo + n, 2):
                    A('v_pk_mul_f32 %s, %s, %s' % (vr(g + i, 2), vr(g + i, 2), vr(u + i, 2)))
                for i in range(lo, lo + n, 2):
                    A('v_pk_mul_f32 %s, %s, %s' % (vr(g + i, 2), vr(g + i, 2), vr(t + i, 2)))
                for i in range(0, n, 2):
                    cvt(t + lo + i // 2, g + lo + i)
                VQ.op('st', 'buffer_store_dwordx%d %s, %s, %s, %s offen sc1' % (n // 2, vr(t + lo, n // 2), 'v6' if lo else 'v0', WS, S_DST))
        gemm('F1', 18, 6, 1, 5, 4480, 32768, 1, SEG_XN, SEG_ACT, [0, 5, 10, 14], 6, 8, 4, (), epi, late=10)

    def role_part(name):
        wo = name == 'WO'
        KS, NP = (32, NPW) if wo else (36, NPF)
        G.srd(12, G.P_WO if wo else G.P_WD, NP * KS * 32 * 1152)
        krow = 'D' if wo else 'N'
        w_lane(1152, krow, 'N')
        A('s_mul_i32 s33, s36, %d' % (KS * 32 * 1152))
        A('s_mul_i32 s34, s38, 384')
        A('s_add_u32 s33, s33, s34')
        A('s_lshr_b32 s34, %s, 1' % S_W)
        A('s_lshl_b32 s34, s34, 6')
        A('s_add_u32 s34, s34, s33')
        A('v_add_u32 v9, s34, v8')
        A('s_lshl_b32 s34, %s, 6' % S_W)
        A('s_add_u32 s34, s34, s33')
        A('v_add_u32 v8, s34, v8')
        A('s_and_b32 s34, %s, 1' % S_W)
        A('s_lshl_b32 s34, s34, 3')
        A('v_add_u32 v11, s34, v10')
        units = []
        for k in range(KS):
            units.append(('s[12:15]', 'v8', 0, k, [(k * 3 + t, 'v10', 8 * t) for t in range(2)]))
            units.append(('s[12:15]', 'v9', 256, k, [(k * 3 + 2, 'v11', 0)]))
        load_weights(units, KS * 3, 1152, krow, OPT['dw' if wo else 'd2'])
        G.ts()
        G.wait_ready('v6', 'v7')
        A('s_mov_b32 %s, 0' % S_U)
        A('s_mul_i32 s33, s37, %d' % NP)
        A('s_add_u32 s33, s33, s36')
        A('s_mul_i32 %s, s33, 18432' % S_DST)
        A('s_mul_i32 s34, s38, 6144')
        A('s_add_u32 %s, %s, s34' % (S_DST, S_DST))
        A('s_lshl_b32 s34, %s, 10' % S_W)
        A('s_add_u32 %s, %s, s34' % (S_DST, S_DST))
        A('s_add_u32 %s, %s, 0x%x' % (S_DST, S_DST, W_PW if wo else W_PF))
        A('s_lshl_b32 s34, %s, 9' % S_W)
        A('s_sub_u32 s34, 4096, s34')
        A('v_lshlrev_b32 v6, 3, v1')
        A('v_add_u32 v6, s34, v6')
        A('s_lshl_b32 s33, s33, 2')
        A('s_add_u32 s33, s33, %s' % S_W)
        A('s_mul_i32 %s, s33, %d' % (S_SRC, KS * 256))
        A('s_add_u32 %s, %s, 0x%x' % (S_SRC, S_SRC, W_O if wo else W_ACT))
        A('s_lshl_b32 s33, s36, 2')
        A('s_add_u32 s33, s33, %s' % S_W)
        A('s_lshl_b32 s34, s37, 2')
        A('s_add_u32 s34, s34, s38')
        A('s_lshl_b32 s34, s34, 4')
        A('s_add_u32 %s, s34, s33' % S_FLG)
        A('s_add_u32 %s, %s, %d' % (S_FLG, S_FLG, F_WO if wo else F_F2))
        A('s_lshl_b32 %s, %s, 7' % (S_FLG, S_FLG))
        if wo:
            A('s_lshl_b32 s33, s33, 3')
            A('s_add_u32 s33, s33, %d' % F_ATT)
            A('v_min_u32 v4, 7, v1')
        else:
            A('s_mul_i32 s33, s33, 6')
            A('s_and_b32 s33, s33, -4')
            A('s_mul_i32 s34, s37, 160')
            A('s_add_u32 s33, s33, s34')
            A('s_add_u32 s33, s33, %d' % F_F1)
            A('v_min_u32 v4, 7, v1')
        A('v_add_u32 v4, s33, v4')
        A('v_lshlrev_b32 v4, 7, v4')

        def epi(VQ):
            for i in range(4):
                cvt(60 + i, 8 + 2 * i)
            VQ.op('st', 'buffer_store_dwordx4 v[60:63], v0, %s, %s offen sc1' % (WS, S_DST))
            for i in range(2):
                cvt(64 + i, 16 + 2 * i)
            VQ.op('st', 'buffer_store_dwordx2 v[64:65], v6, %s, %s offen sc1' % (WS, S_DST))
        if wo:
            gemm(name, 32, 3, 1, 8, 8192, 32768, 1, SEG_O, SEG_PW, [0, 8, 16, 24], 12, 8, 6, (), epi, late=16)
        else:
            gemm(name, 36, 3, 1, 9, 9216, 65536, 1, SEG_ACT, SEG_PF, [0, 9, 18, 27], 12, 8, 6, (), epi, late=18)

    def role_am():
        SMF = 'v_smfmac_f32_16x16x64_bf16'
        IDX, SEL, MX, LX, AX, AQ = 6, 10, 12, 13, 13, 17
        QF, KF, VF, MF, SX, PB, O, KA, VA, KM, SM, PM, VP, OM = 24, 40, 72, 88, 124, 132, 136, 152, 160, 168, 184, 188, 192, 196
        L_QK, L_M, L_KM, L_VM = 0, 16384, 24576, 28672

        def FR(n, sub=None):
            k, b = ('a', 8 * n) if n < 32 else ('v', 224 + 8 * (n - 32))
            return vr(b, 8, k) if sub is None else vr(b + 2 * sub, 2, k)
        G.srd(16, G.P_WK, 576 * 8192)
        G.srd(20, G.P_WV, 576 * 8192)
        A('v_lshlrev_b32 v0, 4, v1')
        A('s_lshl_b32 s36, s35, 2')
        A('s_add_u32 s36, s36, %s' % S_W)
        A('s_mul_i32 s30, %s, 36864' % S_W)
        A('v_lshrrev_b32 v7, 2, v1')
        A('v_and_b32 v5, 3, v1')
        A('v_lshlrev_b32 v8, 13, v7')
        A('v_lshl_add_u32 v8, v5, 4, v8')
        A('s_lshl_b32 s33, s36, 6')
        A('v_add_u32 v8, s33, v8')
        VQ = Q(A, 'vmcnt')

        def dma(n):
            for i in range(4):
                A('s_add_u32 m0, s30, %d' % ((n % 9) * 4096 + i * 1024))
                if i:
                    A('s_add_u32 s31, s31, %d' % (16 * 8192))
                elif n % 9 < 8:
                    A('s_xor_b32 s31, %s, %d' % (S_W, n % 9))
                    A('s_lshl_b32 s31, s31, 19')
                else:
                    A('s_mov_b32 s31, %d' % (8 << 19))
                VQ.op(n, 'buffer_load_dwordx4 v8, %s, s31 offen lds' % ('s[16:19]', 's[20:23]')[n // 9])
        A('s_mov_b32 s51, 0x%x' % SENT)
        for i in range(4):
            A('v_mov_b32 v%d, s51' % (16 + i))
        A('s_mul_i32 s33, s36, 4608')
        A('s_add_u32 s33, s33, 0x%x' % W_ME)
        for o in (0, 1024, 2048, 3072, 3584):
            VQ.op('z', 'buffer_store_dwordx4 v[16:19], v0, %s, s33 offen offset:%d sc1' % (WS, o))
        for n in range(OPT['da']):
            dma(n)
        A('v_lshrrev_b32 v3, 5, v1')
        A('v_bfe_u32 v4, v1, 4, 1')
        A('v_lshl_add_u32 v9, v3, 3, v4')
        A('v_and_b32 v7, 3, v7')
        A('v_lshl_add_u32 v9, v7, 1, v9')
        A('v_lshlrev_b32 v9, 7, v9')
        A('v_lshl_add_u32 v9, v5, 3, v9')
        A('v_add_u32 v9, s30, v9')
        VQ.wait('z')
        A('s_barrier')
        A('s_cmp_lg_u32 %s, 0' % S_W)
        A('s_cbranch_scc1 AM_NA')
        A('v_mov_b32 v3, 1')
        A('v_mov_b32 v7, %d' % (D_CBAR * 4))
        A('s_mov_b64 exec, 1')
        A('buffer_atomic_add v3, v7, %s, 0 offen sc1' % G.DBG)
        A('s_mov_b64 exec, -1')
        A.label('AM_NA')
        for n in range(18):
            VQ.wait(n)
            for t in range(2):
                for z in range(2):
                    for u in range(2):
                        A('ds_read_b64_tr_b16 %s, v9 offset:%d' % (FR(2 * n + t, 2 * z + u), (n % 9) * 4096 + z * 2048 + u * 64 + t * 32))
            if n + OPT['da'] < 18:
                A('s_waitcnt lgkmcnt(0)')
                dma(n + OPT['da'])
        A('v_and_b32 v7, 8, v1')
        A('v_mov_b32 v%d, 0x4444' % IDX)
        A('v_mov_b32 v3, 0xeeee')
        A('v_cmp_ne_u32 vcc, 0, v7')
        A('v_cndmask_b32 v%d, v%d, v3, vcc' % (IDX, IDX))
        A('v_and_b32 v7, 7, v1')
        A('v_lshlrev_b32 v4, 2, v4')
        A('v_sub_u32 v7, v7, v4')
        A('v_mov_b32 v5, 0x3f80')
        A('v_mov_b32 v4, 0x3f800000')
        for i in range(2):
            A('v_mov_b32 v%d, 0' % (SEL + i))
            A('v_cmp_eq_u32 vcc, %d, v7' % (2 * i))
            A('v_cndmask_b32 v%d, v%d, v5, vcc' % (SEL + i, SEL + i))
            A('v_cmp_eq_u32 vcc, %d, v7' % (2 * i + 1))
            A('v_cndmask_b32 v%d, v%d, v4, vcc' % (SEL + i, SEL + i))
        A('v_and_b32 v7, 15, v1')
        A('v_lshrrev_b32 v5, 4, v1')
        A('v_lshlrev_b32 v5, 2, v5')
        A('v_sub_u32 v7, v7, v5')
        for r in range(4):
            A('v_cmp_le_i32 s[%d:%d], %d, v7' % (52 + 2 * r, 53 + 2 * r, r))
        A('v_mov_b32 v3, %s' % G.fbits(-1e9 * G.LOG2E))
        A('v_mov_b32 v%d, 0' % (PB + 2))
        A('v_mov_b32 v%d, 0' % (PB + 3))
        A('s_mov_b32 s50, %s' % G.fbits(G.LOG2E / math.sqrt(128.0)))
        A('s_add_u32 s45, s36, %d' % F_ATT)
        A('s_lshl_b32 s45, s45, 7')
        A('s_lshl_b32 s41, s35, 21')
        A('s_lshl_b32 s33, %s, 11' % S_W)
        A('s_add_u32 s41, s41, s33')
        A('s_add_u32 s41, s41, 0x%x' % W_QKV)
        A('s_add_u32 s46, s33, 8192')
        A('s_lshl_b32 s42, s36, 10')
        A('s_and_b32 s37, %s, 1' % S_W)
        A('s_lshl_b32 s33, s37, 17')
        A('s_add_u32 s42, s42, s33')
        A('s_add_u32 s42, s42, 0x%x' % W_O)
        A('s_lshl_b32 s43, %s, 10' % S_W)
        A('v_add_u32 v8, s43, v0')
        A('v_add_u32 v%d, s43, v8' % AQ)
        for j in range(1, 4):
            A('v_xor_b32 v%d, %d, v8' % (AX + j, 1024 * j))
            A('v_xor_b32 v%d, %d, v%d' % (AQ + j, 2048 * j, AQ))
        A('s_mov_b32 s43, 0x%x' % W_ME)
        A('s_and_b32 s44, s35, 8')
        A('s_mul_i32 s44, s44, 3')
        A('s_add_u32 s44, s44, s35')
        A('s_and_b32 s44, s44, 0x27')
        A('s_lshl_b32 s33, %s, 3' % S_W)
        A('s_add_u32 s44, s44, s33')
        A('s_lshl_b32 s44, s44, 7')
        A('s_mov_b32 s40, 0')
        A('s_waitcnt lgkmcnt(0)')
        A('v_and_b32 v9, 0x300, v0')
        A('v_and_b32 v4, 7, v1')
        A('v_lshl_add_u32 v9, v4, 5, v9')
        A('v_and_b32 v4, 8, v1')
        A('v_lshl_add_u32 v9, v4, 1, v9')
        G.ts()
        G.wait_ready('v4', 'v5')
        A('v_mov_b32 v4, %d' % (D_CBAR * 4))
        G.spin('v4', 'v5', '64', 25, G.DBG, op='ushort')
        A('v_and_b32 v4, 0x23, v1')
        A('v_lshlrev_b32 v4, 2, v4')
        A('s_lshl_b32 s33, s35, 8')
        A('s_add_u32 s33, s33, %d' % (F_QKV * 128))
        G.spin('v4', 'v5', '2', 24, WS, 's33')
        A('v_mov_b32 v4, s44')
        A('s_barrier')

        def loads():
            o = ['s_add_u32 s47, s41, s46', 's_lshl_b32 m0, %s, 11' % S_W]
            o += ['buffer_load_dwordx4 v0, %s, s41 offen offset:%d sc1 lds' % (WS, T * 1024) for T in range(2)]
            o += ['s_add_u32 m0, m0, 8192', 's_xor_b32 s48, s47, 4096']
            o += ['buffer_load_dwordx4 v0, %s, s47 offen offset:%d sc1 lds' % (WS, T * 1024) for T in range(2)]
            o += ['buffer_load_dwordx4 %s, v0, %s, s%d offen offset:%d sc1' % (vr(VF + 4 * i, 4), WS, 47 + (i >> 1), 2048 + (i & 1) * 1024) for i in range(4)]
            return o + ['s_add_u32 s41, s41, %d' % SEG_QKV]

        def xred(r, t, op, sw):
            return ['v_mov_b32 v%d, v%d' % (t, r), 'v_permlane%d_swap_b32 v%d, v%d' % (sw, r, t), '%s v%d, v%d, v%d' % (op, r, r, t)]

        def emit(l):
            for x in l:
                A(x)

        def poll():
            A('v_mov_b32 v5, 0')
            A('s_mov_b64 exec, 1')
            A('buffer_atomic_or v5, v4, %s, s43 offen sc0 sc1' % WS)
            A('s_mov_b64 exec, -1')
        SP = 212

        def mloads():
            return ['s_lshl_b32 s47, %s, 10' % S_W, 's_add_u32 s47, s47, s43', 's_add_u32 s48, s47, 4096',
                    'buffer_load_dwordx4 %s, v9, %s, s47 offen sc1' % (vr(SP, 4), WS), 's_add_u32 s47, s43, 8192',
                    'buffer_load_dwordx4 %s, v9, %s, s48 offen sc1' % (vr(SP + 4, 4), WS),
                    'buffer_load_dwordx4 %s, v9, %s, s47 offen sc1' % (vr(SP + 8, 4), WS)]

        def bound():
            A('s_add_u32 s27, s27, 1')
            A('s_cmp_ge_u32 s27, %d' % G.SPIN_MAX)
            A('s_cbranch_scc1 FAIL')

        def step(T):
            P = 'AM%d_' % T
            A.label(P + 'L')
            A('s_barrier')
            LQ = Q(A, 'lgkmcnt')
            for j in range(4):
                LQ.op(j, 'ds_read_b128 %s, v%d offset:%d' % (vr(QF + 4 * j, 4), AQ + j, L_QK + 1024 * T))
                for tk in range(T + 1):
                    LQ.op(j, 'ds_read_b128 %s, v%d offset:%d' % (vr(KF + 8 * j + 4 * tk, 4), AQ + j, L_QK + 8192 + 1024 * tk))
            for r in range(KA, KA + 16, 2):
                A('v_mov_b64 %s, 0' % vr(r, 2))
            for j in range(4):
                LQ.wait(j)
                for tk in range(T + 1):
                    d = vr(SX + 4 * tk, 4)
                    A('%s %s, %s, %s, %s' % (M32, d, vr(KF + 8 * j + 4 * tk, 4), vr(QF + 4 * j, 4), '0' if j == 0 else d))
            D = SX + 4 * T
            if T:
                A('v_max3_f32 v%d, v%d, v%d, v%d' % (MX, SX, SX + 1, SX + 2))
            for r in range(4):
                A('v_cndmask_b32 v%d, v3, v%d, s[%d:%d]' % (D + r, D + r, 52 + 2 * r, 53 + 2 * r))
            if T:
                A('v_max3_f32 v%d, v%d, v%d, v%d' % (MX, MX, SX + 3, D))
            A('v_max3_f32 v%d, v%d, v%d, v%d' % (MX, MX if T else D, D + 1, D + 2))
            A('v_max_f32 v%d, v%d, v%d' % (MX, MX, D + 3))
            emit(xred(MX, LX, 'v_max_f32', 16) + xred(MX, LX, 'v_max_f32', 32))
            for r in range(SX, D + 4):
                A('v_sub_f32 v%d, v%d, v%d' % (r, r, MX))
            for r in range(SX, D + 4):
                A('v_exp_f32 v%d, v%d' % (r, r))
            for i in range(2 * T + 2):
                cvt(PB + i, SX + 2 * i)
            sm = ['v_pk_add_f32 %s, %s, %s' % (vr(SX, 2), vr(SX, 2), vr(SX + 2 * i, 2)) for i in range(1, 2 * T + 2)]
            sm += ['v_add_f32 v%d, v%d, v%d' % (LX, SX, SX + 1)] + xred(LX, SX, 'v_add_f32', 16) + xred(LX, SX, 'v_add_f32', 32)
            for i in range(4):
                A('%s %s, %s, %s, 0' % (M32, vr(O + 4 * i, 4), vr(VF + 4 * i, 4), vr(PB, 4)))
                emit(sm[2 * i:2 * i + 2])
            emit(sm[8:])
            A('s_mov_b32 s27, 0')
            A('s_waitcnt vmcnt(0)')
            publish('s45', 's40')
            A('s_branch %sC' % P)
            A.label(P + 'X')
            for i in range(12):
                A('v_cmp_eq_u32 %s, s51, v%d' % ('s[38:39]' if i else 'vcc', SP + i))
                if i:
                    A('s_or_b64 vcc, vcc, s[38:39]')
            A('s_cbranch_vccz %sK' % P)
            A('s_cmp_ge_u32 s40, %d' % OPT['amd'])
            A('s_cbranch_scc1 %sM' % P)
            A.label(P + 'R')
            poll()
            bound()
            A('s_waitcnt vmcnt(0)')
            A('v_readfirstlane_b32 s49, v5')
            A('s_cmp_eq_u32 s49, s51')
            A('s_cbranch_scc1 %sR' % P)
            A.label(P + 'M')
            emit(mloads())
            bound()
            A('s_waitcnt vmcnt(0)')
            A.label(P + 'C')
            a, b, c = SP, SP + 4, SP + 8
            mx = 'v_maximum3_f32 v%d, v%%d, v%%d, v%%d' % SM
            A('ds_write_b128 v8, %s offset:%d' % (vr(a, 4), L_M))
            A(mx % (a, a + 1, a + 2))
            A('ds_write_b128 v8, %s offset:%d' % (vr(b, 4), L_M + 4096))
            A(mx % (SM, a + 3, b))
            A(mx % (SM, b + 1, b + 2))
            A(mx % (SM, b + 3, c))
            A(mx % (SM, c + 1, c + 2))
            A('v_cmp_u_f32 vcc, v%d, v%d' % (SM, c + 3))
            A('s_cbranch_vccnz %sX' % P)
            A.label(P + 'K')
            G.ts()
            LQ = Q(A, 'lgkmcnt')
            F = {}

            def L(tag, text):
                return lambda: LQ.op(tag, text)
            oth = [(1, 0), (1, 4), (2, 0), (2, 4), (3, 0), (3, 4)]
            rd = [L(j + u, 'ds_read_b128 %s, v%d offset:%d' % (vr(MF + 4 * (j + u), 4), AX + j, L_M + 1024 * u)) for j, u in oth]
            ks = [(0, f, t) for f in (8, 0, 4, 1, 5, 2, 6) for t in range(2)] + [(0, f, t) for t in range(2) for f in (3, 7)]
            vs = [(1, f, t) for f in (8, 0, 4, 1, 5, 2, 6) for t in range(2)] + [(1, f, t) for t in range(2) for f in (3, 7)]
            seq = ks[:6] + vs[:2] + ks[6:] + vs[2:4] + ['T0'] + vs[4:5] + ['T1'] + vs[5:8] + ['S0'] + vs[8:16] + ['S1', 'S2'] + vs[16:17] + ['S3'] + vs[17:]
            F[0] = ['s_waitcnt lgkmcnt(0)', 's_barrier'] + rd[:1]
            F[1], F[2] = rd[1:4], rd[4:] + ['s_add_u32 s40, s40, 1']
            ld = loads() + ['s_add_u32 s43, s43, %d' % SEG_ME] + mloads()
            for i in range(0, len(ld), 2):
                F[3 + i // 2] = ld[i:i + 2]
            for i in range(4):
                F[1 + i].append('v_mov_b64 %s, %s' % (vr(MF + 16 * (i >> 1) + 2 * (i & 1), 2), vr(SP + 2 * i, 2)))
            ck = [lambda r=KA + 4 * t + i, q=KA + 4 * t + 2 * i: cvt(r, q) for t in range(2) for i in range(2)]
            cm = [lambda i=i: cvt(KM + i, KM + 2 * i) for i in range(4)]
            F[20], F[21], F[22] = ck[:1], ck[1:2], ck[2:]
            F[25], F[26] = cm[:2], cm[2:]
            F[27] = [L('kw', 'ds_write_b128 v8, %s offset:%d' % (vr(KM, 4), L_KM))]
            F[32] = [lambda: LQ.wait('kw'), 's_barrier']
            F[33] = [L('k%d' % j, 'ds_read_b128 %s, v%d offset:%d' % (vr(KM + 4 * j, 4), AX + j, L_KM)) for j in range(1, 4)]
            F[39] = [lambda: cvt(VA, VA)]
            F[40] = [lambda: cvt(VA + 1, VA + 2)]
            for i, x in enumerate(seq):
                if x[0] == 'T':
                    t = int(x[1])
                    A('%s %s, %s, %s, 0' % (M16, vr(KM + 4 * t, 4), vr(KA + 4 * t, 2), vr(SEL, 2)))
                elif x[0] == 'S':
                    j = int(x[1])
                    LQ.wait('k%d' % j)
                    A('%s %s, %s, %s, %s' % (M32, vr(SM, 4), vr(KM + 4 * j, 4), vr(QF + 4 * j, 4), vr(SM, 4) if j else '0'))
                else:
                    kind, f, t = x
                    LQ.wait(f)
                    A('%s %s, %s, %s, v%d' % (SMF, vr((KA, VA)[kind] + 4 * t, 4), vr(SP + f if i < 8 else MF + 4 * f, 4), FR(18 * kind + 2 * f + t), IDX))
                for y in F.pop(i, []):
                    y() if callable(y) else A(y)
            assert not F
            s, m, a = SM, SX, SX + 2
            emit(['v_max3_f32 v%d, v%d, v%d, v%d' % (m, s, s + 1, s + 2), 'v_max_f32 v%d, v%d, v%d' % (m, m, s + 3)])
            x = xred(m, a, 'v_max_f32', 16)
            A(x[0])
            cvt(VA + 2, VA + 4)
            cvt(VA + 3, VA + 6)
            A('ds_write_b128 v8, %s offset:%d' % (vr(VA, 4), L_VM))
            emit(x[1:])
            emit(['v_mul_f32 v%d, s50, v%d' % (m, m), 'v_max_f32 v%d, v%d, v%d' % (m, m, MX)])
            emit(['v_fma_f32 v%d, v%d, s50, -v%d' % (r, r, m) for r in range(s, s + 4)])
            A('v_sub_f32 v%d, v%d, v%d' % (a, MX, m))
            emit(['v_exp_f32 v%d, v%d' % (r, r) for r in range(s, s + 4)])
            A('s_waitcnt lgkmcnt(0)')
            A('s_barrier')
            A('ds_read_b128 %s, v%d offset:%d' % (vr(VP, 4), AX + 1, L_VM))
            A('v_exp_f32 v%d, v%d' % (a, a))
            cvt(PM, s)
            cvt(PM + 1, s + 2)

            def pv(i):
                A('%s %s, %s, %s, 0' % (M16, vr(OM + 4 * i, 4), vr((VA, VP)[i >> 1] + 2 * (i & 1), 2), vr(PM, 2)))
            A('v_pk_add_f32 %s, %s, %s' % (vr(s, 2), vr(s, 2), vr(s + 2, 2)))
            A('v_add_f32 v%d, v%d, v%d' % (m, s, s + 1))
            pv(0)
            x = xred(m, a + 1, 'v_add_f32', 16)
            A(x[0])
            pv(1)
            emit(x[1:])
            emit(['v_fmac_f32 v%d, v%d, v%d' % (m, a, LX), 'v_rcp_f32 v%d, v%d' % (m, m)])
            A('s_waitcnt lgkmcnt(0)')
            pv(2)
            A('v_mul_f32 v%d, v%d, v%d' % (a, a, m))
            pv(3)
            A('s_xor_b32 s47, s42, 1024')
            for j in range(2):
                rs = range(8 * j, 8 * j + 8, 2)
                emit(['v_pk_mul_f32 %s, %s, %s op_sel_hi:[1,0]' % (vr(O + r, 2), vr(O + r, 2), vr(a, 2)) for r in rs])
                emit(['v_pk_fma_f32 %s, %s, %s, %s op_sel_hi:[1,0,1]' % (vr(O + r, 2), vr(OM + r, 2), vr(m, 2), vr(O + r, 2)) for r in rs])
                for i in range(4):
                    cvt(KM + 4 * j + i, O + 8 * j + 2 * i)
                A('buffer_store_dwordx4 %s, v0, %s, %s offen sc1' % (vr(KM + 4 * j, 4), WS, ('s42', 's47')[j]))
            A('s_add_u32 s42, s42, %d' % SEG_O)
            A('s_waitcnt vmcnt(5)')
            A('s_cmp_lt_u32 s40, 64')
            A('s_cbranch_scc1 %sL' % P)
        emit(loads() + mloads())
        A('s_waitcnt vmcnt(0)')
        A('s_cmp_eq_u32 s37, 0')
        A('s_cbranch_scc1 AM0_L')
        step(1)
        A('s_branch AM_E')
        step(0)
        A.label('AM_E')
        A('s_waitcnt vmcnt(0)')
        publish('s45', 's40')

    A('s_cmp_eq_u32 %s, 1' % S_X)
    A('s_cbranch_scc1 R_LN')
    A('s_sub_u32 s32, %s, 2' % S_X)
    A('s_cmp_lt_u32 %s, 6' % S_T)
    A('s_cbranch_scc1 R_TRIP')
    A('s_and_b32 s37, %s, 1' % S_T)
    A('s_lshr_b32 s33, %s, 1' % S_T)
    A('s_mul_i32 s34, s32, 5')
    A('s_add_u32 s36, s34, s33')
    A('s_sub_u32 s36, s36, 3')
    A('s_cmp_lt_u32 %s, 16' % S_T)
    A('s_cbranch_scc1 R_QKV')
    A('s_lshl_b32 s36, s32, 2')
    A('s_add_u32 s36, s36, s33')
    A('s_sub_u32 s36, s36, 8')
    A('s_cmp_lt_u32 %s, 24' % S_T)
    A('s_cbranch_scc1 R_F1')
    A('s_add_u32 s35, s34, %s' % S_T)
    A('s_sub_u32 s35, s35, 24')
    A('s_cmp_lt_u32 %s, 29' % S_T)
    A('s_cbranch_scc1 R_AM')
    A('s_cmp_lt_u32 s32, 4')
    A('s_cbranch_scc1 R_TRIP1')
    A('s_add_u32 s35, s32, 26')
    A('s_mov_b32 s36, s35')
    A('s_cmp_eq_u32 %s, 31' % S_T)
    A('s_cbranch_scc1 R_AM')
    A('s_branch R_QKV')
    A.label('R_F1')
    role_f1()
    G.finish()
    A.label('R_TRIP1')
    A('s_sub_u32 s38, %s, 29' % S_T)
    A('s_and_b32 s33, s32, 1')
    A('s_lshr_b32 s32, s32, 1')
    A('s_add_u32 s32, s32, 6')
    A('s_branch R_TRIP2')
    A.label('R_TRIP')
    A('s_cmp_ge_u32 %s, 3' % S_T)
    A('s_cselect_b32 s33, 1, 0')
    A('s_cselect_b32 s38, 3, 0')
    A('s_sub_u32 s38, %s, s38' % S_T)
    A.label('R_TRIP2')
    A('s_and_b32 s34, s32, 6')
    A('s_add_u32 s34, s34, s33')
    A('s_lshl_b32 s34, s34, 1')
    A('s_and_b32 s32, s32, 1')
    A('s_add_u32 s34, s34, s32')
    if OPT['pre']:
        A('s_cmp_eq_u32 s38, 1')
        A('s_cselect_b32 s12, s%d, s%d' % (G.P_WK, G.P_WQ))
        A('s_cselect_b32 s13, s%d, s%d' % (G.P_WK + 1, G.P_WQ + 1))
        A('s_cmp_eq_u32 s38, 2')
        A('s_cselect_b32 s12, s%d, s12' % G.P_WV)
        A('s_cselect_b32 s13, s%d, s13' % (G.P_WV + 1))
        A('s_mov_b32 s14, %d' % (576 * 8192))
        A('s_mov_b32 s15, 0x20000')
        A('v_lshrrev_b32 v5, 4, v1')
        A('v_and_b32 v6, 15, v1')
        A('v_lshlrev_b32 v6, 4, v6')
        A('v_lshl_add_u32 v7, v5, 10, v6')
        A('v_lshl_add_u32 v6, v5, 13, v6')
        A('s_lshl_b32 s30, s34, 2')
        A('s_add_u32 s30, s30, %s' % S_W)
        A('s_mul_i32 s30, s30, %d' % (9 * 8192))
        A('s_add_u32 s31, s30, 4096')
        for i in range(18):
            A('buffer_load_dwordx4 %s, v7, s[12:15], s30 offen offset:256' % vr(12 + 4 * i, 4))
            A('s_add_u32 s30, s30, 4096')
        for i in range(3):
            A('buffer_load_dwordx4 %s, v6, s[12:15], s31 offen offset:3840' % vr(84 + 4 * i, 4))
            A('s_add_u32 s31, s31, %d' % (3 * 8192))
        A('s_waitcnt vmcnt(0)')
    A('s_bfe_u32 s37, s34, 0x10001')
    A('s_lshr_b32 s36, s34, 2')
    A('s_bitcmp1_b32 s34, 0')
    A('s_cbranch_scc1 R_WO')
    role_part('F2')
    G.finish()
    A.label('R_WO')
    role_part('WO')
    G.finish()
    A.label('R_QKV')
    role_qkv()
    role_fin()
    G.finish()
    A.label('R_LN')
    A('s_mov_b32 s35, %s' % S_T)
    A.label('R_LN1')
    ln1()
    A('s_add_u32 s35, s35, 32')
    A('s_cmp_lt_u32 s35, 64')
    A('s_cbranch_scc1 R_LN1')
    A('s_sub_u32 s35, %s, 24' % S_T)
    A('s_cbranch_scc0 R_LN2')
    G.finish()
    A.label('R_LN2')
    role_ln2()
    G.finish()
    A.label('R_AM')
    role_am()
    G.finish()
```

```python
import math
from asmlib import *
from layout import *
from chain import Q

M16 = 'v_mfma_f32_16x16x16_bf16'
M32 = 'v_mfma_f32_16x16x32_bf16'


def roles(G):
    A, WS, OPT = G.A, G.WS, G.OPT
    S_W, S_X, S_T = G.S_W, G.S_X, G.S_T

    def cvt(d, s, s2=None):
        A('v_cvt_pk_bf16_f32 v%d, v%d, v%d' % (d, s, s + 1 if s2 is None else s2))

    def publish(soff, sval, q=None, d=1):
        G.tsx(3, sval, d)
        A('v_mov_b32 v7, %s' % sval)
        A('s_mov_b64 exec, 1')
        t = 'buffer_store_dword v7, off, %s, %s sc1' % (WS, soff)
        if q is None:
            A(t)
        else:
            q.op('pub', t)
        A('s_mov_b64 exec, -1')

    def wreg(f, nf, sub=None):
        k, b = ('a', 4 * f) if f < 64 else ('v', 256 - 4 * (nf - f))
        return vr(b, 4, k) if sub is None else vr(b + 2 * sub, 2, k)

    def load_weights(units, nf, stride, krow, NS=20):
        VQ = Q(A, 'vmcnt')
        A('s_mul_i32 s30, %s, %d' % (S_W, 20 * 2048))

        def dma(n):
            sd, vo, col, k, _ = units[n]
            for i in range(2):
                A('s_add_u32 m0, s30, %d' % ((n % NS) * 2048 + i * 1024))
                A('s_mov_b32 s31, %d' % ((32 * k + 16 * i) * stride + col))
                VQ.op(n, 'buffer_load_dwordx4 %s, %s, s31 offen lds' % (vo, sd))
        for n in range(min(NS, len(units))):
            dma(n)
        GR = 3 if NS > 5 else 1
        usep = 256 if krow == 'N' else 1024
        for n0 in range(0, len(units), GR):
            ns = list(range(n0, min(n0 + GR, len(units))))
            VQ.wait(ns[-1])
            for n in ns:
                for f, va, off in units[n][4]:
                    for u in range(2):
                        A('ds_read_b64_tr_b16 %s, %s offset:%d' % (wreg(f, nf, u), va, (n % NS) * 2048 + u * usep + off))
            A('s_waitcnt lgkmcnt(0)')
            for n in ns:
                if n + NS < len(units):
                    dma(n + NS)

    def w_lane(stride, krow, ccol):
        A('v_lshrrev_b32 v7, 2, v1')
        A('v_mul_u32_u24 v8, %d, v7' % stride)
        A('v_and_b32 v6, 3, v1')
        A('v_lshl_add_u32 v8, v6, 4, v8')
        A('v_lshrrev_b32 v5, 4, v1')
        A('v_and_b32 v7, 3, v7')
        A('v_lshl_add_u32 v7, v5, %d, v7' % (3 if krow == 'N' else 2))
        A('v_lshlrev_b32 v10, 6, v7')
        A('v_lshl_add_u32 v10, v6, %d, v10' % (4 if ccol == 'N' else 3))
        A('s_mul_i32 s30, %s, %d' % (S_W, 20 * 2048))
        A('v_add_u32 v10, s30, v10')

    def gate(k):
        if k:
            G.wait_ready('v6', 'v7')
            A('v_mov_b32 v6, %d' % (128 * (F_XN + 255, F_QKV)[k - 1]))
            G.spin('v6', 'v7', str(k), 26, nap=(8,))

    S_U, S_DST, S_SRC, S_LDS, S_NEED, S_FLG, S_PUB = ['s%d' % i for i in range(40, 47)]

    def gemm(name, KS, NT, TS, ND, WPART, BUF, STEP, dsrc, ddst, checks, pubk, NB, PF, swaps, epi, mid=None, late=None, skew=0):
        NR = KS * TS
        NF = NR + skew
        nf = KS * NT
        ACC = 8
        RING = ACC + 4 * NT * TS
        always = not checks
        A('v_lshlrev_b32 v0, 4, v1')
        A('v_mov_b32 v3, v0')
        A('v_mov_b32 v5, 0')
        A('s_mul_i32 %s, %s, %d' % (S_LDS, S_W, WPART))
        A('s_mov_b32 %s, 0' % S_PUB)
        un = OPT['un'] and late is not None
        ec = 0 if always else OPT['ec']
        if un and OPT['nl']:
            late = 99
        if un:
            A('v_and_b32 v76, 3, v1')
            A('v_cmp_eq_u32 s[54:55], %s, v76' % S_W)
            A('v_lshlrev_b32 v76, 2, v76')
            A('v_add_u32 v76, 0x20000, v76')
        A('s_barrier')
        if un:
            A('ds_write_b32 v76, v5')

        def dma(i, VQ):
            if i % 4 == 0:
                A('s_add_u32 m0, %s, %d' % (S_LDS, i * 1024))
                if i:
                    A('s_add_u32 s47, %s, %d' % (S_SRC, i * 1024))
            VQ.op('dma', 'buffer_load_dwordx4 v0, %s, %s offen offset:%d sc1 lds' % (WS, 's47' if i >= 4 else S_SRC, (i % 4) * 1024))
            if i == ND - 1:
                A('s_add_u32 %s, %s, %d' % (S_SRC, S_SRC, dsrc))
                A('s_xor_b32 %s, %s, %d' % (S_LDS, S_LDS, BUF))

        def poll(VQ):
            VQ.op('poll', 'buffer_load_dword v5, v4, %s, 0 offen sc1' % WS)

        def body(j0, VQ, LQ, issued, nst):
            pieces = {}
            if issued is not None:
                gap = max(1, min(3, (NF - 1 - j0) // ND))
                for i in range(ND):
                    pieces.setdefault(min(j0 + i * gap, NF - 1), []).append(i)
                pollk = max(max(pieces) + 1, NF - (700 // (16 * NT)) * (2 if skew else 1))
            for j in range(j0, NF):
                jf = j if j < NR else j - skew
                tiles = range(NT) if jf < NR - skew else range(NT // 2) if j < NR else range(NT // 2, NT)
                T, k = divmod(jf, KS)
                if issued is None and j in (checks or [0]) and (j > j0 or j == 0):
                    if always:
                        A('s_cmp_lt_u32 %s, 64' % S_NEED)
                        A('s_cbranch_scc1 %s_V%d' % (name, j))
                    else:
                        A('s_cbranch_vccz %s_V%d' % (name, j))
                    variants.append((j, list(VQ.q), list(LQ.q)))
                    if not always:
                        poll(VQ)
                LQ.wait('f%d' % j)
                b = vr(RING + 4 * (jf % NB), 4)
                fill = []
                if un and issued is not None and issued < late:
                    if j == j0:
                        fill.append(lambda: (A('v_mov_b32 v77, %s' % S_NEED), A('s_mov_b64 exec, s[54:55]'), LQ.op('u', 'ds_write_b32 v76, v77'), A('s_mov_b64 exec, -1')))
                    if j == NF - 1:
                        fill.append(lambda: LQ.op('u', 'ds_read_b32 v77, v76'))
                if j + PF < NR:
                    fill.append(lambda j=j: LQ.op('f%d' % (j + PF), 'ds_read_b128 %s, v3 offset:%d' % (vr(RING + 4 * ((j + PF) % NB), 4), (j + PF) * 1024)))
                for i in pieces.get(j, ()):
                    fill.append(lambda i=i: dma(i, VQ))
                if j == pubk:
                    def pub():
                        L = A.newlabel('NP')
                        A('s_cmp_eq_u32 %s, 0' % S_PUB)
                        A('s_cbranch_scc1 %s' % L)
                        VQ.wait('st')
                        publish(S_FLG, S_U)
                        A('s_mov_b32 %s, 0' % S_PUB)
                        A.label(L)
                        VQ.q.append('pub?')
                    fill.append(pub)
                if issued is not None and not always and j == pollk:
                    fill.append(lambda: poll(VQ))
                if issued is None and ec and j == NF - ec:
                    fill.append(lambda: poll(VQ))
                if mid:
                    fill += mid(j, VQ)
                if issued is None and (j + 1) in checks:
                    fill.append(lambda: A('v_cmp_ge_u32 vcc, %s, v5' % S_NEED))
                for t in tiles:
                    d = vr(ACC + 4 * (T * NT + t), 4)
                    w = wreg(k * NT + t, nf)
                    x, y = (b, w) if t in swaps else (w, b)
                    A('%s %s, %s, %s, %s' % (M32, d, x, y, '0' if k == 0 else d))
                    n = 1 if t < tiles[-1] else len(fill)
                    for f in fill[:n]:
                        f()
                    fill = fill[n:]
                    if j >= NR:
                        epi(VQ, (j - NR) * len(tiles) + t - tiles[0])
            A('v_xor_b32 v3, %d, v3' % BUF)
            epi(VQ)
            G.tsx(2, S_U)
            A('s_add_u32 %s, %s, %d' % (S_DST, S_DST, ddst))
            A('s_add_u32 %s, %s, %d' % (S_U, S_U, STEP))

        def strict(VQ, tag):
            VQ.q = [x for x in VQ.q if x != 'pub?']
            VQ.wait(tag)

        variants = []
        A.label(name + '_S')
        if not always:
            A('s_add_u32 s48, %s, 1' % S_U)
            G.spin('v4', 'v5', 's48', 20)
            G.tsx(0, S_U)
        A.label(name + '_D')
        VQ = Q(A, 'vmcnt')
        for i in range(ND):
            dma(i, VQ)
        A('s_waitcnt vmcnt(0)')
        A.label(name + '_L')
        A('s_barrier')
        G.tsx(1, S_U)
        if OPT['ts']:
            L = A.newlabel('TS')
            if STEP == 1:
                A('s_cmp_lt_u32 %s, %d' % (S_U, OPT['ts0']))
                A('s_cbranch_scc1 %s' % L)
            G.ts()
            A.label(L)
        LQ = Q(A, 'lgkmcnt')
        for j in range(PF):
            LQ.op('f%d' % j, 'ds_read_b128 %s, v3 offset:%d' % (vr(RING + 4 * (j % NB), 4), j * 1024))
        A('s_add_u32 %s, %s, %d' % (S_NEED, S_U, STEP))
        if not always:
            A('s_cmp_lt_u32 %s, 64' % S_NEED)
            A('s_cselect_b32 %s, %s, -1' % (S_NEED, S_NEED))
            A('v_cmp_ge_u32 vcc, %s, v5' % S_NEED)
        VQ = Q(A, 'vmcnt')
        VQ.q = ['st']
        body(0, VQ, LQ, None, 0)
        if ec:
            A('v_cmp_ge_u32 vcc, %s, v5' % S_NEED)
            A('s_cbranch_vccz %s_E1' % name)
        if not always:
            poll(VQ)
        strict(VQ, 'st')
        publish(S_FLG, S_U)
        if ec:
            A('s_waitcnt vmcnt(1)')
            A('v_cmp_ge_u32 vcc, %s, v5' % S_NEED)
            G.tsx(0, S_U)
            A('s_cbranch_vccz %s_D' % name)
        A('s_cmp_ge_u32 %s, 64' % S_U)
        A('s_cbranch_scc1 %s_E' % name)
        A('s_branch %s_S' % name)
        if ec:
            A.label(name + '_E1')
            G.tsx(0, S_U)
            for i in range(ND):
                dma(i, VQ)
            A('s_waitcnt vmcnt(%d)' % ND)
            publish(S_FLG, S_U)
            A('s_waitcnt vmcnt(1)')
            A('s_branch %s_L' % name)
        if un:
            A.label(name + '_P')
            A('s_waitcnt vmcnt(0)')
            publish(S_FLG, S_U)
            A('s_branch %s_L' % name)
        for j, vq, lq in variants:
            A.label('%s_V%d' % (name, j))
            G.tsx(4, S_NEED)
            VQ = Q(A, 'vmcnt')
            VQ.q = vq
            LQ = Q(A, 'lgkmcnt')
            LQ.q = lq
            body(j, VQ, LQ, j, 0)
            if late is not None and j >= late:
                A('s_waitcnt vmcnt(0)')
                publish(S_FLG, S_U)
            else:
                if un:
                    LQ.wait('u')
                    A('v_cmp_ne_u32 vcc, %s, v77' % S_U)
                    A('s_cbranch_vccnz %s_P' % name)
                strict(VQ, 'dma')
                A('s_mov_b32 %s, 1' % S_PUB)
            A('s_branch %s_L' % name)
        A.label(name + '_E')
        G.ts()

    def red(r, t):
        A('v_add_f32_dpp v%d, v%d, v%d row_ror:8 row_mask:0xf bank_mask:0xf' % (r, r, r))
        A('v_mov_b32 v%d, v%d' % (t, r))
        A('v_permlane16_swap_b32 v%d, v%d' % (r, t))
        A('v_add_f32 v%d, v%d, v%d' % (r, r, t))
        A('v_mov_b32 v%d, v%d' % (t, r))
        A('v_permlane32_swap_b32 v%d, v%d' % (r, t))
        A('v_add_f32 v%d, v%d, v%d' % (r, r, t))

    def oct_lanes(vrow, vfrag, vhalf=None):
        A('v_and_b32 v7, 7, v1')
        A('v_bfe_u32 v6, v1, 3, 1')
        A('v_lshrrev_b32 v5, 4, v1')
        A('v_mul_u32_u24 %s, 1152, v7' % vrow)
        A('v_lshl_add_u32 %s, v6, 6, %s' % (vrow, vrow))
        A('v_lshl_add_u32 %s, v5, 4, %s' % (vrow, vrow))
        A('v_lshl_add_u32 v7, v5, 4, v7')
        A('v_lshlrev_b32 v6, 10, v6')
        A('v_lshl_add_u32 %s, v7, 4, v6' % vfrag)
        if vhalf:
            A('v_lshl_add_u32 %s, v7, 3, v6' % vhalf)

    def ln1():
        G.srd(20, G.P_X, 2048 * 1152)
        oct_lanes('v3', 'v4')
        A('s_lshl_b32 s36, s35, 2')
        A('s_add_u32 s36, s36, %s' % S_W)
        A('s_mul_i32 s32, s36, %d' % (8 * 1152))
        A('s_lshr_b32 s33, s36, 1')
        A('s_mul_i32 s33, s33, 18432')
        A('s_and_b32 s34, %s, 1' % S_W)
        A('s_lshl_b32 s34, s34, 7')
        A('s_add_u32 s33, s33, s34')
        A('s_add_u32 s33, s33, 0x%x' % W_XN)
        X, F = 16, 52
        for i in range(9):
            A('buffer_load_dwordx4 %s, v3, s[20:23], s32 offen offset:%d' % (vr(X + 4 * i, 4), i * 128))
        for i in range(9):
            A('s_waitcnt vmcnt(%d)' % (8 - i))
            for j in range(4):
                r = X + 4 * i + j
                A('v_lshlrev_b32 v%d, 16, v%d' % (F + 2 * (4 * i + j), r))
                A('v_and_b32 v%d, 0xffff0000, v%d' % (F + 2 * (4 * i + j) + 1, r))
            for j in range(4):
                p = F + 2 * (4 * i + j)
                acc = 8 + 2 * (j & 1)
                if i == 0 and j < 2:
                    A('v_pk_add_f32 %s, %s, %s' % (vr(acc, 2), vr(p, 2), vr(p + 4, 2)))
                elif i > 0:
                    A('v_pk_add_f32 %s, %s, %s' % (vr(acc, 2), vr(acc, 2), vr(p, 2)))
        if OPT['lt']:
            G.ts()
        A('v_pk_add_f32 v[8:9], v[8:9], v[10:11]')
        A('v_add_f32 v8, v8, v9')
        red(8, 9)
        A('v_mul_f32 v12, %s, v8' % G.fbits(-1.0 / 576))
        A('v_mov_b32 v13, v12')
        for i in range(36):
            p = F + 2 * i
            A('v_pk_add_f32 %s, %s, v[12:13]' % (vr(p, 2), vr(p, 2)))
        for i in range(36):
            p = F + 2 * i
            acc = 8 + 2 * (i & 1)
            if i < 2:
                A('v_pk_mul_f32 %s, %s, %s' % (vr(acc, 2), vr(p, 2), vr(p, 2)))
            else:
                A('v_pk_fma_f32 %s, %s, %s, %s' % (vr(acc, 2), vr(p, 2), vr(p, 2), vr(acc, 2)))
        A('v_pk_add_f32 v[8:9], v[8:9], v[10:11]')
        A('v_add_f32 v8, v8, v9')
        red(8, 9)
        A('v_mov_b32 v9, %s' % G.fbits(1e-5))
        A('v_fmac_f32 v9, %s, v8' % G.fbits(1.0 / 576))
        A('v_rsq_f32 v12, v9')
        A('v_mov_b32 v13, v12')
        for i in range(9):
            for j in range(4):
                p = F + 2 * (4 * i + j)
                A('v_pk_mul_f32 %s, %s, v[12:13]' % (vr(p, 2), vr(p, 2)))
            for j in range(4):
                cvt(X + 4 * i + j, F + 2 * (4 * i + j))
            if i and i % 2 == 0:
                A('s_add_u32 s33, s33, 4096')
            A('buffer_store_dwordx4 %s, v4, %s, s33 offen offset:%d sc1' % (vr(X + 4 * i, 4), WS, (i & 1) * 2048))
        if OPT['lt']:
            G.ts()
            A('s_waitcnt vmcnt(0)')
            G.ts()
        G.wait_ready('v6', 'v7')
        A('s_add_u32 s36, s36, %d' % F_XN)
        A('s_lshl_b32 s36, s36, 7')
        publish('s36', '1')
        G.ts()

    ID, RA, RB = 10, 12, 40

    def ident():
        A('v_and_b32 v7, 15, v1')
        A('v_lshrrev_b32 v6, 4, v1')
        A('v_lshlrev_b32 v6, 2, v6')
        A('v_sub_u32 v7, v7, v6')
        A('v_mov_b32 v5, 0x3f80')
        A('v_mov_b32 v6, 0x3f800000')
        for i in range(2):
            A('v_mov_b32 v%d, 0' % (ID + i))
            A('v_cmp_eq_u32 vcc, %d, v7' % (2 * i))
            A('v_cndmask_b32 v%d, v%d, v5, vcc' % (ID + i, ID + i))
            A('v_cmp_eq_u32 vcc, %d, v7' % (2 * i + 1))
            A('v_cndmask_b32 v%d, v%d, v6, vcc' % (ID + i, ID + i))

    def part_loads(VQ, np_, sbase):
        for n in range(np_):
            r = RB + 12 * (n + 1)
            if n:
                A('s_add_u32 %s, %s, 18432' % (sbase, sbase))
            for p in range(2):
                VQ.op((n + 1, p), 'buffer_load_dwordx4 %s, v8, %s, %s offen offset:%d sc1' % (vr(r + 4 * p, 4), WS, sbase, p * 2048))
            for i in range(2):
                VQ.op((n + 1, 2), 'buffer_load_dwordx2 %s, v9, %s, %s offen offset:%d sc1' % (vr(r + 8 + 2 * i, 2), WS, sbase, i * 512))

    def part_sum(VQ, np_):
        for n in range(np_ + 1):
            for p in range(3):
                VQ.wait((n, p))
                for i in range(2):
                    d = vr(RA + 8 * p + 4 * i, 4)
                    A('%s %s, %s, %s, %s' % (M16, d, vr(ID, 2), vr(RB + 12 * n + 4 * p + 2 * i, 2), '0' if n == 0 else d))

    def role_ln2():
        A('s_cmp_eq_u32 %s, 3' % S_W)
        A('s_cbranch_scc1 EXIT')
        G.srd(20, G.P_X, 2048 * 1152)
        ident()
        oct_lanes('v3', 'v8', 'v9')
        A('s_lshr_b32 s40, s35, 2')
        A('s_and_b32 s36, s35, 3')
        A('s_lshr_b32 s37, s36, 1')
        A('s_and_b32 s38, s36, 1')
        A('s_mul_i32 s32, s36, %d' % (8 * 1152))
        A('s_mul_i32 s33, %s, 384' % S_W)
        A('s_add_u32 s32, s32, s33')
        A('v_add_u32 v3, s32, v3')
        A('s_mul_i32 s33, %s, 6144' % S_W)
        A('s_lshl_b32 s34, s38, 7')
        A('s_add_u32 s34, s34, s33')
        A('v_add_u32 v8, s34, v8')
        A('s_lshl_b32 s34, s38, 6')
        A('s_add_u32 s34, s34, s33')
        A('s_add_u32 s34, s34, 4096')
        A('v_add_u32 v9, s34, v9')
        A('s_lshl_b32 s34, s37, 2')
        A('s_add_u32 s34, s34, %s' % S_W)
        A('s_lshl_b32 s34, s34, 4')
        A('s_add_u32 s34, s34, %d' % F_WO)
        A('v_min_u32 v4, 15, v1')
        A('v_add_u32 v4, s34, v4')
        A('v_lshlrev_b32 v4, 7, v4')
        A('s_lshl_b32 s45, s40, 1')
        A('s_add_u32 s45, s45, s38')
        A('s_mul_i32 s45, s45, 3')
        A('s_add_u32 s45, s45, %s' % S_W)
        A('s_lshl_b32 s34, s37, 5')
        A('s_add_u32 s45, s45, s34')
        A('s_add_u32 s45, s45, %d' % F_LN2)
        A('s_lshl_b32 s45, s45, 7')
        A('v_and_b32 v0, 7, v1')
        A('v_lshlrev_b32 v0, 3, v0')
        A('s_lshl_b32 s34, %s, 6' % S_W)
        A('s_mul_i32 s41, s37, %d' % (NPW * 18432))
        A('s_add_u32 s41, s41, 0x%x' % W_PW)
        A('s_mul_i32 s42, s37, 18432')
        G.wait_ready('v6', 'v7')
        A('v_add_u32 v6, s34, v0')
        A.label('LN2_L')
        VQ = Q(A, 'vmcnt')
        A('s_mul_i32 s43, s40, %d' % SEG_XN)
        for p in range(3):
            A('buffer_load_dwordx4 %s, v3, s[20:23], s43 offen offset:%d' % (vr(RB + 4 * p, 4), p * 128))
        A('s_mul_i32 s44, s40, %d' % SEG_PW)
        A('s_add_u32 s44, s44, s41')
        A('s_add_u32 s48, s40, 1')
        G.spin('v4', 'v5', 's48', 21, nap=(OPT['zl'], 54))
        G.tsx(0, 's40')
        G.ts()
        part_loads(VQ, NPW, 's44')
        part_sum(VQ, NPW)
        G.tsx(1, 's40')
        A('s_add_u32 s43, s43, s42')
        A('s_add_u32 s44, s43, 0x%x' % W_HB)
        A('s_add_u32 s43, s43, 0x%x' % W_HN)
        A('s_add_u32 s46, s44, 4096')
        A('s_add_u32 s47, s43, 4096')
        t = RB + 12
        for i in range(3):
            A('v_pk_add_f32 %s, %s, %s' % (vr(t + 2 * i, 2), vr(RA + 2 * i, 2), vr(RA + 6 + 2 * i, 2)))
        for i in range(6):
            A('v_pk_add_f32 %s, %s, %s' % (vr(t + 2 * (i % 3), 2), vr(t + 2 * (i % 3), 2), vr(RA + 12 + 2 * i, 2)))
        A('v_pk_add_f32 %s, %s, %s' % (vr(t, 2), vr(t, 2), vr(t + 2, 2)))
        A('v_pk_add_f32 %s, %s, %s' % (vr(t, 2), vr(t, 2), vr(t + 4, 2)))
        A('v_add_f32 v%d, v%d, v%d' % (t, t, t + 1))
        for i in range(12):
            cvt(RB + i, RA + 2 * i)
        red(t, t + 1)
        A('v_mul_f32 v%d, %s, v%d' % (t + 8, G.fbits(1.0 / 192), t))
        A('v_mul_f32 v%d, %s, v%d' % (t + 6, G.fbits(-1.0 / 192), t))
        A('v_mov_b32 v%d, v%d' % (t + 7, t + 6))
        for i in range(12):
            A('v_pk_add_f32 %s, %s, %s' % (vr(RA + 2 * i, 2), vr(RA + 2 * i, 2), vr(t + 6, 2)))
        for i in range(12):
            a = vr(t + 2 * (i % 3), 2)
            p = vr(RA + 2 * i, 2)
            if i < 3:
                A('v_pk_mul_f32 %s, %s, %s' % (a, p, p))
            else:
                A('v_pk_fma_f32 %s, %s, %s, %s' % (a, p, p, a))
        A('v_pk_add_f32 %s, %s, %s' % (vr(t, 2), vr(t, 2), vr(t + 2, 2)))
        A('v_pk_add_f32 %s, %s, %s' % (vr(t, 2), vr(t, 2), vr(t + 4, 2)))
        A('v_add_f32 v%d, v%d, v%d' % (t + 9, t, t + 1))
        red(t + 9, t + 1)
        A('ds_write_b64 v6, %s' % vr(t + 8, 2))
        for p in range(3):
            A('buffer_store_dwordx4 %s, v8, %s, %s offen offset:%d sc1' % (vr(RB + 4 * p, 4), WS, 's44' if p < 2 else 's46', (p & 1) * 2048))
        A('s_waitcnt lgkmcnt(0)')
        A('s_barrier')
        for j in range(3):
            A('ds_read_b64 %s, v0 offset:%d' % (vr(t + 2 * j, 2), j * 64))
        A('v_xor_b32 v0, 256, v0')
        A('v_xor_b32 v6, 256, v6')
        A('s_waitcnt lgkmcnt(0)')
        m, v = t + 10, t + 11
        A('v_add_f32 v%d, v%d, v%d' % (m, t, t + 2))
        A('v_add_f32 v%d, v%d, v%d' % (v, t + 1, t + 3))
        A('v_add_f32 v%d, v%d, v%d' % (m, m, t + 4))
        A('v_add_f32 v%d, v%d, v%d' % (v, v, t + 5))
        A('v_mul_f32 v%d, %s, v%d' % (m, G.fbits(1.0 / 3), m))
        A('v_mul_f32 v%d, %s, v%d' % (v, G.fbits(1.0 / 192), v))
        for j in range(3):
            A('v_sub_f32 v%d, v%d, v%d' % (t + 2 * j, t + 2 * j, m))
        for j in range(3):
            A('v_fmac_f32 v%d, v%d, v%d' % (v, t + 2 * j, t + 2 * j))
        A('v_mov_b32 v%d, %s' % (t, G.fbits(1e-5)))
        A('v_fmac_f32 v%d, %s, v%d' % (t, G.fbits(1.0 / 3), v))
        A('v_rsq_f32 v%d, v%d' % (t, t))
        A('v_sub_f32 v%d, v%d, v%d' % (t + 2, t + 8, m))
        A('v_mov_b32 v%d, v%d' % (t + 1, t))
        A('v_mul_f32 v%d, v%d, v%d' % (t + 2, t + 2, t))
        A('v_mov_b32 v%d, v%d' % (t + 3, t + 2))
        H = RB + 24
        for p in range(3):
            for i in range(4):
                a = vr(RA + 8 * p + 2 * i, 2)
                A('v_pk_fma_f32 %s, %s, %s, %s' % (a, a, vr(t, 2), vr(t + 2, 2)))
            for i in range(4):
                cvt(H + 4 * p + i, RA + 8 * p + 2 * i)
            A('buffer_store_dwordx4 %s, v8, %s, %s offen offset:%d sc1' % (vr(H + 4 * p, 4), WS, 's43' if p < 2 else 's47', (p & 1) * 2048))
        G.tsx(2, 's40')
        A('s_add_u32 s40, s40, 2')
        A('s_waitcnt vmcnt(0)')
        publish('s45', 's40', d=2)
        G.ts()
        A('s_cmp_lt_u32 s40, 64')
        A('s_cbranch_scc1 LN2_L')

    def role_fin():
        G.srd(20, G.P_OUT, 2048 * 1152)
        ident()
        oct_lanes('v3', 'v0', 'v4')
        A('v_add_u32 v36, 4096, v4')
        A('v_min_u32 v4, 15, v1')
        A('v_lshlrev_b32 v4, 7, v4')
        A.label('FIN_L')
        A('s_mul_i32 s40, s35, 43691')
        A('s_lshr_b32 s40, s40, 19')
        A('s_mul_i32 s36, s40, 12')
        A('s_sub_u32 s36, s35, s36')
        A('s_and_b32 s37, s36, 3')
        A('s_lshr_b32 s36, s36, 2')
        A('s_lshr_b32 s38, s37, 1')
        A('s_and_b32 s39, s37, 1')
        A('s_mul_i32 s33, s36, 6144')
        A('s_lshl_b32 s34, s39, 7')
        A('s_add_u32 s34, s34, s33')
        A('v_add_u32 v8, s34, v0')
        A('s_lshl_b32 s34, s39, 6')
        A('s_add_u32 s34, s34, s33')
        A('v_add_u32 v9, s34, v36')
        A('s_lshl_b32 s34, s38, 2')
        A('s_add_u32 s34, s34, s36')
        A('s_lshl_b32 s34, s34, 11')
        A('s_add_u32 s34, s34, %d' % (F_F2 * 128))
        A('s_lshl_b32 s41, s40, 1')
        A('s_add_u32 s41, s41, s38')
        A('s_mul_i32 s43, s41, 18432')
        A('s_add_u32 s43, s43, 0x%x' % W_HB)
        A('s_add_u32 s46, s43, 4096')
        A('s_mul_i32 s44, s41, %d' % (NPF * 18432))
        A('s_add_u32 s44, s44, 0x%x' % W_PF)
        A('s_add_u32 s48, s40, 1')
        G.spin('v4', 'v5', 's48', 22, WS, 's34', nap=(OPT['zf'], 62))
        G.tsx(0, 's40')
        G.ts()
        VQ = Q(A, 'vmcnt')
        for p in range(3):
            VQ.op((0, p), 'buffer_load_dwordx4 %s, v8, %s, %s offen offset:%d sc1' % (vr(RB + 4 * p, 4), WS, 's43' if p < 2 else 's46', (p & 1) * 2048))
        part_loads(VQ, NPF, 's44')
        A('s_lshl_b32 s41, s40, 2')
        A('s_add_u32 s41, s41, s37')
        A('s_mul_i32 s41, s41, %d' % (8 * 1152))
        A('s_mul_i32 s33, s36, 384')
        A('s_add_u32 s41, s41, s33')
        part_sum(VQ, NPF)
        for p in range(3):
            for i in range(4):
                cvt(RB + 4 * p + i, RA + 8 * p + 2 * i)
            A('buffer_store_dwordx4 %s, v3, s[20:23], s41 offen offset:%d' % (vr(RB + 4 * p, 4), p * 128))
        G.tsx(5, 's40')
        A('s_add_u32 s35, s35, 256')
        A('s_cmp_lt_u32 s35, 768')
        A('s_cbranch_scc1 FIN_L')

    def role_qkv():
        G.srd(12, G.P_WQ, 576 * 8192)
        G.srd(16, G.P_WK, 576 * 8192)
        G.srd(20, G.P_WV, 576 * 8192)
        NS, GR = 18, 3
        A('v_lshrrev_b32 v7, 3, v1')
        A('v_and_b32 v6, 3, v7')
        A('v_lshlrev_b32 v6, 1, v6')
        A('v_and_b32 v5, 7, v1')
        A('v_xor_b32 v6, v6, v5')
        A('v_lshlrev_b32 v8, 13, v7')
        A('v_lshl_add_u32 v8, v6, 4, v8')
        A('s_and_b32 s32, %s, 1' % S_W)
        A('s_and_b32 s33, %s, 2' % S_W)
        A('s_lshl_b32 s34, s36, 2')
        A('s_add_u32 s34, s34, s33')
        A('s_lshl_b32 s34, s34, 6')
        A('s_lshl_b32 s31, s32, 17')
        A('s_add_u32 s34, s34, s31')
        A('v_add_u32 v8, s34, v8')
        A('s_mul_i32 s30, %s, %d' % (S_W, NS * 2048))
        VQ = Q(A, 'vmcnt')

        def dma(n):
            for i in range(2):
                A('s_add_u32 m0, s30, %d' % ((n % NS) * 2048 + i * 1024))
                A('s_mov_b32 s31, %d' % ((32 * (n // 3) + 8 * i) * 8192))
                VQ.op(n, 'buffer_load_dwordx4 v8, %s, s31 offen lds' % sr(12 + 4 * (n % 3), 4))
        for n in range(NS):
            dma(n)
        A('v_lshrrev_b32 v5, 5, v1')
        A('v_add_u32 v5, s33, v5')
        A('v_mul_u32_u24 v10, %d, v5' % (NS * 2048))
        A('v_bfe_u32 v5, v1, 4, 1')
        A('v_bfe_u32 v6, v1, 2, 2')
        A('v_lshl_add_u32 v5, v5, 3, v6')
        A('v_lshl_add_u32 v10, v5, 7, v10')
        A('s_lshl_b32 s32, s32, 1')
        A('v_xor_b32 v6, s32, v6')
        A('v_lshl_add_u32 v10, v6, 5, v10')
        A('v_and_b32 v6, 3, v1')
        A('v_lshl_add_u32 v10, v6, 3, v10')
        A('v_xor_b32 v11, 32, v10')
        for n0 in range(0, 54, GR):
            VQ.wait(n0 + GR - 1)
            A('s_barrier')
            for n in range(n0 - GR + NS, n0 + NS):
                if NS <= n < 54:
                    dma(n)
            if OPT['qe'] and n0 == 18:
                A('v_mov_b32 v12, %d' % (D_READY * 4))
                VQ.op('r', 'buffer_load_dword v12, v12, %s, 0 offen sc1' % G.DBG)
            if OPT['qe'] and n0 == 42:
                VQ.wait('r')
                A('v_lshlrev_b32 v4, 7, v1')
                for i in range(4):
                    A('s_mov_b32 s48, %d' % (F_XN * 128 + i * 8192))
                    VQ.op('f', 'buffer_load_dword v%d, v4, %s, s48 offen sc1' % (13 + i, WS))
            for n in range(n0, n0 + GR):
                for t in range(2):
                    for u in range(2):
                        A('ds_read_b64_tr_b16 %s, v%d offset:%d' % (wreg(2 * n + t, 108, u), 10 + t, (n % NS) * 2048 + u * 512))
            A('s_waitcnt lgkmcnt(0)')
        G.ts()
        if OPT['qe']:
            A('s_waitcnt vmcnt(0)')
            A('v_cmp_gt_u32 s[48:49], %d, v12' % G.N_READY)
            A('v_min3_u32 v13, v13, v14, v15')
            A('v_min_u32 v13, v13, v16')
            A('v_cmp_gt_u32 vcc, 1, v13')
            A('s_or_b64 vcc, vcc, s[48:49]')
            A('s_cbranch_vccz QKV_GO')
        G.wait_ready('v6', 'v7')
        A('v_lshlrev_b32 v4, 7, v1')
        for i in range(4):
            A('s_mov_b32 s48, %d' % (F_XN * 128 + i * 8192))
            G.spin('v4', 'v5', '1', 23, WS, 's48')
        A.label('QKV_GO')
        A('s_mov_b32 %s, s37' % S_U)
        A('s_mul_i32 %s, s37, %d' % (S_DST, SEG_QKV))
        A('s_lshl_b32 s33, s36, 21')
        A('s_add_u32 %s, %s, s33' % (S_DST, S_DST))
        A('s_lshl_b32 s50, %s, 11' % S_W)
        A('s_add_u32 %s, %s, s50' % (S_DST, S_DST))
        A('s_add_u32 %s, %s, 0x%x' % (S_DST, S_DST, W_QKV))
        A('s_add_u32 s50, s50, 8192')
        A('s_mul_i32 %s, s37, %d' % (S_SRC, SEG_XN))
        A('s_mul_i32 s33, %s, 9216' % S_W)
        A('s_add_u32 %s, %s, s33' % (S_SRC, S_SRC))
        A('s_add_u32 %s, %s, 0x%x' % (S_SRC, S_SRC, W_XN))
        A('s_lshl_b32 s35, s36, 1')
        A('s_add_u32 s35, s35, s37')
        A('s_lshl_b32 s35, s35, 2')
        A('s_add_u32 s35, s35, %s' % S_W)
        A('s_lshr_b32 %s, s35, 2' % S_FLG)
        A('s_add_u32 %s, %s, %d' % (S_FLG, S_FLG, F_QKV))
        A('s_lshl_b32 %s, %s, 5' % (S_FLG, S_FLG))
        A('s_add_u32 %s, %s, %s' % (S_FLG, S_FLG, S_W))
        A('s_lshl_b32 %s, %s, 2' % (S_FLG, S_FLG))
        a, b = 8, 32
        A('s_mov_b32 s52, %s' % G.fbits(G.LOG2E / math.sqrt(128.0)))
        A('s_mov_b32 s53, s52')

        def scale(r, n):
            for i in range(r, r + n, 2):
                A('v_pk_mul_f32 %s, %s, s[52:53]' % (vr(i, 2), vr(i, 2)))

        def st(VQ, r, so, off):
            VQ.op('st', 'buffer_store_dwordx4 %s, v0, %s, %s offen offset:%d sc1' % (vr(r, 4), WS, so, off))

        def mid(j, VQ):
            if j == 19:
                return [lambda: [cvt(a + i, a + 2 * i) for i in range(2)], lambda: [cvt(a + i, a + 2 * i) for i in range(2, 4)],
                        lambda: st(VQ, a, S_DST, 0), lambda: A('s_add_u32 s49, %s, s50' % S_DST)]
            if j == 20:
                return [lambda: scale(a + 8, 4), lambda: scale(a + 12, 4)]
            if j == 21:
                return [lambda: [cvt(a + 8 + i, a + 8 + 2 * i) for i in range(2)], lambda: [cvt(a + 8 + i, a + 8 + 2 * i) for i in range(2, 4)],
                        lambda: st(VQ, a + 8, 's49', 0)]
            if j == 22:
                return [lambda: [cvt(a + 16 + i, a + 16 + 2 * i) for i in range(2)], lambda: [cvt(a + 20 + i, a + 20 + 2 * i) for i in range(2)]]
            return []

        def epi(VQ):
            for m, so in ((0, S_DST), (8, 's49')):
                if m:
                    scale(b + m, 8)
                for i in range(4):
                    cvt(b + m + i, b + m + 2 * i)
                st(VQ, b + m, so, 1024)
            for t in range(2):
                for i in range(2):
                    cvt(a + 18 + 4 * t + i, b + 16 + 4 * t + 2 * i)
                st(VQ, a + 16 + 4 * t, 's49', 2048 + 1024 * t)
        gemm('QKV', 18, 6, 2, 9, 9216, 65536, 2, 2 * SEG_XN, 2 * SEG_QKV, [], 7, 6, 4, (4, 5), epi, mid)

    def role_f1():
        gate(OPT['g1w'])
        G.srd(12, G.P_WG, 576 * 9216)
        G.srd(16, G.P_WU, 576 * 9216)
        w_lane(9216, 'N', 'N')
        A('s_mul_i32 s33, s36, 384')
        A('s_lshr_b32 s34, %s, 1' % S_W)
        A('s_lshl_b32 s34, s34, 6')
        A('s_add_u32 s34, s34, s33')
        A('v_add_u32 v9, s34, v8')
        A('s_lshl_b32 s34, %s, 6' % S_W)
        A('s_add_u32 s34, s34, s33')
        A('v_add_u32 v8, s34, v8')
        A('s_and_b32 s34, %s, 1' % S_W)
        A('s_lshl_b32 s34, s34, 5')
        A('v_lshlrev_b32 v6, 3, v6')
        A('v_sub_u32 v11, v10, v6')
        A('v_add_u32 v11, s34, v11')
        units = []
        for k in range(18):
            for m in range(2):
                units.append((sr(12 + 4 * m, 4), 'v8', 0, k, [(k * 6 + 3 * m + t, 'v10', 8 * t) for t in range(2)]))
                units.append((sr(12 + 4 * m, 4), 'v9', 256, k, [(k * 6 + 3 * m + 2, 'v11', 0)]))
        load_weights(units, 108, 9216, 'N', OPT['d1'])
        G.ts()
        G.wait_ready('v6', 'v7')
        A('s_mov_b32 %s, 0' % S_U)
        A('s_mul_i32 %s, s37, 144' % S_DST)
        A('s_mul_i32 s34, s36, 6')
        A('s_add_u32 s34, s34, %s' % S_W)
        A('s_add_u32 %s, %s, s34' % (S_DST, S_DST))
        A('s_lshl_b32 s34, %s, 9' % S_W)
        A('s_sub_u32 s34, 4096, s34')
        A('v_and_b32 v6, 15, v1')
        A('v_lshlrev_b32 v6, 4, v6')
        A('v_lshrrev_b32 v5, 5, v1')
        A('v_lshl_add_u32 v6, v5, 8, v6')
        A('v_bfe_u32 v5, v1, 4, 1')
        A('v_lshl_add_u32 v6, v5, 3, v6')
        A('v_add_u32 v6, s34, v6')
        A('s_lshl_b32 s34, s36, 2')
        A('s_add_u32 s34, s34, %s' % S_W)
        A('s_lshl_b32 %s, %s, 10' % (S_DST, S_DST))
        A('s_add_u32 %s, %s, 0x%x' % (S_DST, S_DST, W_ACT))
        A('s_mul_i32 %s, s37, 18432' % S_SRC)
        A('s_mul_i32 s33, %s, 4480' % S_W)
        A('s_add_u32 %s, %s, s33' % (S_SRC, S_SRC))
        A('s_add_u32 %s, %s, 0x%x' % (S_SRC, S_SRC, W_HN))
        A('s_mul_i32 %s, s37, 160' % S_FLG)
        A('s_add_u32 %s, %s, s34' % (S_FLG, S_FLG))
        A('s_add_u32 %s, %s, %d' % (S_FLG, S_FLG, F_F1))
        A('s_lshl_b32 %s, %s, 7' % (S_FLG, S_FLG))
        A('s_lshl_b32 s33, s37, 5')
        A('s_add_u32 s33, s33, %d' % F_LN2)
        A('v_min_u32 v4, 11, v1')
        A('v_add_u32 v4, s33, v4')
        A('v_lshlrev_b32 v4, 7, v4')
        A('s_mov_b32 s50, %s' % G.fbits(-G.LOG2E))

        A('s_mov_b32 s51, s50')
        g, u, t = 8, 20, 64
        sil = [[] for _ in range(24)]
        for i in range(12):
            q = i + 2 + 2 * (i >> 2)
            if not i & 1:
                sil[max(1, q - 2)].append('v_pk_mul_f32 %s, %s, s[50:51]' % (vr(t + i, 2), vr(g + i, 2)))
            sil[q].insert(0, 'v_exp_f32 v%d, v%d' % (t + i, t + i))
            if i & 1:
                sil[q + 1].append('v_pk_add_f32 %s, %s, 1.0 op_sel_hi:[1,0]' % (vr(t + i - 1, 2), vr(t + i - 1, 2)))
        rs = [6, 7, 12, 13, 18, 19, 19, 20, 20, 21, 22, 22]
        for i in range(12):
            sil[rs[i]].insert(0, 'v_rcp_f32 v%d, v%d' % (t + i, t + i))
            if i & 1:
                sil[rs[i] + 1].append('v_pk_mul_f32 %s, %s, %s' % (vr(g + i - 1, 2), vr(g + i - 1, 2), vr(t + i - 1, 2)))

        def epi(VQ, q=None):
            if q is not None:
                for x in sil[q]:
                    A(x)
                return
            for lo, n in ((0, 8), (8, 4)):
                for i in range(lo, lo + n, 2):
                    A('v_pk_mul_f32 %s, %s, %s' % (vr(g + i, 2), vr(g + i, 2), vr(u + i, 2)))
                for i in range(0, n, 2):
                    cvt(t + lo + i // 2, g + lo + i)
                VQ.op('st', 'buffer_store_dwordx%d %s, %s, %s, %s offen sc1' % (n // 2, vr(t + lo, n // 2), 'v6' if lo else 'v0', WS, S_DST))
        gemm('F1', 18, 6, 1, 5, 4480, 32768, 1, SEG_XN, SEG_ACT, [0, 5, 10, 18], OPT['pk'] // 2, 8, 4, (), epi, late=10, skew=8)

    def role_part(name):
        wo = name == 'WO'
        KS, NP = (32, NPW) if wo else (36, NPF)
        gate(OPT['gww' if wo else 'g2w'])
        G.srd(12, G.P_WO if wo else G.P_WD, NP * KS * 32 * 1152)
        krow = 'D' if wo else 'N'
        w_lane(1152, krow, 'N')
        A('s_mul_i32 s33, s36, %d' % (KS * 32 * 1152))
        A('s_mul_i32 s34, s38, 384')
        A('s_add_u32 s33, s33, s34')
        A('s_lshr_b32 s34, %s, 1' % S_W)
        A('s_lshl_b32 s34, s34, 6')
        A('s_add_u32 s34, s34, s33')
        A('v_add_u32 v9, s34, v8')
        A('s_lshl_b32 s34, %s, 6' % S_W)
        A('s_add_u32 s34, s34, s33')
        A('v_add_u32 v8, s34, v8')
        A('s_and_b32 s34, %s, 1' % S_W)
        A('s_lshl_b32 s34, s34, 3')
        A('v_add_u32 v11, s34, v10')
        units = []
        for k in range(KS):
            units.append(('s[12:15]', 'v8', 0, k, [(k * 3 + t, 'v10', 8 * t) for t in range(2)]))
            units.append(('s[12:15]', 'v9', 256, k, [(k * 3 + 2, 'v11', 0)]))
        load_weights(units, KS * 3, 1152, krow, OPT['dw' if wo else 'd2'])
        G.ts()
        G.wait_ready('v6', 'v7')
        A('s_mov_b32 %s, 0' % S_U)
        A('s_mul_i32 s33, s37, %d' % NP)
        A('s_add_u32 s33, s33, s36')
        A('s_mul_i32 %s, s33, 18432' % S_DST)
        A('s_mul_i32 s34, s38, 6144')
        A('s_add_u32 %s, %s, s34' % (S_DST, S_DST))
        A('s_lshl_b32 s34, %s, 10' % S_W)
        A('s_add_u32 %s, %s, s34' % (S_DST, S_DST))
        A('s_add_u32 %s, %s, 0x%x' % (S_DST, S_DST, W_PW if wo else W_PF))
        A('s_lshl_b32 s34, %s, 9' % S_W)
        A('s_sub_u32 s34, 4096, s34')
        A('v_lshlrev_b32 v6, 3, v1')
        A('v_add_u32 v6, s34, v6')
        A('s_lshl_b32 s33, s33, 2')
        A('s_add_u32 s33, s33, %s' % S_W)
        A('s_mul_i32 %s, s33, %d' % (S_SRC, KS * 256))
        A('s_add_u32 %s, %s, 0x%x' % (S_SRC, S_SRC, W_O if wo else W_ACT))
        A('s_lshl_b32 s33, s36, 2')
        A('s_add_u32 s33, s33, %s' % S_W)
        A('s_lshl_b32 s34, s37, 2')
        A('s_add_u32 s34, s34, s38')
        A('s_lshl_b32 s34, s34, 4')
        A('s_add_u32 %s, s34, s33' % S_FLG)
        A('s_add_u32 %s, %s, %d' % (S_FLG, S_FLG, F_WO if wo else F_F2))
        A('s_lshl_b32 %s, %s, 7' % (S_FLG, S_FLG))
        if wo:
            A('s_lshl_b32 s33, s33, 3')
            A('s_add_u32 s33, s33, %d' % F_ATT)
            A('v_min_u32 v4, 7, v1')
        else:
            A('s_mul_i32 s33, s33, 6')
            A('s_and_b32 s33, s33, -4')
            A('s_mul_i32 s34, s37, 160')
            A('s_add_u32 s33, s33, s34')
            A('s_add_u32 s33, s33, %d' % F_F1)
            A('v_min_u32 v4, 7, v1')
        A('v_add_u32 v4, s33, v4')
        A('v_lshlrev_b32 v4, 7, v4')

        def epi(VQ):
            for i in range(4):
                cvt(60 + i, 8 + 2 * i)
            VQ.op('st', 'buffer_store_dwordx4 v[60:63], v0, %s, %s offen sc1' % (WS, S_DST))
            for i in range(2):
                cvt(64 + i, 16 + 2 * i)
            VQ.op('st', 'buffer_store_dwordx2 v[64:65], v6, %s, %s offen sc1' % (WS, S_DST))
        if wo:
            gemm(name, 32, 3, 1, 8, 8192, 32768, 1, SEG_O, SEG_PW, [0, 8, 16, 24], OPT['pk'], 8, 6, (), epi, late=16)
        else:
            gemm(name, 36, 3, 1, 9, 9216, 65536, 1, SEG_ACT, SEG_PF, [0, 9, 18, 27], OPT['pk'], 8, 6, (), epi, late=18)

    def role_am():
        SMF = 'v_smfmac_f32_16x16x64_bf16'
        IDX, SEL, MX, LX, AX, AQ = 6, 10, 12, 13, 13, 17
        QF, KF, VF, MF, SX, PB, O, KA, VA, KM, SM, PM, VP, OM = 24, 40, 72, 88, 124, 132, 136, 152, 160, 168, 184, 188, 192, 196
        L_QK, L_M, L_KM, L_VM = 0, 16384, 24576, 28672

        def FR(n, sub=None):
            k, b = ('a', 8 * n) if n < 32 else ('v', 224 + 8 * (n - 32))
            return vr(b, 8, k) if sub is None else vr(b + 2 * sub, 2, k)
        G.srd(16, G.P_WK, 576 * 8192)
        G.srd(20, G.P_WV, 576 * 8192)
        A('v_lshlrev_b32 v0, 4, v1')
        A('s_lshl_b32 s36, s35, 2')
        A('s_add_u32 s36, s36, %s' % S_W)
        A('s_mul_i32 s30, %s, 36864' % S_W)
        A('v_lshrrev_b32 v7, 2, v1')
        A('v_and_b32 v5, 3, v1')
        A('v_lshlrev_b32 v8, 13, v7')
        A('v_lshl_add_u32 v8, v5, 4, v8')
        A('s_lshl_b32 s33, s36, 6')
        A('v_add_u32 v8, s33, v8')
        VQ = Q(A, 'vmcnt')

        def dma(n):
            for i in range(4):
                A('s_add_u32 m0, s30, %d' % ((n % 9) * 4096 + i * 1024))
                if i:
                    A('s_add_u32 s31, s31, %d' % (16 * 8192))
                elif n % 9 < 8:
                    A('s_xor_b32 s31, %s, %d' % (S_W, n % 9))
                    A('s_lshl_b32 s31, s31, 19')
                else:
                    A('s_mov_b32 s31, %d' % (8 << 19))
                VQ.op(n, 'buffer_load_dwordx4 v8, %s, s31 offen lds' % ('s[16:19]', 's[20:23]')[n // 9])
        A('s_mov_b32 s51, 0x%x' % SENT)
        for i in range(4):
            A('v_mov_b32 v%d, s51' % (16 + i))
        A('s_mul_i32 s33, s36, 4608')
        A('s_add_u32 s33, s33, 0x%x' % W_ME)
        for o in (0, 1024, 2048, 3072, 3584):
            VQ.op('z', 'buffer_store_dwordx4 v[16:19], v0, %s, s33 offen offset:%d sc1' % (WS, o))
        for n in range(OPT['da']):
            dma(n)
        A('v_lshrrev_b32 v3, 5, v1')
        A('v_bfe_u32 v4, v1, 4, 1')
        A('v_lshl_add_u32 v9, v3, 3, v4')
        A('v_and_b32 v7, 3, v7')
        A('v_lshl_add_u32 v9, v7, 1, v9')
        A('v_lshlrev_b32 v9, 7, v9')
        A('v_lshl_add_u32 v9, v5, 3, v9')
        A('v_add_u32 v9, s30, v9')
        VQ.wait('z')
        A('s_barrier')
        A('s_cmp_lg_u32 %s, 0' % S_W)
        A('s_cbranch_scc1 AM_NA')
        A('v_mov_b32 v3, 1')
        A('v_mov_b32 v7, %d' % (D_CBAR * 4))
        A('s_mov_b64 exec, 1')
        A('buffer_atomic_add v3, v7, %s, 0 offen sc1' % G.DBG)
        A('s_mov_b64 exec, -1')
        A.label('AM_NA')
        for n in range(18):
            VQ.wait(n)
            for t in range(2):
                for z in range(2):
                    for u in range(2):
                        A('ds_read_b64_tr_b16 %s, v9 offset:%d' % (FR(2 * n + t, 2 * z + u), (n % 9) * 4096 + z * 2048 + u * 64 + t * 32))
            if n + OPT['da'] < 18:
                A('s_waitcnt lgkmcnt(0)')
                dma(n + OPT['da'])
        A('v_and_b32 v7, 8, v1')
        A('v_mov_b32 v%d, 0x4444' % IDX)
        A('v_mov_b32 v3, 0xeeee')
        A('v_cmp_ne_u32 vcc, 0, v7')
        A('v_cndmask_b32 v%d, v%d, v3, vcc' % (IDX, IDX))
        A('v_and_b32 v7, 7, v1')
        A('v_lshlrev_b32 v4, 2, v4')
        A('v_sub_u32 v7, v7, v4')
        A('v_mov_b32 v5, 0x3f80')
        A('v_mov_b32 v4, 0x3f800000')
        for i in range(2):
            A('v_mov_b32 v%d, 0' % (SEL + i))
            A('v_cmp_eq_u32 vcc, %d, v7' % (2 * i))
            A('v_cndmask_b32 v%d, v%d, v5, vcc' % (SEL + i, SEL + i))
            A('v_cmp_eq_u32 vcc, %d, v7' % (2 * i + 1))
            A('v_cndmask_b32 v%d, v%d, v4, vcc' % (SEL + i, SEL + i))
        A('v_and_b32 v7, 15, v1')
        A('v_lshrrev_b32 v5, 4, v1')
        A('v_lshlrev_b32 v5, 2, v5')
        A('v_sub_u32 v7, v7, v5')
        for r in range(4):
            A('v_cmp_le_i32 s[%d:%d], %d, v7' % (52 + 2 * r, 53 + 2 * r, r))
        A('v_mov_b32 v3, %s' % G.fbits(-1e9 * G.LOG2E))
        A('v_mov_b32 v%d, 0' % (PB + 2))
        A('v_mov_b32 v%d, 0' % (PB + 3))
        A('s_mov_b32 s50, %s' % G.fbits(G.LOG2E / math.sqrt(128.0)))
        A('s_add_u32 s45, s36, %d' % F_ATT)
        A('s_lshl_b32 s45, s45, 7')
        A('s_lshl_b32 s41, s35, 21')
        A('s_lshl_b32 s33, %s, 11' % S_W)
        A('s_add_u32 s41, s41, s33')
        A('s_add_u32 s41, s41, 0x%x' % W_QKV)
        A('s_add_u32 s46, s33, 8192')
        A('s_lshl_b32 s42, s36, 10')
        A('s_and_b32 s37, %s, 1' % S_W)
        A('s_lshl_b32 s33, s37, 17')
        A('s_add_u32 s42, s42, s33')
        A('s_add_u32 s42, s42, 0x%x' % W_O)
        A('s_lshl_b32 s43, %s, 10' % S_W)
        A('v_add_u32 v8, s43, v0')
        A('v_add_u32 v%d, s43, v8' % AQ)
        for j in range(1, 4):
            A('v_xor_b32 v%d, %d, v8' % (AX + j, 1024 * j))
            A('v_xor_b32 v%d, %d, v%d' % (AQ + j, 2048 * j, AQ))
        A('s_mov_b32 s43, 0x%x' % W_ME)
        A('s_and_b32 s44, s35, 8')
        A('s_mul_i32 s44, s44, 3')
        A('s_add_u32 s44, s44, s35')
        A('s_and_b32 s44, s44, 0x27')
        A('s_lshl_b32 s33, %s, 3' % S_W)
        A('s_add_u32 s44, s44, s33')
        A('s_lshl_b32 s44, s44, 7')
        A('s_mov_b32 s40, 0')
        A('s_waitcnt lgkmcnt(0)')
        A('v_and_b32 v9, 0x300, v0')
        A('v_and_b32 v4, 7, v1')
        A('v_lshl_add_u32 v9, v4, 5, v9')
        A('v_and_b32 v4, 8, v1')
        A('v_lshl_add_u32 v9, v4, 1, v9')
        G.ts()
        G.wait_ready('v4', 'v5')
        A('v_mov_b32 v4, %d' % (D_CBAR * 4))
        G.spin('v4', 'v5', '64', 25, G.DBG, op='ushort')
        A('v_and_b32 v4, 0x23, v1')
        A('v_lshlrev_b32 v4, 2, v4')
        A('s_lshl_b32 s33, s35, 8')
        A('s_add_u32 s33, s33, %d' % (F_QKV * 128))
        G.spin('v4', 'v5', '2', 24, WS, 's33')
        A('v_mov_b32 v4, s44')
        A('s_barrier')

        def loads():
            o = ['s_add_u32 s47, s41, s46', 's_lshl_b32 m0, %s, 11' % S_W]
            o += ['buffer_load_dwordx4 v0, %s, s41 offen offset:%d sc1 lds' % (WS, T * 1024) for T in range(2)]
            o += ['s_add_u32 m0, m0, 8192', 's_xor_b32 s48, s47, 4096']
            o += ['buffer_load_dwordx4 v0, %s, s47 offen offset:%d sc1 lds' % (WS, T * 1024) for T in range(2)]
            o += ['buffer_load_dwordx4 %s, v0, %s, s%d offen offset:%d sc1' % (vr(VF + 4 * i, 4), WS, 47 + (i >> 1), 2048 + (i & 1) * 1024) for i in range(4)]
            return o + ['s_add_u32 s41, s41, %d' % SEG_QKV]

        def xred(r, t, op, sw):
            return ['v_mov_b32 v%d, v%d' % (t, r), 'v_permlane%d_swap_b32 v%d, v%d' % (sw, r, t), '%s v%d, v%d, v%d' % (op, r, r, t)]

        def emit(l):
            for x in l:
                A(x)

        def poll():
            A('v_mov_b32 v5, 0')
            A('s_mov_b64 exec, 1')
            A('buffer_atomic_or v5, v4, %s, s43 offen sc0 sc1' % WS)
            A('s_mov_b64 exec, -1')
        SP = 212

        def mloads():
            return ['s_lshl_b32 s47, %s, 10' % S_W, 's_add_u32 s47, s47, s43', 's_add_u32 s48, s47, 4096',
                    'buffer_load_dwordx4 %s, v9, %s, s47 offen sc1' % (vr(SP, 4), WS), 's_add_u32 s47, s43, 8192',
                    'buffer_load_dwordx4 %s, v9, %s, s48 offen sc1' % (vr(SP + 4, 4), WS),
                    'buffer_load_dwordx4 %s, v9, %s, s47 offen sc1' % (vr(SP + 8, 4), WS)]

        def bound():
            A('s_add_u32 s27, s27, 1')
            A('s_cmp_ge_u32 s27, %d' % G.SPIN_MAX)
            A('s_cbranch_scc1 FAIL')

        def step(T):
            P = 'AM%d_' % T
            A.label(P + 'L')
            A('s_barrier')
            LQ = Q(A, 'lgkmcnt')
            for j in range(4):
                LQ.op(j, 'ds_read_b128 %s, v%d offset:%d' % (vr(QF + 4 * j, 4), AQ + j, L_QK + 1024 * T))
                for tk in range(T + 1):
                    LQ.op(j, 'ds_read_b128 %s, v%d offset:%d' % (vr(KF + 8 * j + 4 * tk, 4), AQ + j, L_QK + 8192 + 1024 * tk))
            for r in range(KA, KA + 16, 2):
                A('v_mov_b64 %s, 0' % vr(r, 2))
            for j in range(4):
                LQ.wait(j)
                for tk in range(T + 1):
                    d = vr(SX + 4 * tk, 4)
                    A('%s %s, %s, %s, %s' % (M32, d, vr(KF + 8 * j + 4 * tk, 4), vr(QF + 4 * j, 4), '0' if j == 0 else d))
            D = SX + 4 * T
            if T:
                A('v_max3_f32 v%d, v%d, v%d, v%d' % (MX, SX, SX + 1, SX + 2))
            for r in range(4):
                A('v_cndmask_b32 v%d, v3, v%d, s[%d:%d]' % (D + r, D + r, 52 + 2 * r, 53 + 2 * r))
            if T:
                A('v_max3_f32 v%d, v%d, v%d, v%d' % (MX, MX, SX + 3, D))
            A('v_max3_f32 v%d, v%d, v%d, v%d' % (MX, MX if T else D, D + 1, D + 2))
            A('v_max_f32 v%d, v%d, v%d' % (MX, MX, D + 3))
            emit(xred(MX, LX, 'v_max_f32', 16) + xred(MX, LX, 'v_max_f32', 32))
            for r in range(SX, D + 4):
                A('v_sub_f32 v%d, v%d, v%d' % (r, r, MX))
            for r in range(SX, D + 4):
                A('v_exp_f32 v%d, v%d' % (r, r))
            for i in range(2 * T + 2):
                cvt(PB + i, SX + 2 * i)
            sm = ['v_pk_add_f32 %s, %s, %s' % (vr(SX, 2), vr(SX, 2), vr(SX + 2 * i, 2)) for i in range(1, 2 * T + 2)]
            sm += ['v_add_f32 v%d, v%d, v%d' % (LX, SX, SX + 1)] + xred(LX, SX, 'v_add_f32', 16) + xred(LX, SX, 'v_add_f32', 32)
            A('s_waitcnt vmcnt(5)')
            for i in range(4):
                A('%s %s, %s, %s, 0' % (M32, vr(O + 4 * i, 4), vr(VF + 4 * i, 4), vr(PB, 4)))
                emit(sm[2 * i:2 * i + 2])
            emit(sm[8:])
            A('s_mov_b32 s27, 0')
            A('s_waitcnt vmcnt(0)')
            publish('s45', 's40')
            A('s_branch %sC' % P)
            A.label(P + 'X')
            for i in range(12):
                A('v_cmp_eq_u32 %s, s51, v%d' % ('s[38:39]' if i else 'vcc', SP + i))
                if i:
                    A('s_or_b64 vcc, vcc, s[38:39]')
            A('s_cbranch_vccz %sK' % P)
            A('s_cmp_ge_u32 s40, %d' % OPT['amd'])
            A('s_cbranch_scc1 %sM' % P)
            A.label(P + 'R')
            poll()
            bound()
            A('s_waitcnt vmcnt(0)')
            A('v_readfirstlane_b32 s49, v5')
            A('s_cmp_eq_u32 s49, s51')
            A('s_cbranch_scc1 %sR' % P)
            A.label(P + 'M')
            emit(mloads())
            bound()
            A('s_waitcnt vmcnt(0)')
            A.label(P + 'C')
            a, b, c = SP, SP + 4, SP + 8
            mx = 'v_maximum3_f32 v%d, v%%d, v%%d, v%%d' % SM
            A('ds_write_b128 v8, %s offset:%d' % (vr(a, 4), L_M))
            A(mx % (a, a + 1, a + 2))
            A('ds_write_b128 v8, %s offset:%d' % (vr(b, 4), L_M + 4096))
            A(mx % (SM, a + 3, b))
            A(mx % (SM, b + 1, b + 2))
            A(mx % (SM, b + 3, c))
            A(mx % (SM, c + 1, c + 2))
            A('v_cmp_u_f32 vcc, v%d, v%d' % (SM, c + 3))
            A('s_cbranch_vccnz %sX' % P)
            A.label(P + 'K')
            G.tsx(1, 's40')
            G.ts()
            LQ = Q(A, 'lgkmcnt')
            F = {}

            def L(tag, text):
                return lambda: LQ.op(tag, text)
            oth = [(1, 0), (1, 4), (2, 0), (2, 4), (3, 0), (3, 4)]
            rd = [L(j + u, 'ds_read_b128 %s, v%d offset:%d' % (vr(MF + 4 * (j + u), 4), AX + j, L_M + 1024 * u)) for j, u in oth]
            ks = [(0, f, t) for f in (8, 0, 4, 1, 5, 2, 6) for t in range(2)] + [(0, f, t) for t in range(2) for f in (3, 7)]
            vs = [(1, f, t) for f in (8, 0, 4, 1, 5, 2, 6) for t in range(2)] + [(1, f, t) for t in range(2) for f in (3, 7)]
            seq = ks[:6] + vs[:2] + ks[6:] + vs[2:4] + ['T0'] + vs[4:5] + ['T1'] + vs[5:8] + ['S0'] + vs[8:16] + ['S1', 'S2'] + vs[16:17] + ['S3'] + vs[17:]
            F[0] = ['s_waitcnt lgkmcnt(0)', 's_barrier'] + rd[:1]
            F[1], F[2] = rd[1:4], rd[4:] + ['s_add_u32 s40, s40, 1']
            ld = loads() + ['s_add_u32 s43, s43, %d' % SEG_ME] + mloads()
            k = 3
            for x in ld:
                F.setdefault(k - (x[0] == 's'), []).append(x)
                k += OPT['sp'] * (x[0] == 'b')
            for i in range(4):
                F.setdefault(1 + i, []).append('v_mov_b64 %s, %s' % (vr(MF + 16 * (i >> 1) + 2 * (i & 1), 2), vr(SP + 2 * i, 2)))
            ck = [lambda r=KA + 4 * t + i, q=KA + 4 * t + 2 * i: cvt(r, q) for t in range(2) for i in range(2)]
            cm = [lambda i=i: cvt(KM + i, KM + 2 * i) for i in range(4)]
            for k, x in ((20, ck[:1]), (21, ck[1:2]), (22, ck[2:]), (25, cm[:2]), (26, cm[2:]),
                         (27, [L('kw', 'ds_write_b128 v8, %s offset:%d' % (vr(KM, 4), L_KM))]), (32, [lambda: LQ.wait('kw'), 's_barrier']),
                         (33, [L('k%d' % j, 'ds_read_b128 %s, v%d offset:%d' % (vr(KM + 4 * j, 4), AX + j, L_KM)) for j in range(1, 4)]),
                         (39, [lambda: cvt(VA, VA)]), (40, [lambda: cvt(VA + 1, VA + 2)])):
                F[k] = x + F.get(k, [])
            for i, x in enumerate(seq):
                if x[0] == 'T':
                    t = int(x[1])
                    A('%s %s, %s, %s, 0' % (M16, vr(KM + 4 * t, 4), vr(KA + 4 * t, 2), vr(SEL, 2)))
                elif x[0] == 'S':
                    j = int(x[1])
                    LQ.wait('k%d' % j)
                    A('%s %s, %s, %s, %s' % (M32, vr(SM, 4), vr(KM + 4 * j, 4), vr(QF + 4 * j, 4), vr(SM, 4) if j else '0'))
                else:
                    kind, f, t = x
                    LQ.wait(f)
                    A('%s %s, %s, %s, v%d' % (SMF, vr((KA, VA)[kind] + 4 * t, 4), vr(SP + f if i < 8 else MF + 4 * f, 4), FR(18 * kind + 2 * f + t), IDX))
                for y in F.pop(i, []):
                    y() if callable(y) else A(y)
            assert not F
            s, m, a = SM, SX, SX + 2
            emit(['v_max3_f32 v%d, v%d, v%d, v%d' % (m, s, s + 1, s + 2), 'v_max_f32 v%d, v%d, v%d' % (m, m, s + 3)])
            x = xred(m, a, 'v_max_f32', 16)
            A(x[0])
            cvt(VA + 2, VA + 4)
            cvt(VA + 3, VA + 6)
            A('ds_write_b128 v8, %s offset:%d' % (vr(VA, 4), L_VM))
            emit(x[1:])
            emit(['v_mul_f32 v%d, s50, v%d' % (m, m), 'v_max_f32 v%d, v%d, v%d' % (m, m, MX)])
            emit(['v_fma_f32 v%d, v%d, s50, -v%d' % (r, r, m) for r in range(s, s + 4)])
            A('v_sub_f32 v%d, v%d, v%d' % (a, MX, m))
            emit(['v_exp_f32 v%d, v%d' % (r, r) for r in range(s, s + 4)])
            A('s_waitcnt lgkmcnt(0)')
            A('s_barrier')
            A('ds_read_b128 %s, v%d offset:%d' % (vr(VP, 4), AX + 1, L_VM))
            A('v_exp_f32 v%d, v%d' % (a, a))
            cvt(PM, s)
            cvt(PM + 1, s + 2)

            def pv(i):
                A('%s %s, %s, %s, 0' % (M16, vr(OM + 4 * i, 4), vr((VA, VP)[i >> 1] + 2 * (i & 1), 2), vr(PM, 2)))
            A('v_pk_add_f32 %s, %s, %s' % (vr(s, 2), vr(s, 2), vr(s + 2, 2)))
            A('v_add_f32 v%d, v%d, v%d' % (m, s, s + 1))
            pv(0)
            x = xred(m, a + 1, 'v_add_f32', 16)
            A(x[0])
            pv(1)
            emit(x[1:])
            emit(['v_fmac_f32 v%d, v%d, v%d' % (m, a, LX), 'v_rcp_f32 v%d, v%d' % (m, m)])
            A('s_waitcnt lgkmcnt(0)')
            pv(2)
            A('v_mul_f32 v%d, v%d, v%d' % (a, a, m))
            pv(3)
            A('s_xor_b32 s47, s42, 1024')
            for j in range(2):
                rs = range(8 * j, 8 * j + 8, 2)
                emit(['v_pk_mul_f32 %s, %s, %s op_sel_hi:[1,0]' % (vr(O + r, 2), vr(O + r, 2), vr(a, 2)) for r in rs])
                emit(['v_pk_fma_f32 %s, %s, %s, %s op_sel_hi:[1,0,1]' % (vr(O + r, 2), vr(OM + r, 2), vr(m, 2), vr(O + r, 2)) for r in rs])
                for i in range(4):
                    cvt(KM + 4 * j + i, O + 8 * j + 2 * i)
                A('buffer_store_dwordx4 %s, v0, %s, %s offen sc1' % (vr(KM + 4 * j, 4), WS, ('s42', 's47')[j]))
            G.tsx(2, 's40', 1)
            A('s_add_u32 s42, s42, %d' % SEG_O)
            A('s_waitcnt vmcnt(9)')
            A('s_cmp_lt_u32 s40, 64')
            A('s_cbranch_scc1 %sL' % P)
        emit(loads() + mloads())
        A('s_waitcnt vmcnt(0)')
        A('s_cmp_eq_u32 s37, 0')
        A('s_cbranch_scc1 AM0_L')
        step(1)
        A('s_branch AM_E')
        step(0)
        A.label('AM_E')
        A('s_waitcnt vmcnt(0)')
        publish('s45', 's40')

    A('s_cmp_eq_u32 %s, 1' % S_X)
    A('s_cbranch_scc1 R_LN')
    A('s_sub_u32 s32, %s, 2' % S_X)
    A('s_cmp_lt_u32 %s, 6' % S_T)
    A('s_cbranch_scc1 R_TRIP')
    A('s_and_b32 s37, %s, 1' % S_T)
    A('s_lshr_b32 s33, %s, 1' % S_T)
    A('s_mul_i32 s34, s32, 5')
    A('s_add_u32 s36, s34, s33')
    A('s_sub_u32 s36, s36, 3')
    A('s_cmp_lt_u32 %s, 16' % S_T)
    A('s_cbranch_scc1 R_QKV')
    A('s_lshl_b32 s36, s32, 2')
    A('s_add_u32 s36, s36, s33')
    A('s_sub_u32 s36, s36, 8')
    A('s_cmp_lt_u32 %s, 24' % S_T)
    A('s_cbranch_scc1 R_F1')
    A('s_add_u32 s35, s34, %s' % S_T)
    A('s_sub_u32 s35, s35, 24')
    A('s_cmp_lt_u32 %s, 29' % S_T)
    A('s_cbranch_scc1 R_AM')
    A('s_cmp_lt_u32 s32, 4')
    A('s_cbranch_scc1 R_TRIP1')
    A('s_add_u32 s35, s32, 26')
    A('s_mov_b32 s36, s35')
    A('s_cmp_eq_u32 %s, 31' % S_T)
    A('s_cbranch_scc1 R_AM')
    A('s_branch R_QKV')
    A.label('R_F1')
    role_f1()
    G.finish()
    A.label('R_TRIP1')
    A('s_sub_u32 s38, %s, 29' % S_T)
    A('s_and_b32 s33, s32, 1')
    A('s_lshr_b32 s32, s32, 1')
    A('s_add_u32 s32, s32, 6')
    A('s_branch R_TRIP2')
    A.label('R_TRIP')
    A('s_cmp_ge_u32 %s, 3' % S_T)
    A('s_cselect_b32 s33, 1, 0')
    A('s_cselect_b32 s38, 3, 0')
    A('s_sub_u32 s38, %s, s38' % S_T)
    A.label('R_TRIP2')
    A('s_and_b32 s34, s32, 6')
    A('s_add_u32 s34, s34, s33')
    A('s_lshl_b32 s34, s34, 1')
    A('s_and_b32 s32, s32, 1')
    A('s_add_u32 s34, s34, s32')
    if OPT['pre']:
        A('s_cmp_eq_u32 s38, 1')
        A('s_cselect_b32 s12, s%d, s%d' % (G.P_WK, G.P_WQ))
        A('s_cselect_b32 s13, s%d, s%d' % (G.P_WK + 1, G.P_WQ + 1))
        A('s_cmp_eq_u32 s38, 2')
        A('s_cselect_b32 s12, s%d, s12' % G.P_WV)
        A('s_cselect_b32 s13, s%d, s13' % (G.P_WV + 1))
        A('s_mov_b32 s14, %d' % (576 * 8192))
        A('s_mov_b32 s15, 0x20000')
        A('v_lshrrev_b32 v5, 4, v1')
        A('v_and_b32 v6, 15, v1')
        A('v_lshlrev_b32 v6, 4, v6')
        A('v_lshl_add_u32 v7, v5, 10, v6')
        A('v_lshl_add_u32 v6, v5, 13, v6')
        A('s_lshl_b32 s30, s34, 2')
        A('s_add_u32 s30, s30, %s' % S_W)
        A('s_mul_i32 s30, s30, %d' % (9 * 8192))
        A('s_add_u32 s31, s30, 4096')
        for i in range(18):
            A('buffer_load_dwordx4 %s, v7, s[12:15], s30 offen offset:256' % vr(12 + 4 * i, 4))
            A('s_add_u32 s30, s30, 4096')
        for i in range(3):
            A('buffer_load_dwordx4 %s, v6, s[12:15], s31 offen offset:3840' % vr(84 + 4 * i, 4))
            A('s_add_u32 s31, s31, %d' % (3 * 8192))
        A('s_waitcnt vmcnt(0)')
    A('s_bfe_u32 s37, s34, 0x10001')
    A('s_lshr_b32 s36, s34, 2')
    A('s_bitcmp1_b32 s34, 0')
    A('s_cbranch_scc1 R_WO')
    role_part('F2')
    G.finish()
    A.label('R_WO')
    role_part('WO')
    G.finish()
    A.label('R_QKV')
    role_qkv()
    role_fin()
    G.finish()
    A.label('R_LN')
    A('s_mov_b32 s35, %s' % S_T)
    A.label('R_LN1')
    ln1()
    A('s_add_u32 s35, s35, 32')
    A('s_cmp_lt_u32 s35, 64')
    A('s_cbranch_scc1 R_LN1')
    A('s_sub_u32 s35, %s, 24' % S_T)
    A('s_cbranch_scc0 R_LN2')
    G.finish()
    A.label('R_LN2')
    role_ln2()
    G.finish()
    A.label('R_AM')
    role_am()
    G.finish()
```

```python
import sys, math, struct
sys.path.insert(0, 'gen')
from asmlib import *
from layout import *

OPT = dict(ar=0, eb=0, bg=0, ag=1, xe=12, i0=4, win=8, la=3, cx=1, pre=1, lt=0, dq=20, d1=20, d2=20, dw=20, da=9, ts=0, ts0=6, chain=8, only=0, mixed=0, st=0, two=0, slow=0, dl=0, dm=0, pl=13, x=0, w1=0, dn=0, h1=4, h2=13, hq=3, pb=1, xl=0, mi=4, ml=2, t0=0, amd=56,
           pa1=3, pa2=7, ph=20, pe=16, bq=41, bk=47, bp=52, px=46, ps=51, h0=1, bo=1, nr=3, r0=12, r1=14, p0=3, p1=6, cr=0, sm=0, fr=0, rm=0,
           nk=6, ia2=-1, ih=5, nm=5, m1=1, s1=-1, s2=-1, nc=1, ms=0, np=3, xo=1, r3=18, ik=10, pe2=25, mg=2, bl=2, xb=1, vl=1, r2=16, cw=0, vf=2)
OPT.update(n9=0, xr=99, y0=0, tt=0, sp=3, lp=64, ns=1, g1w=0, g2w=0, gww=0, zl=16, zf=8, w2=0, wm=0xa2222222, pu=0, pf0=0, qe=1, un=1, ec=5, nl=1, pk=10, sd=3, xp=1, hp=0, hw=0, h0=59, hg=30, sl=56, sf=63, sb=1)
if 'n9=1' in sys.argv:
    OPT.update(nk=0, px=43, ps=55, cb=14, la9=0, sw=5, y0=1, pe=17, pe2=21, xe=18, pd=1, wb=12, ws=0, ih=5, vl=9, ik=14, iz=3, g0=26, j0=20, g1=32, j1=26, g2=38, j2=32, g3=45, j3=41,
               qb=0, kb=1, xb=0, bq=38, bk=50, bp=50)
for a in sys.argv[2:]:
    k, v = a.split('=')
    OPT[k] = int(v, 0)

A = Asm()
WS, DBG, SA, SB, SC = 's[4:7]', 's[8:11]', 's[12:15]', 's[16:19]', 's[20:23]'
S_W, S_X, S_T, S_SPIN = 's24', 's25', 's26', 's27'
P_X, P_MEM, P_WQ, P_WK, P_WV, P_WO, P_WG, P_WU, P_WD, P_OUT, P_DBG, P_WS = 64, 66, 68, 70, 72, 74, 80, 82, 84, 86, 88, 90
SPIN_MAX = 400000
N_READY = 25 if OPT['hp'] else 20 if OPT['hw'] else 18
LOG2E = 1.4426950408889634


def fbits(x):
    return '0x%08x' % struct.unpack('<I', struct.pack('<f', x))[0]


def srd(d, p, size):
    A('s_mov_b32 s%d, s%d' % (d, p))
    A('s_mov_b32 s%d, s%d' % (d + 1, p + 1))
    A('s_mov_b32 s%d, 0x%x' % (d + 2, size))
    A('s_mov_b32 s%d, 0x20000' % (d + 3))


V_TS = 'v2'


def ts_init():
    if OPT['ts']:
        A('v_mov_b32 %s, 0' % V_TS)
        A('s_mov_b32 s63, 0')


def ts(real=True):
    if OPT['ts']:
        A('%s s[60:61]' % ('s_memrealtime' if (real and OPT['ts'] == 1) else 's_memtime'))
        A('s_waitcnt lgkmcnt(0)')
        A('s_mov_b32 s62, m0')
        A('s_mov_b32 m0, s63')
        A('v_writelane_b32 %s, s60, m0' % V_TS)
        A('s_mov_b32 m0, s62')
        A('s_add_u32 s63, s63, 1')
        A('s_min_u32 s63, s63, %d' % (15 if OPT['tt'] else 63))


def tsx(kind, seg, d=0):
    if OPT['tt']:
        A('s_memrealtime s[60:61]')
        A('s_mov_b32 s62, m0')
        A('s_cselect_b32 s101, 1, 0')
        A('s_sub_u32 s100, %s, %d' % (seg, d))
        A('s_and_b32 s100, s100, 7')
        A('s_mul_i32 s100, s100, 6')
        A('s_add_u32 m0, s100, %d' % (16 + kind))
        A('s_waitcnt lgkmcnt(0)')
        A('v_writelane_b32 %s, s60, m0' % V_TS)
        A('s_mov_b32 m0, s62')
        A('s_cmp_lg_u32 s101, 0')


def dump_ts(vlane):
    A('s_lshl_b32 s60, %s, 5' % S_X)
    A('s_add_u32 s60, s60, %s' % S_T)
    A('s_lshl_b32 s60, s60, 2')
    A('s_add_u32 s60, s60, %s' % S_W)
    A('s_lshl_b32 s60, s60, 8')
    A('s_add_u32 s60, s60, 0x%x' % W_TS)
    A('v_lshlrev_b32 v9, 2, %s' % vlane)
    A('buffer_store_dword %s, v9, %s, s60 offen' % (V_TS, WS))


def finish():
    if OPT['ts']:
        ts()
        dump_ts('v1')
    A('s_endpgm')


def spin(vaddr, vtmp, need, code, srdname=WS, soff='0', op='dword', nap=None):
    L, D = A.newlabel('SP'), A.newlabel('SD')
    A('s_mov_b32 %s, 0' % S_SPIN)
    A.label(L)
    A('buffer_load_%s %s, %s, %s, %s offen sc1' % (op, vtmp, vaddr, srdname, soff))
    A('s_waitcnt vmcnt(0)')
    A('v_cmp_gt_u32 vcc, %s, %s' % (need, vtmp))
    A('s_cbranch_vccz %s' % D)
    if nap and nap[0]:
        if len(nap) > 1:
            A('s_cmp_gt_u32 %s, %d' % (need, nap[1]))
            A('s_cbranch_scc1 %s_n' % L)
        A('s_sleep %d' % nap[0])
        A.label(L + '_n')
    A('s_add_u32 %s, %s, 1' % (S_SPIN, S_SPIN))
    A('s_cmp_lt_u32 %s, %d' % (S_SPIN, SPIN_MAX))
    A('s_cbranch_scc1 %s' % L)
    A('s_movk_i32 %s, %d' % (S_SPIN, code))
    A('s_branch FAIL')
    A.label(D)


def wait_ready(v0, v1):
    A('v_mov_b32 %s, %d' % (v0, D_READY * 4))
    spin(v0, v1, str(N_READY), 1, DBG)


def publish(vaddr, vtmp, sval):
    A('v_mov_b32 %s, %s' % (vtmp, sval))
    A('s_mov_b64 exec, 1')
    A('buffer_store_dword %s, %s, %s, 0 offen sc1' % (vtmp, vaddr, WS))
    A('s_mov_b64 exec, -1')


def role_chain_stub():
    wait_ready('v6', 'v7')
    A('s_lshl_b32 s34, %s, 2' % S_T)
    A('s_add_u32 s34, s34, %s' % S_W)
    A('s_lshl_b32 s34, s34, 2')
    A('v_mov_b32 v9, s34')
    publish('v9', 'v12', '64')


def prologue():
    A('s_cmp_ge_u32 s2, 256')
    A('s_cbranch_scc1 EXIT')
    A('s_load_dwordx16 s[64:79], s[0:1], 0')
    A('s_load_dwordx8 s[80:87], s[0:1], 64')
    A('s_load_dwordx4 s[88:91], s[0:1], 96')
    A('v_and_b32 v1, 63, v0')
    A('v_lshrrev_b32 v3, 6, v0')
    A('v_readfirstlane_b32 %s, v3' % S_W)
    A('s_getreg_b32 s28, hwreg(HW_REG_XCC_ID, 0, 4)')
    A('s_xor_b32 s28, s28, %d' % OPT['cx'])
    A('s_and_b32 s28, s28, 7')
    ts_init()
    A('s_waitcnt lgkmcnt(0)')
    srd(4, P_WS, WS_SIZE)
    srd(8, P_DBG, 256)
    ts()
    A('s_cmp_lg_u32 %s, 0' % S_W)
    A('s_cbranch_scc1 P_WAIT')
    A('s_lshr_b32 s29, s2, 5' if OPT['mixed'] else 's_mov_b32 s29, s28')
    A('s_mov_b32 s30, 0')
    A.label('P_TRY')
    A('s_lshl_b32 s31, s29, %d' % (2 + OPT['la']))
    A('v_mov_b32 v3, s31')
    A('v_mov_b32 v4, 1')
    A('s_mov_b64 exec, 1')
    A('buffer_atomic_add v4, v3, %s, 0 offen sc0 sc1' % DBG)
    A('s_waitcnt vmcnt(0)')
    A('s_mov_b64 exec, -1')
    A('v_readfirstlane_b32 %s, v4' % S_T)
    A('s_cmp_lt_u32 %s, 32' % S_T)
    A('s_cbranch_scc1 P_GOT')
    A('s_add_u32 s29, s29, 1')
    A('s_and_b32 s29, s29, 7')
    A('s_add_u32 s30, s30, 1')
    A('s_cmp_lt_u32 s30, 8')
    A('s_cbranch_scc1 P_TRY')
    A('s_mov_b32 s29, 8')
    A.label('P_GOT')
    A('s_lshl_b32 s31, s29, 8')
    A('s_add_u32 s31, s31, %s' % S_T)
    A('v_mov_b32 v3, 0')
    A('v_mov_b32 v4, s31')
    A('ds_write_b32 v3, v4')
    A('s_waitcnt lgkmcnt(0)')
    A('s_branch P_JOIN')
    A.label('P_WAIT')
    if OPT['pf0']:
        A('s_cmp_lg_u32 s28, 0')
        A('s_cbranch_scc1 P_NPF')
        A('s_cmp_eq_u32 %s, 3' % S_W)
        A('s_cselect_b32 s12, s%d, s%d' % (P_WK, P_WQ))
        A('s_cselect_b32 s13, s%d, s%d' % (P_WK + 1, P_WQ + 1))
        A('s_mov_b32 s14, %d' % (576 * 8192))
        A('s_mov_b32 s15, 0x20000')
        A('s_lshr_b32 s30, s2, 3')
        A('s_lshl_b32 s30, s30, 13')
        A('s_lshl_b32 s31, %s, 20' % S_W)
        A('s_add_u32 s30, s30, s31')
        A('v_lshlrev_b32 v3, 7, v1')
        for i in range(OPT['pf0']):
            A('buffer_load_dword v%d, v3, s[12:15], s30 offen' % (100 + i))
            A('s_add_u32 s30, s30, %d' % (1 << 18))
        A.label('P_NPF')
    A('s_cmp_ge_u32 s2, %d' % N_READY)
    A('s_cbranch_scc1 P_JOIN')
    A('s_cmp_lg_u32 %s, 1' % S_W)
    A('s_cbranch_scc1 P_JOIN')
    A('v_mov_b32 v4, 0')
    A('v_mov_b32 v5, 0')
    A('v_mov_b32 v6, 0')
    A('v_mov_b32 v7, 0')
    A('v_lshlrev_b32 v3, 7, v1')
    A('s_lshl_b32 s31, s2, 13')
    A('s_add_u32 s31, s31, 0x%x' % W_FLAGS)
    A('buffer_store_dwordx4 v[4:7], v3, %s, s31 offen sc1' % WS)
    A('v_mov_b32 v3, %d' % (D_READY * 4))
    A('v_mov_b32 v8, 1')
    A('s_waitcnt vmcnt(0)')
    A('s_mov_b64 exec, 1')
    A('buffer_atomic_add v8, v3, %s, 0 offen sc1' % DBG)
    A('s_mov_b64 exec, -1')
    A.label('P_JOIN')
    A('s_barrier')
    A('v_mov_b32 v3, 0')
    A('ds_read_b32 v4, v3')
    A('s_waitcnt lgkmcnt(0)')
    A('v_readfirstlane_b32 s31, v4')
    A('s_lshr_b32 %s, s31, 8' % S_X)
    A('s_and_b32 %s, s31, 255' % S_T)
    A('s_barrier')
    ts()


def main():
    me = sys.modules[__name__]
    prologue()
    A('s_cmp_eq_u32 %s, 0' % S_X)
    A('s_cbranch_scc1 R_CHAIN')
    A('s_cmp_gt_u32 %s, 7' % S_X)
    A('s_cbranch_scc1 EXIT')
    if OPT['only']:
        A('s_cmp_gt_u32 %s, 4' % S_X)
        A('s_cbranch_scc1 EXIT')
        A('s_lshl_b32 s30, %s, 21' % S_T)
        A('s_lshl_b32 s31, %s, 12' % S_X)
        A('s_add_u32 s30, s30, s31')
        A('s_add_u32 s30, s30, 0x%x' % (W_QKV + 4096))
        A('v_lshlrev_b32 v6, 4, v0')
        for i in range(64):
            A('buffer_load_dwordx4 %s, v6, %s, s30 offen' % (vr(8 + 4 * (i & 15), 4), WS))
            A('s_add_u32 s30, s30, %d' % SEG_QKV)
            if i & 15 == 15:
                A('s_sub_u32 s30, s30, %d' % (16 * SEG_QKV))
                A('s_waitcnt vmcnt(0)')
                for k in range(16):
                    A('buffer_store_dwordx4 %s, v6, %s, s30 offen sc1' % (vr(8 + 4 * k, 4), WS))
                    A('s_add_u32 s30, s30, %d' % SEG_QKV)
                A('s_waitcnt vmcnt(0)')
        A('s_cmp_lg_u32 %s, 1' % S_X)
        A('s_cbranch_scc1 EXIT')
        A('s_cmp_lg_u32 %s, 0' % S_T)
        A('s_cbranch_scc1 EXIT')
        wait_ready('v6', 'v7')
        A('v_lshlrev_b32 v6, 7, v1')
        A('s_lshl_b32 s30, %s, 2' % S_W)
        A('s_add_u32 s30, s30, %d' % (F_QKV * 128))
        A('v_add_u32 v6, s30, v6')
        A('v_mov_b32 v7, 64')
        A('buffer_store_dword v7, v6, %s, 0 offen sc1' % WS)
        A('s_endpgm')
    else:
        import workers
        workers.roles(me)
    A.label('R_CHAIN')
    if OPT['chain']:
        import importlib
        importlib.import_module('chain%d' % OPT['chain']).role_chain(me)
    else:
        role_chain_stub()
        finish()
    A.label('FAIL')
    A('s_mov_b64 exec, 1')
    A('v_mov_b32 v3, %d' % (D_ERR * 4))
    A('v_mov_b32 v4, %s' % S_SPIN)
    A('buffer_store_dword v4, v3, %s, 0 offen sc1' % DBG)
    A.label('EXIT')
    A('s_endpgm')
    lines, nn = fix_hazards(A.lines)
    ref = open('cdna_kernels/%s.s.ref' % NAME).read()
    head = ref[:ref.index(NAME + '_kernel:')]
    head = head.replace('grid=(4608,1,1) block=(256,1,1) lds=0', 'grid=(256,1,1) block=(256,1,1) lds=163840')
    tail = ref[ref.index('.section .rodata'):].replace('next_free_vgpr 256', 'next_free_vgpr 512')
    with open(sys.argv[1], 'w') as f:
        f.write(head + NAME + '_kernel:\n' + '\n'.join(l if l.endswith(':') else '    ' + l for l in lines) + '\n' + tail)
    print('lines', len(lines), 'nop states', nn)


if __name__ == '__main__':
    main()
```

```python
import math
from asmlib import *
from layout import *
from chain import Q

M16 = 'v_mfma_f32_16x16x16_bf16'
M32 = 'v_mfma_f32_16x16x32_bf16'


def roles(G):
    A, WS, OPT = G.A, G.WS, G.OPT
    S_W, S_X, S_T = G.S_W, G.S_X, G.S_T

    def cvt(d, s, s2=None):
        A('v_cvt_pk_bf16_f32 v%d, v%d, v%d' % (d, s, s + 1 if s2 is None else s2))

    def publish(soff, sval, q=None, d=1):
        G.tsx(3, sval, d)
        A('v_mov_b32 v7, %s' % sval)
        A('s_mov_b64 exec, 1')
        t = 'buffer_store_dword v7, off, %s, %s sc1' % (WS, soff)
        if q is None:
            A(t)
        else:
            q.op('pub', t)
        A('s_mov_b64 exec, -1')

    def wreg(f, nf, sub=None):
        k, b = ('a', 4 * f) if f < 64 else ('v', 256 - 4 * (nf - f))
        return vr(b, 4, k) if sub is None else vr(b + 2 * sub, 2, k)

    def load_weights(units, nf, stride, krow, NS=20):
        VQ = Q(A, 'vmcnt')
        A('s_mul_i32 s30, %s, %d' % (S_W, 20 * 2048))

        def dma(n):
            sd, vo, col, k, _ = units[n]
            for i in range(2):
                A('s_add_u32 m0, s30, %d' % ((n % NS) * 2048 + i * 1024))
                A('s_mov_b32 s31, %d' % ((32 * k + 16 * i) * stride + col))
                VQ.op(n, 'buffer_load_dwordx4 %s, %s, s31 offen lds' % (vo, sd))
        for n in range(min(NS, len(units))):
            dma(n)
        GR = 3 if NS > 5 else 1
        usep = 256 if krow == 'N' else 1024
        for n0 in range(0, len(units), GR):
            ns = list(range(n0, min(n0 + GR, len(units))))
            VQ.wait(ns[-1])
            for n in ns:
                for f, va, off in units[n][4]:
                    for u in range(2):
                        A('ds_read_b64_tr_b16 %s, %s offset:%d' % (wreg(f, nf, u), va, (n % NS) * 2048 + u * usep + off))
            A('s_waitcnt lgkmcnt(0)')
            for n in ns:
                if n + NS < len(units):
                    dma(n + NS)

    def w_lane(stride, krow, ccol):
        A('v_lshrrev_b32 v7, 2, v1')
        A('v_mul_u32_u24 v8, %d, v7' % stride)
        A('v_and_b32 v6, 3, v1')
        A('v_lshl_add_u32 v8, v6, 4, v8')
        A('v_lshrrev_b32 v5, 4, v1')
        A('v_and_b32 v7, 3, v7')
        A('v_lshl_add_u32 v7, v5, %d, v7' % (3 if krow == 'N' else 2))
        A('v_lshlrev_b32 v10, 6, v7')
        A('v_lshl_add_u32 v10, v6, %d, v10' % (4 if ccol == 'N' else 3))
        A('s_mul_i32 s30, %s, %d' % (S_W, 20 * 2048))
        A('v_add_u32 v10, s30, v10')

    def pull():
        if not OPT['pu']:
            return
        A('s_lshl_b32 s30, s30, 2')
        A('s_add_u32 s30, s30, %s' % S_W)
        A('s_lshl_b32 s30, s30, 13')
        A('s_add_u32 s31, s30, %d' % (384 << 13))
        A('v_lshlrev_b32 v5, 7, v1')
        A('v_add_u32 v6, s31, v5')
        A('v_add_u32 v5, s30, v5')
        for i, P in enumerate((G.P_WQ, G.P_WK, G.P_WV, G.P_WO, G.P_WG, G.P_WU, G.P_WD)[:4 if OPT['pu'] == 1 else 7]):
            G.srd(12, P, 576 * (8192 if i < 4 else 9216))
            if i == 4 and OPT['pu'] == 2:
                A('s_waitcnt vmcnt(0)')
            for j in range(2):
                A('buffer_load_dword v%d, v%d, s[12:15], 0 offen' % (12 + 2 * i + j, 5 + j))
        A('s_waitcnt vmcnt(0)')

    def gate(k):
        if k:
            G.wait_ready('v6', 'v7')
            A('v_mov_b32 v6, %d' % (128 * (F_XN + 127, F_QKV)[k - 1]))
            G.spin('v6', 'v7', str(k), 26, nap=(8,))

    S_U, S_DST, S_SRC, S_LDS, S_NEED, S_FLG, S_PUB = ['s%d' % i for i in range(40, 47)]

    def gemm(name, KS, NT, TS, ND, WPART, BUF, STEP, dsrc, ddst, checks, pubk, NB, PF, swaps, epi, mid=None, late=None, skew=0):
        NR = KS * TS
        NF = NR + skew
        nf = KS * NT
        ACC = 8
        RING = ACC + 4 * NT * TS
        always = not checks
        A('v_lshlrev_b32 v0, 4, v1')
        A('v_mov_b32 v3, v0')
        A('v_mov_b32 v5, 0')
        A('s_mul_i32 %s, %s, %d' % (S_LDS, S_W, WPART))
        A('s_mov_b32 %s, 0' % S_PUB)
        un = OPT['un'] and late is not None
        ec = 0 if always else OPT['ec']
        if un and OPT['nl']:
            late = 99
        if un:
            A('v_and_b32 v76, 3, v1')
            A('v_cmp_eq_u32 s[54:55], %s, v76' % S_W)
            A('v_lshlrev_b32 v76, 2, v76')
            A('v_add_u32 v76, 0x20000, v76')
        A('s_barrier')
        if un:
            A('ds_write_b32 v76, v5')

        def dma(i, VQ):
            if i % 4 == 0:
                A('s_add_u32 m0, %s, %d' % (S_LDS, i * 1024))
                if i:
                    A('s_add_u32 s47, %s, %d' % (S_SRC, i * 1024))
            VQ.op('dma', 'buffer_load_dwordx4 v0, %s, %s offen offset:%d sc1 lds' % (WS, 's47' if i >= 4 else S_SRC, (i % 4) * 1024))
            if i == ND - 1:
                A('s_add_u32 %s, %s, %d' % (S_SRC, S_SRC, dsrc))
                A('s_xor_b32 %s, %s, %d' % (S_LDS, S_LDS, BUF))

        def poll(VQ):
            VQ.op('poll', 'buffer_load_dword v5, v4, %s, 0 offen sc1' % WS)

        def body(j0, VQ, LQ, issued, nst):
            pieces = {}
            if issued is not None:
                gap = max(1, min(3, (NF - 1 - j0) // ND))
                for i in range(ND):
                    pieces.setdefault(min(j0 + i * gap, NF - 1), []).append(i)
                pollk = max(max(pieces) + 1, NF - (700 // (16 * NT)) * (2 if skew else 1))
            for j in range(j0, NF):
                jf = j if j < NR else j - skew
                tiles = range(NT) if jf < NR - skew else range(NT // 2) if j < NR else range(NT // 2, NT)
                T, k = divmod(jf, KS)
                if issued is None and j in (checks or [0]) and (j > j0 or j == 0):
                    if always:
                        A('s_cmp_lt_u32 %s, 64' % S_NEED)
                        A('s_cbranch_scc1 %s_V%d' % (name, j))
                    else:
                        A('s_cbranch_vccz %s_V%d' % (name, j))
                    variants.append((j, list(VQ.q), list(LQ.q)))
                    if not always:
                        poll(VQ)
                LQ.wait('f%d' % j)
                b = vr(RING + 4 * (jf % NB), 4)
                fill = []
                if un and issued is not None and issued < late:
                    if j == j0:
                        fill.append(lambda: (A('v_mov_b32 v77, %s' % S_NEED), A('s_mov_b64 exec, s[54:55]'), LQ.op('u', 'ds_write_b32 v76, v77'), A('s_mov_b64 exec, -1')))
                    if j == NF - 1:
                        fill.append(lambda: LQ.op('u', 'ds_read_b32 v77, v76'))
                if j + PF < NR:
                    fill.append(lambda j=j: LQ.op('f%d' % (j + PF), 'ds_read_b128 %s, v3 offset:%d' % (vr(RING + 4 * ((j + PF) % NB), 4), (j + PF) * 1024)))
                for i in pieces.get(j, ()):
                    fill.append(lambda i=i: dma(i, VQ))
                if j == pubk:
                    def pub():
                        L = A.newlabel('NP')
                        A('s_cmp_eq_u32 %s, 0' % S_PUB)
                        A('s_cbranch_scc1 %s' % L)
                        VQ.wait('st')
                        publish(S_FLG, S_U)
                        A('s_mov_b32 %s, 0' % S_PUB)
                        A.label(L)
                        VQ.q.append('pub?')
                    fill.append(pub)
                if issued is not None and not always and j == pollk:
                    fill.append(lambda: poll(VQ))
                if issued is None and ec and j == NF - ec:
                    fill.append(lambda: poll(VQ))
                if mid:
                    fill += mid(j, VQ)
                if issued is None and (j + 1) in checks:
                    fill.append(lambda: A('v_cmp_ge_u32 vcc, %s, v5' % S_NEED))
                for t in tiles:
                    d = vr(ACC + 4 * (T * NT + t), 4)
                    w = wreg(k * NT + t, nf)
                    x, y = (b, w) if t in swaps else (w, b)
                    A('%s %s, %s, %s, %s' % (M32, d, x, y, '0' if k == 0 else d))
                    n = 1 if t < tiles[-1] else len(fill)
                    for f in fill[:n]:
                        f()
                    fill = fill[n:]
                    if j >= NR:
                        epi(VQ, (j - NR) * len(tiles) + t - tiles[0])
            A('v_xor_b32 v3, %d, v3' % BUF)
            epi(VQ)
            G.tsx(2, S_U)
            A('s_add_u32 %s, %s, %d' % (S_DST, S_DST, ddst))
            A('s_add_u32 %s, %s, %d' % (S_U, S_U, STEP))

        def strict(VQ, tag):
            VQ.q = [x for x in VQ.q if x != 'pub?']
            VQ.wait(tag)

        variants = []
        A.label(name + '_S')
        if not always:
            A('s_add_u32 s48, %s, 1' % S_U)
            G.spin('v4', 'v5', 's48', 20)
            G.tsx(0, S_U)
        A.label(name + '_D')
        VQ = Q(A, 'vmcnt')
        for i in range(ND):
            dma(i, VQ)
        A('s_waitcnt vmcnt(0)')
        A.label(name + '_L')
        A('s_barrier')
        G.tsx(1, S_U)
        if OPT['ts']:
            L = A.newlabel('TS')
            if STEP == 1:
                A('s_cmp_lt_u32 %s, %d' % (S_U, OPT['ts0']))
                A('s_cbranch_scc1 %s' % L)
            G.ts()
            A.label(L)
        LQ = Q(A, 'lgkmcnt')
        for j in range(PF):
            LQ.op('f%d' % j, 'ds_read_b128 %s, v3 offset:%d' % (vr(RING + 4 * (j % NB), 4), j * 1024))
        A('s_add_u32 %s, %s, %d' % (S_NEED, S_U, STEP))
        if not always:
            A('s_cmp_lt_u32 %s, 64' % S_NEED)
            A('s_cselect_b32 %s, %s, -1' % (S_NEED, S_NEED))
            A('v_cmp_ge_u32 vcc, %s, v5' % S_NEED)
        VQ = Q(A, 'vmcnt')
        VQ.q = ['st']
        body(0, VQ, LQ, None, 0)
        if ec:
            A('v_cmp_ge_u32 vcc, %s, v5' % S_NEED)
            A('s_cbranch_vccz %s_E1' % name)
        if not always:
            poll(VQ)
        strict(VQ, 'st')
        publish(S_FLG, S_U)
        if ec:
            A('s_waitcnt vmcnt(1)')
            A('v_cmp_ge_u32 vcc, %s, v5' % S_NEED)
            G.tsx(0, S_U)
            A('s_cbranch_vccz %s_D' % name)
        A('s_cmp_ge_u32 %s, 64' % S_U)
        A('s_cbranch_scc1 %s_E' % name)
        A('s_branch %s_S' % name)
        if ec:
            A.label(name + '_E1')
            G.tsx(0, S_U)
            for i in range(ND):
                dma(i, VQ)
            A('s_waitcnt vmcnt(%d)' % ND)
            publish(S_FLG, S_U)
            A('s_waitcnt vmcnt(1)')
            A('s_branch %s_L' % name)
        if un:
            A.label(name + '_P')
            A('s_waitcnt vmcnt(0)')
            publish(S_FLG, S_U)
            A('s_branch %s_L' % name)
        for j, vq, lq in variants:
            A.label('%s_V%d' % (name, j))
            G.tsx(4, S_NEED)
            VQ = Q(A, 'vmcnt')
            VQ.q = vq
            LQ = Q(A, 'lgkmcnt')
            LQ.q = lq
            body(j, VQ, LQ, j, 0)
            if late is not None and j >= late:
                A('s_waitcnt vmcnt(0)')
                publish(S_FLG, S_U)
            else:
                if un:
                    LQ.wait('u')
                    A('v_cmp_ne_u32 vcc, %s, v77' % S_U)
                    A('s_cbranch_vccnz %s_P' % name)
                strict(VQ, 'dma')
                A('s_mov_b32 %s, 1' % S_PUB)
            A('s_branch %s_L' % name)
        A.label(name + '_E')
        G.ts()

    def red(r, t):
        A('v_add_f32_dpp v%d, v%d, v%d row_ror:8 row_mask:0xf bank_mask:0xf' % (r, r, r))
        A('v_mov_b32 v%d, v%d' % (t, r))
        A('v_permlane16_swap_b32 v%d, v%d' % (r, t))
        A('v_add_f32 v%d, v%d, v%d' % (r, r, t))
        A('v_mov_b32 v%d, v%d' % (t, r))
        A('v_permlane32_swap_b32 v%d, v%d' % (r, t))
        A('v_add_f32 v%d, v%d, v%d' % (r, r, t))

    def oct_lanes(vrow, vfrag, vhalf=None):
        A('v_and_b32 v7, 7, v1')
        A('v_bfe_u32 v6, v1, 3, 1')
        A('v_lshrrev_b32 v5, 4, v1')
        A('v_mul_u32_u24 %s, 1152, v7' % vrow)
        A('v_lshl_add_u32 %s, v6, 6, %s' % (vrow, vrow))
        A('v_lshl_add_u32 %s, v5, 4, %s' % (vrow, vrow))
        A('v_lshl_add_u32 v7, v5, 4, v7')
        A('v_lshlrev_b32 v6, 10, v6')
        A('v_lshl_add_u32 %s, v7, 4, v6' % vfrag)
        if vhalf:
            A('v_lshl_add_u32 %s, v7, 3, v6' % vhalf)

    def ln1():
        G.srd(20, G.P_X, 2048 * 1152)
        oct_lanes('v3', 'v4')
        A('s_lshl_b32 s36, s35, 2')
        A('s_add_u32 s36, s36, %s' % S_W)
        A('s_mul_i32 s32, s36, %d' % (8 * 1152))
        F = 52
        VQ = Q(A, 'vmcnt')
        for X in (16, 124):
            for i in range(9):
                VQ.op((X, i), 'buffer_load_dwordx4 %s, v3, s[20:23], s32 offen offset:%d' % (vr(X + 4 * i, 4), i * 128))
            A('s_add_u32 s32, s32, %d' % (1024 * 1152))
        A('s_lshr_b32 s33, s36, 1')
        A('s_mul_i32 s33, s33, 18432')
        A('s_and_b32 s34, %s, 1' % S_W)
        A('s_lshl_b32 s34, s34, 7')
        A('s_add_u32 s33, s33, s34')
        A('s_add_u32 s33, s33, 0x%x' % W_XN)
        A('v_mov_b32 v6, %d' % (D_READY * 4))
        for X in (16, 124):
            for i in range(9):
                VQ.wait((X, i))
                for j in range(4):
                    r = X + 4 * i + j
                    A('v_lshlrev_b32 v%d, 16, v%d' % (F + 2 * (4 * i + j), r))
                    A('v_and_b32 v%d, 0xffff0000, v%d' % (F + 2 * (4 * i + j) + 1, r))
                for j in range(4):
                    p = F + 2 * (4 * i + j)
                    acc = 8 + 2 * (j & 1)
                    if i == 0 and j < 2:
                        A('v_pk_add_f32 %s, %s, %s' % (vr(acc, 2), vr(p, 2), vr(p + 4, 2)))
                    elif i > 0:
                        A('v_pk_add_f32 %s, %s, %s' % (vr(acc, 2), vr(acc, 2), vr(p, 2)))
            if OPT['lt']:
                G.ts()
            A('v_pk_add_f32 v[8:9], v[8:9], v[10:11]')
            A('v_add_f32 v8, v8, v9')
            red(8, 9)
            A('v_mul_f32 v12, %s, v8' % G.fbits(-1.0 / 576))
            A('v_mov_b32 v13, v12')
            for i in range(36):
                p = F + 2 * i
                A('v_pk_add_f32 %s, %s, v[12:13]' % (vr(p, 2), vr(p, 2)))
            for i in range(36):
                p = F + 2 * i
                acc = 8 + 2 * (i & 1)
                if i < 2:
                    A('v_pk_mul_f32 %s, %s, %s' % (vr(acc, 2), vr(p, 2), vr(p, 2)))
                else:
                    A('v_pk_fma_f32 %s, %s, %s, %s' % (vr(acc, 2), vr(p, 2), vr(p, 2), vr(acc, 2)))
            A('v_pk_add_f32 v[8:9], v[8:9], v[10:11]')
            A('v_add_f32 v8, v8, v9')
            red(8, 9)
            A('v_mov_b32 v9, %s' % G.fbits(1e-5))
            A('v_fmac_f32 v9, %s, v8' % G.fbits(1.0 / 576))
            A('v_rsq_f32 v12, v9')
            A('v_mov_b32 v13, v12')
            for i in range(9):
                for j in range(4):
                    p = F + 2 * (4 * i + j)
                    A('v_pk_mul_f32 %s, %s, v[12:13]' % (vr(p, 2), vr(p, 2)))
                for j in range(4):
                    cvt(X + 4 * i + j, F + 2 * (4 * i + j))
                if i and i % 2 == 0:
                    A('s_add_u32 s33, s33, 4096')
                VQ.op('s', 'buffer_store_dwordx4 %s, v4, %s, s33 offen offset:%d sc1' % (vr(X + 4 * i, 4), WS, (i & 1) * 2048))
            A('s_add_u32 s33, s33, %d' % (32 * SEG_XN - 16384))
            if X == 16:
                VQ.op('r', 'buffer_load_dword v14, v6, %s, 0 offen sc1' % G.DBG)
        A('s_add_u32 s36, s36, %d' % F_XN)
        A('s_lshl_b32 s36, s36, 7')
        A('s_waitcnt vmcnt(0)')
        A('v_cmp_gt_u32 vcc, %d, v14' % G.N_READY)
        A('s_cbranch_vccz LN1_R')
        G.wait_ready('v6', 'v7')
        A.label('LN1_R')
        publish('s36', '1')
        G.ts()

    ID, RA, RB = 10, 12, 40

    def ident():
        A('v_and_b32 v7, 15, v1')
        A('v_lshrrev_b32 v6, 4, v1')
        A('v_lshlrev_b32 v6, 2, v6')
        A('v_sub_u32 v7, v7, v6')
        A('v_mov_b32 v5, 0x3f80')
        A('v_mov_b32 v6, 0x3f800000')
        for i in range(2):
            A('v_mov_b32 v%d, 0' % (ID + i))
            A('v_cmp_eq_u32 vcc, %d, v7' % (2 * i))
            A('v_cndmask_b32 v%d, v%d, v5, vcc' % (ID + i, ID + i))
            A('v_cmp_eq_u32 vcc, %d, v7' % (2 * i + 1))
            A('v_cndmask_b32 v%d, v%d, v6, vcc' % (ID + i, ID + i))

    def part_loads(VQ, np_, sbase):
        for n in range(np_):
            r = RB + 12 * (n + 1)
            if n:
                A('s_add_u32 %s, %s, 18432' % (sbase, sbase))
            for p in range(2):
                VQ.op((n + 1, p), 'buffer_load_dwordx4 %s, v8, %s, %s offen offset:%d sc1' % (vr(r + 4 * p, 4), WS, sbase, p * 2048))
            for i in range(2):
                VQ.op((n + 1, 2), 'buffer_load_dwordx2 %s, v9, %s, %s offen offset:%d sc1' % (vr(r + 8 + 2 * i, 2), WS, sbase, i * 512))

    def part_sum(VQ, np_):
        for n in range(np_ + 1):
            for p in range(3):
                VQ.wait((n, p))
                for i in range(2):
                    d = vr(RA + 8 * p + 4 * i, 4)
                    A('%s %s, %s, %s, %s' % (M16, d, vr(ID, 2), vr(RB + 12 * n + 4 * p + 2 * i, 2), '0' if n == 0 else d))

    def role_ln2():
        A('s_cmp_eq_u32 %s, 3' % S_W)
        A('s_cbranch_scc1 EXIT')
        G.srd(20, G.P_X, 2048 * 1152)
        ident()
        oct_lanes('v3', 'v8', 'v9')
        A('s_lshr_b32 s40, s35, 2')
        A('s_and_b32 s36, s35, 3')
        A('s_lshr_b32 s37, s36, 1')
        A('s_and_b32 s38, s36, 1')
        A('s_mul_i32 s32, s36, %d' % (8 * 1152))
        A('s_mul_i32 s33, %s, 384' % S_W)
        A('s_add_u32 s32, s32, s33')
        A('v_add_u32 v3, s32, v3')
        A('s_mul_i32 s33, %s, 6144' % S_W)
        A('s_lshl_b32 s34, s38, 7')
        A('s_add_u32 s34, s34, s33')
        A('v_add_u32 v8, s34, v8')
        A('s_lshl_b32 s34, s38, 6')
        A('s_add_u32 s34, s34, s33')
        A('s_add_u32 s34, s34, 4096')
        A('v_add_u32 v9, s34, v9')
        A('s_lshl_b32 s34, s37, 2')
        A('s_add_u32 s34, s34, %s' % S_W)
        A('s_lshl_b32 s34, s34, 4')
        A('s_add_u32 s34, s34, %d' % F_WO)
        A('v_min_u32 v4, 15, v1')
        A('v_add_u32 v4, s34, v4')
        A('v_lshlrev_b32 v4, 7, v4')
        A('s_lshl_b32 s45, s40, 1')
        A('s_add_u32 s45, s45, s38')
        A('s_mul_i32 s45, s45, 3')
        A('s_add_u32 s45, s45, %s' % S_W)
        A('s_lshl_b32 s34, s37, 5')
        A('s_add_u32 s45, s45, s34')
        A('s_add_u32 s45, s45, %d' % F_LN2)
        A('s_lshl_b32 s45, s45, 7')
        A('v_and_b32 v0, 7, v1')
        A('v_lshlrev_b32 v0, 3, v0')
        A('s_lshl_b32 s34, %s, 6' % S_W)
        A('s_mul_i32 s41, s37, %d' % (NPW * 18432))
        A('s_add_u32 s41, s41, 0x%x' % W_PW)
        A('s_mul_i32 s42, s37, 18432')
        G.wait_ready('v6', 'v7')
        A('v_add_u32 v6, s34, v0')
        A.label('LN2_L')
        VQ = Q(A, 'vmcnt')
        A('s_mul_i32 s43, s40, %d' % SEG_XN)
        for p in range(3):
            A('buffer_load_dwordx4 %s, v3, s[20:23], s43 offen offset:%d' % (vr(RB + 4 * p, 4), p * 128))
        A('s_mul_i32 s44, s40, %d' % SEG_PW)
        A('s_add_u32 s44, s44, s41')
        A('s_add_u32 s48, s40, 1')
        G.spin('v4', 'v5', 's48', 21, nap=(OPT['zl'], 54))
        G.tsx(0, 's40')
        G.ts()
        part_loads(VQ, NPW, 's44')
        part_sum(VQ, NPW)
        G.tsx(1, 's40')
        A('s_add_u32 s43, s43, s42')
        A('s_add_u32 s44, s43, 0x%x' % W_HB)
        A('s_add_u32 s43, s43, 0x%x' % W_HN)
        A('s_add_u32 s46, s44, 4096')
        A('s_add_u32 s47, s43, 4096')
        t = RB + 12
        for i in range(3):
            A('v_pk_add_f32 %s, %s, %s' % (vr(t + 2 * i, 2), vr(RA + 2 * i, 2), vr(RA + 6 + 2 * i, 2)))
        for i in range(6):
            A('v_pk_add_f32 %s, %s, %s' % (vr(t + 2 * (i % 3), 2), vr(t + 2 * (i % 3), 2), vr(RA + 12 + 2 * i, 2)))
        A('v_pk_add_f32 %s, %s, %s' % (vr(t, 2), vr(t, 2), vr(t + 2, 2)))
        A('v_pk_add_f32 %s, %s, %s' % (vr(t, 2), vr(t, 2), vr(t + 4, 2)))
        A('v_add_f32 v%d, v%d, v%d' % (t, t, t + 1))
        for i in range(12):
            cvt(RB + i, RA + 2 * i)
        red(t, t + 1)
        A('v_mul_f32 v%d, %s, v%d' % (t + 8, G.fbits(1.0 / 192), t))
        A('v_mul_f32 v%d, %s, v%d' % (t + 6, G.fbits(-1.0 / 192), t))
        A('v_mov_b32 v%d, v%d' % (t + 7, t + 6))
        for i in range(12):
            A('v_pk_add_f32 %s, %s, %s' % (vr(RA + 2 * i, 2), vr(RA + 2 * i, 2), vr(t + 6, 2)))
        for i in range(12):
            a = vr(t + 2 * (i % 3), 2)
            p = vr(RA + 2 * i, 2)
            if i < 3:
                A('v_pk_mul_f32 %s, %s, %s' % (a, p, p))
            else:
                A('v_pk_fma_f32 %s, %s, %s, %s' % (a, p, p, a))
        A('v_pk_add_f32 %s, %s, %s' % (vr(t, 2), vr(t, 2), vr(t + 2, 2)))
        A('v_pk_add_f32 %s, %s, %s' % (vr(t, 2), vr(t, 2), vr(t + 4, 2)))
        A('v_add_f32 v%d, v%d, v%d' % (t + 9, t, t + 1))
        red(t + 9, t + 1)
        A('ds_write_b64 v6, %s' % vr(t + 8, 2))
        for p in range(3):
            A('buffer_store_dwordx4 %s, v8, %s, %s offen offset:%d sc1' % (vr(RB + 4 * p, 4), WS, 's44' if p < 2 else 's46', (p & 1) * 2048))
        A('s_waitcnt lgkmcnt(0)')
        A('s_barrier')
        for j in range(3):
            A('ds_read_b64 %s, v0 offset:%d' % (vr(t + 2 * j, 2), j * 64))
        A('v_xor_b32 v0, 256, v0')
        A('v_xor_b32 v6, 256, v6')
        A('s_waitcnt lgkmcnt(0)')
        m, v = t + 10, t + 11
        A('v_add_f32 v%d, v%d, v%d' % (m, t, t + 2))
        A('v_add_f32 v%d, v%d, v%d' % (v, t + 1, t + 3))
        A('v_add_f32 v%d, v%d, v%d' % (m, m, t + 4))
        A('v_add_f32 v%d, v%d, v%d' % (v, v, t + 5))
        A('v_mul_f32 v%d, %s, v%d' % (m, G.fbits(1.0 / 3), m))
        A('v_mul_f32 v%d, %s, v%d' % (v, G.fbits(1.0 / 192), v))
        for j in range(3):
            A('v_sub_f32 v%d, v%d, v%d' % (t + 2 * j, t + 2 * j, m))
        for j in range(3):
            A('v_fmac_f32 v%d, v%d, v%d' % (v, t + 2 * j, t + 2 * j))
        A('v_mov_b32 v%d, %s' % (t, G.fbits(1e-5)))
        A('v_fmac_f32 v%d, %s, v%d' % (t, G.fbits(1.0 / 3), v))
        A('v_rsq_f32 v%d, v%d' % (t, t))
        A('v_sub_f32 v%d, v%d, v%d' % (t + 2, t + 8, m))
        A('v_mov_b32 v%d, v%d' % (t + 1, t))
        A('v_mul_f32 v%d, v%d, v%d' % (t + 2, t + 2, t))
        A('v_mov_b32 v%d, v%d' % (t + 3, t + 2))
        H = RB + 24
        for p in range(3):
            for i in range(4):
                a = vr(RA + 8 * p + 2 * i, 2)
                A('v_pk_fma_f32 %s, %s, %s, %s' % (a, a, vr(t, 2), vr(t + 2, 2)))
            for i in range(4):
                cvt(H + 4 * p + i, RA + 8 * p + 2 * i)
            A('buffer_store_dwordx4 %s, v8, %s, %s offen offset:%d sc1' % (vr(H + 4 * p, 4), WS, 's43' if p < 2 else 's47', (p & 1) * 2048))
        G.tsx(2, 's40')
        A('s_add_u32 s40, s40, 2')
        A('s_waitcnt vmcnt(0)')
        publish('s45', 's40', d=2)
        G.ts()
        A('s_cmp_lt_u32 s40, 64')
        A('s_cbranch_scc1 LN2_L')

    def role_fin():
        G.srd(20, G.P_OUT, 2048 * 1152)
        ident()
        oct_lanes('v3', 'v0', 'v4')
        A('v_add_u32 v36, 4096, v4')
        A('v_min_u32 v4, 15, v1')
        A('v_lshlrev_b32 v4, 7, v4')
        A.label('FIN_L')
        A('s_mul_i32 s40, s35, 43691')
        A('s_lshr_b32 s40, s40, 19')
        A('s_mul_i32 s36, s40, 12')
        A('s_sub_u32 s36, s35, s36')
        A('s_and_b32 s37, s36, 3')
        A('s_lshr_b32 s36, s36, 2')
        A('s_lshr_b32 s38, s37, 1')
        A('s_and_b32 s39, s37, 1')
        A('s_mul_i32 s33, s36, 6144')
        A('s_lshl_b32 s34, s39, 7')
        A('s_add_u32 s34, s34, s33')
        A('v_add_u32 v8, s34, v0')
        A('s_lshl_b32 s34, s39, 6')
        A('s_add_u32 s34, s34, s33')
        A('v_add_u32 v9, s34, v36')
        A('s_lshl_b32 s34, s38, 2')
        A('s_add_u32 s34, s34, s36')
        A('s_lshl_b32 s34, s34, 11')
        A('s_add_u32 s34, s34, %d' % (F_F2 * 128))
        A('s_lshl_b32 s41, s40, 1')
        A('s_add_u32 s41, s41, s38')
        A('s_mul_i32 s43, s41, 18432')
        A('s_add_u32 s43, s43, 0x%x' % W_HB)
        A('s_add_u32 s46, s43, 4096')
        A('s_mul_i32 s44, s41, %d' % (NPF * 18432))
        A('s_add_u32 s44, s44, 0x%x' % W_PF)
        A('s_add_u32 s48, s40, 1')
        G.spin('v4', 'v5', 's48', 22, WS, 's34', nap=(OPT['zf'], 62))
        G.tsx(0, 's40')
        G.ts()
        VQ = Q(A, 'vmcnt')
        for p in range(3):
            VQ.op((0, p), 'buffer_load_dwordx4 %s, v8, %s, %s offen offset:%d sc1' % (vr(RB + 4 * p, 4), WS, 's43' if p < 2 else 's46', (p & 1) * 2048))
        part_loads(VQ, NPF, 's44')
        A('s_lshl_b32 s41, s40, 2')
        A('s_add_u32 s41, s41, s37')
        A('s_mul_i32 s41, s41, %d' % (8 * 1152))
        A('s_mul_i32 s33, s36, 384')
        A('s_add_u32 s41, s41, s33')
        part_sum(VQ, NPF)
        for p in range(3):
            for i in range(4):
                cvt(RB + 4 * p + i, RA + 8 * p + 2 * i)
            A('buffer_store_dwordx4 %s, v3, s[20:23], s41 offen offset:%d' % (vr(RB + 4 * p, 4), p * 128))
        G.tsx(5, 's40')
        A('s_add_u32 s35, s35, 256')
        A('s_cmp_lt_u32 s35, 768')
        A('s_cbranch_scc1 FIN_L')

    def role_qkv():
        G.srd(12, G.P_WQ, 576 * 8192)
        G.srd(16, G.P_WK, 576 * 8192)
        G.srd(20, G.P_WV, 576 * 8192)
        NS, GR = 18, 3
        A('v_lshrrev_b32 v7, 3, v1')
        A('v_and_b32 v6, 3, v7')
        A('v_lshlrev_b32 v6, 1, v6')
        A('v_and_b32 v5, 7, v1')
        A('v_xor_b32 v6, v6, v5')
        A('v_lshlrev_b32 v8, 13, v7')
        A('v_lshl_add_u32 v8, v6, 4, v8')
        A('s_and_b32 s32, %s, 1' % S_W)
        A('s_and_b32 s33, %s, 2' % S_W)
        A('s_lshl_b32 s34, s36, 2')
        A('s_add_u32 s34, s34, s33')
        A('s_lshl_b32 s34, s34, 6')
        A('s_lshl_b32 s31, s32, 17')
        A('s_add_u32 s34, s34, s31')
        A('v_add_u32 v8, s34, v8')
        A('s_mul_i32 s30, %s, %d' % (S_W, NS * 2048))
        VQ = Q(A, 'vmcnt')

        def dma(n):
            for i in range(2):
                A('s_add_u32 m0, s30, %d' % ((n % NS) * 2048 + i * 1024))
                A('s_mov_b32 s31, %d' % ((32 * (n // 3) + 8 * i) * 8192))
                VQ.op(n, 'buffer_load_dwordx4 v8, %s, s31 offen lds' % sr(12 + 4 * (n % 3), 4))
        for n in range(NS):
            dma(n)
        A('v_lshrrev_b32 v5, 5, v1')
        A('v_add_u32 v5, s33, v5')
        A('v_mul_u32_u24 v10, %d, v5' % (NS * 2048))
        A('v_bfe_u32 v5, v1, 4, 1')
        A('v_bfe_u32 v6, v1, 2, 2')
        A('v_lshl_add_u32 v5, v5, 3, v6')
        A('v_lshl_add_u32 v10, v5, 7, v10')
        A('s_lshl_b32 s32, s32, 1')
        A('v_xor_b32 v6, s32, v6')
        A('v_lshl_add_u32 v10, v6, 5, v10')
        A('v_and_b32 v6, 3, v1')
        A('v_lshl_add_u32 v10, v6, 3, v10')
        A('v_xor_b32 v11, 32, v10')
        for n0 in range(0, 54, GR):
            VQ.wait(n0 + GR - 1)
            A('s_barrier')
            for n in range(n0 - GR + NS, n0 + NS):
                if NS <= n < 54:
                    dma(n)
            if OPT['qe'] and n0 == 18:
                A('v_mov_b32 v12, %d' % (D_READY * 4))
                VQ.op('r', 'buffer_load_dword v12, v12, %s, 0 offen sc1' % G.DBG)
            if OPT['qe'] and n0 == 42:
                VQ.wait('r')
                A('v_lshlrev_b32 v4, 7, v1')
                for i in range(2):
                    A('s_mov_b32 s48, %d' % (F_XN * 128 + i * 8192))
                    VQ.op('f', 'buffer_load_dword v%d, v4, %s, s48 offen sc1' % (13 + i, WS))
            for n in range(n0, n0 + GR):
                for t in range(2):
                    for u in range(2):
                        A('ds_read_b64_tr_b16 %s, v%d offset:%d' % (wreg(2 * n + t, 108, u), 10 + t, (n % NS) * 2048 + u * 512))
            A('s_waitcnt lgkmcnt(0)')
        G.ts()
        if OPT['qe']:
            A('s_waitcnt vmcnt(0)')
            A('v_cmp_gt_u32 s[48:49], %d, v12' % G.N_READY)
            A('v_min_u32 v13, v13, v14')
            A('v_cmp_gt_u32 vcc, 1, v13')
            A('s_or_b64 vcc, vcc, s[48:49]')
            A('s_cbranch_vccz QKV_GO')
        G.wait_ready('v6', 'v7')
        A('v_lshlrev_b32 v4, 7, v1')
        for i in range(2):
            A('s_mov_b32 s48, %d' % (F_XN * 128 + i * 8192))
            G.spin('v4', 'v5', '1', 23, WS, 's48')
        A.label('QKV_GO')
        if OPT['lt']:
            G.ts()
        A('s_mov_b32 %s, s37' % S_U)
        A('s_mul_i32 %s, s37, %d' % (S_DST, SEG_QKV))
        A('s_lshl_b32 s33, s36, 21')
        A('s_add_u32 %s, %s, s33' % (S_DST, S_DST))
        A('s_lshl_b32 s50, %s, 11' % S_W)
        A('s_add_u32 %s, %s, s50' % (S_DST, S_DST))
        A('s_add_u32 %s, %s, 0x%x' % (S_DST, S_DST, W_QKV))
        A('s_add_u32 s50, s50, 8192')
        A('s_mul_i32 %s, s37, %d' % (S_SRC, SEG_XN))
        A('s_mul_i32 s33, %s, 9216' % S_W)
        A('s_add_u32 %s, %s, s33' % (S_SRC, S_SRC))
        A('s_add_u32 %s, %s, 0x%x' % (S_SRC, S_SRC, W_XN))
        A('s_lshl_b32 s35, s36, 1')
        A('s_add_u32 s35, s35, s37')
        A('s_lshl_b32 s35, s35, 2')
        A('s_add_u32 s35, s35, %s' % S_W)
        A('s_lshr_b32 %s, s35, 2' % S_FLG)
        A('s_add_u32 %s, %s, %d' % (S_FLG, S_FLG, F_QKV))
        A('s_lshl_b32 %s, %s, 5' % (S_FLG, S_FLG))
        A('s_add_u32 %s, %s, %s' % (S_FLG, S_FLG, S_W))
        A('s_lshl_b32 %s, %s, 2' % (S_FLG, S_FLG))
        a, b = 8, 32
        A('s_mov_b32 s52, %s' % G.fbits(G.LOG2E / math.sqrt(128.0)))
        A('s_mov_b32 s53, s52')

        def scale(r, n):
            for i in range(r, r + n, 2):
                A('v_pk_mul_f32 %s, %s, s[52:53]' % (vr(i, 2), vr(i, 2)))

        def st(VQ, r, so, off):
            VQ.op('st', 'buffer_store_dwordx4 %s, v0, %s, %s offen offset:%d sc1' % (vr(r, 4), WS, so, off))

        def mid(j, VQ):
            if j == 19:
                return [lambda: [cvt(a + i, a + 2 * i) for i in range(2)], lambda: [cvt(a + i, a + 2 * i) for i in range(2, 4)],
                        lambda: st(VQ, a, S_DST, 0), lambda: A('s_add_u32 s49, %s, s50' % S_DST)]
            if j == 20:
                return [lambda: scale(a + 8, 4), lambda: scale(a + 12, 4)]
            if j == 21:
                return [lambda: [cvt(a + 8 + i, a + 8 + 2 * i) for i in range(2)], lambda: [cvt(a + 8 + i, a + 8 + 2 * i) for i in range(2, 4)],
                        lambda: st(VQ, a + 8, 's49', 0)]
            if j == 22:
                return [lambda: [cvt(a + 16 + i, a + 16 + 2 * i) for i in range(2)], lambda: [cvt(a + 20 + i, a + 20 + 2 * i) for i in range(2)]]
            return []

        def epi(VQ):
            for m, so in ((0, S_DST), (8, 's49')):
                if m:
                    scale(b + m, 8)
                for i in range(4):
                    cvt(b + m + i, b + m + 2 * i)
                st(VQ, b + m, so, 1024)
            for t in range(2):
                for i in range(2):
                    cvt(a + 18 + 4 * t + i, b + 16 + 4 * t + 2 * i)
                st(VQ, a + 16 + 4 * t, 's49', 2048 + 1024 * t)
        gemm('QKV', 18, 6, 2, 9, 9216, 65536, 2, 2 * SEG_XN, 2 * SEG_QKV, [], 7, 6, 4, (4, 5), epi, mid)

    def role_f1():
        A('s_lshl_b32 s30, s36, 1')
        A('s_add_u32 s30, s30, s37')
        pull()
        gate(OPT['g1w'])
        G.srd(12, G.P_WG, 576 * 9216)
        G.srd(16, G.P_WU, 576 * 9216)
        w_lane(9216, 'N', 'N')
        A('s_mul_i32 s33, s36, 384')
        A('s_lshr_b32 s34, %s, 1' % S_W)
        A('s_lshl_b32 s34, s34, 6')
        A('s_add_u32 s34, s34, s33')
        A('v_add_u32 v9, s34, v8')
        A('s_lshl_b32 s34, %s, 6' % S_W)
        A('s_add_u32 s34, s34, s33')
        A('v_add_u32 v8, s34, v8')
        A('s_and_b32 s34, %s, 1' % S_W)
        A('s_lshl_b32 s34, s34, 5')
        A('v_lshlrev_b32 v6, 3, v6')
        A('v_sub_u32 v11, v10, v6')
        A('v_add_u32 v11, s34, v11')
        units = []
        for k in range(18):
            for m in range(2):
                units.append((sr(12 + 4 * m, 4), 'v8', 0, k, [(k * 6 + 3 * m + t, 'v10', 8 * t) for t in range(2)]))
                units.append((sr(12 + 4 * m, 4), 'v9', 256, k, [(k * 6 + 3 * m + 2, 'v11', 0)]))
        load_weights(units, 108, 9216, 'N', OPT['d1'])
        G.ts()
        G.wait_ready('v6', 'v7')
        A('s_mov_b32 %s, 0' % S_U)
        A('s_mul_i32 %s, s37, 144' % S_DST)
        A('s_mul_i32 s34, s36, 6')
        A('s_add_u32 s34, s34, %s' % S_W)
        A('s_add_u32 %s, %s, s34' % (S_DST, S_DST))
        A('s_lshl_b32 s34, %s, 9' % S_W)
        A('s_sub_u32 s34, 4096, s34')
        A('v_and_b32 v6, 15, v1')
        A('v_lshlrev_b32 v6, 4, v6')
        A('v_lshrrev_b32 v5, 5, v1')
        A('v_lshl_add_u32 v6, v5, 8, v6')
        A('v_bfe_u32 v5, v1, 4, 1')
        A('v_lshl_add_u32 v6, v5, 3, v6')
        A('v_add_u32 v6, s34, v6')
        A('s_lshl_b32 s34, s36, 2')
        A('s_add_u32 s34, s34, %s' % S_W)
        A('s_lshl_b32 %s, %s, 10' % (S_DST, S_DST))
        A('s_add_u32 %s, %s, 0x%x' % (S_DST, S_DST, W_ACT))
        A('s_mul_i32 %s, s37, 18432' % S_SRC)
        A('s_mul_i32 s33, %s, 4480' % S_W)
        A('s_add_u32 %s, %s, s33' % (S_SRC, S_SRC))
        A('s_add_u32 %s, %s, 0x%x' % (S_SRC, S_SRC, W_HN))
        A('s_mul_i32 %s, s37, 160' % S_FLG)
        A('s_add_u32 %s, %s, s34' % (S_FLG, S_FLG))
        A('s_add_u32 %s, %s, %d' % (S_FLG, S_FLG, F_F1))
        A('s_lshl_b32 %s, %s, 7' % (S_FLG, S_FLG))
        A('s_lshl_b32 s33, s37, 5')
        A('s_add_u32 s33, s33, %d' % F_LN2)
        A('v_min_u32 v4, 11, v1')
        A('v_add_u32 v4, s33, v4')
        A('v_lshlrev_b32 v4, 7, v4')
        A('s_mov_b32 s50, %s' % G.fbits(-G.LOG2E))

        A('s_mov_b32 s51, s50')
        g, u, t = 8, 20, 64
        sil = [[] for _ in range(24)]
        for i in range(12):
            q = i + 2 + 2 * (i >> 2)
            if not i & 1:
                sil[max(1, q - 2)].append('v_pk_mul_f32 %s, %s, s[50:51]' % (vr(t + i, 2), vr(g + i, 2)))
            sil[q].insert(0, 'v_exp_f32 v%d, v%d' % (t + i, t + i))
            if i & 1:
                sil[q + 1].append('v_pk_add_f32 %s, %s, 1.0 op_sel_hi:[1,0]' % (vr(t + i - 1, 2), vr(t + i - 1, 2)))
        rs = [6, 7, 12, 13, 18, 19, 19, 20, 20, 21, 22, 22]
        for i in range(12):
            sil[rs[i]].insert(0, 'v_rcp_f32 v%d, v%d' % (t + i, t + i))
            if i & 1:
                sil[rs[i] + 1].append('v_pk_mul_f32 %s, %s, %s' % (vr(g + i - 1, 2), vr(g + i - 1, 2), vr(t + i - 1, 2)))

        def epi(VQ, q=None):
            if q is not None:
                for x in sil[q]:
                    A(x)
                return
            for lo, n in ((0, 8), (8, 4)):
                for i in range(lo, lo + n, 2):
                    A('v_pk_mul_f32 %s, %s, %s' % (vr(g + i, 2), vr(g + i, 2), vr(u + i, 2)))
                for i in range(0, n, 2):
                    cvt(t + lo + i // 2, g + lo + i)
                VQ.op('st', 'buffer_store_dwordx%d %s, %s, %s, %s offen sc1' % (n // 2, vr(t + lo, n // 2), 'v6' if lo else 'v0', WS, S_DST))
        gemm('F1', 18, 6, 1, 5, 4480, 32768, 1, SEG_XN, SEG_ACT, [0, 5, 10, 18], OPT['pk'] // 2, 8, 4, (), epi, late=10, skew=8)

    def role_part(name):
        wo = name == 'WO'
        KS, NP = (32, NPW) if wo else (36, NPF)
        gate(OPT['gww' if wo else 'g2w'])
        G.srd(12, G.P_WO if wo else G.P_WD, NP * KS * 32 * 1152)
        krow = 'D' if wo else 'N'
        w_lane(1152, krow, 'N')
        A('s_mul_i32 s33, s36, %d' % (KS * 32 * 1152))
        A('s_mul_i32 s34, s38, 384')
        A('s_add_u32 s33, s33, s34')
        A('s_lshr_b32 s34, %s, 1' % S_W)
        A('s_lshl_b32 s34, s34, 6')
        A('s_add_u32 s34, s34, s33')
        A('v_add_u32 v9, s34, v8')
        A('s_lshl_b32 s34, %s, 6' % S_W)
        A('s_add_u32 s34, s34, s33')
        A('v_add_u32 v8, s34, v8')
        A('s_and_b32 s34, %s, 1' % S_W)
        A('s_lshl_b32 s34, s34, 3')
        A('v_add_u32 v11, s34, v10')
        units = []
        for k in range(KS):
            units.append(('s[12:15]', 'v8', 0, k, [(k * 3 + t, 'v10', 8 * t) for t in range(2)]))
            units.append(('s[12:15]', 'v9', 256, k, [(k * 3 + 2, 'v11', 0)]))
        load_weights(units, KS * 3, 1152, krow, OPT['dw' if wo else 'd2'])
        G.ts()
        G.wait_ready('v6', 'v7')
        A('s_mov_b32 %s, 0' % S_U)
        A('s_mul_i32 s33, s37, %d' % NP)
        A('s_add_u32 s33, s33, s36')
        A('s_mul_i32 %s, s33, 18432' % S_DST)
        A('s_mul_i32 s34, s38, 6144')
        A('s_add_u32 %s, %s, s34' % (S_DST, S_DST))
        A('s_lshl_b32 s34, %s, 10' % S_W)
        A('s_add_u32 %s, %s, s34' % (S_DST, S_DST))
        A('s_add_u32 %s, %s, 0x%x' % (S_DST, S_DST, W_PW if wo else W_PF))
        A('s_lshl_b32 s34, %s, 9' % S_W)
        A('s_sub_u32 s34, 4096, s34')
        A('v_lshlrev_b32 v6, 3, v1')
        A('v_add_u32 v6, s34, v6')
        A('s_lshl_b32 s33, s33, 2')
        A('s_add_u32 s33, s33, %s' % S_W)
        A('s_mul_i32 %s, s33, %d' % (S_SRC, KS * 256))
        A('s_add_u32 %s, %s, 0x%x' % (S_SRC, S_SRC, W_O if wo else W_ACT))
        A('s_lshl_b32 s33, s36, 2')
        A('s_add_u32 s33, s33, %s' % S_W)
        A('s_lshl_b32 s34, s37, 2')
        A('s_add_u32 s34, s34, s38')
        A('s_lshl_b32 s34, s34, 4')
        A('s_add_u32 %s, s34, s33' % S_FLG)
        A('s_add_u32 %s, %s, %d' % (S_FLG, S_FLG, F_WO if wo else F_F2))
        A('s_lshl_b32 %s, %s, 7' % (S_FLG, S_FLG))
        if wo:
            A('s_lshl_b32 s33, s33, 3')
            A('s_add_u32 s33, s33, %d' % F_ATT)
            A('v_min_u32 v4, 7, v1')
        else:
            A('s_mul_i32 s33, s33, 6')
            A('s_and_b32 s33, s33, -4')
            A('s_mul_i32 s34, s37, 160')
            A('s_add_u32 s33, s33, s34')
            A('s_add_u32 s33, s33, %d' % F_F1)
            A('v_min_u32 v4, 7, v1')
        A('v_add_u32 v4, s33, v4')
        A('v_lshlrev_b32 v4, 7, v4')

        def epi(VQ):
            for i in range(4):
                cvt(60 + i, 8 + 2 * i)
            VQ.op('st', 'buffer_store_dwordx4 v[60:63], v0, %s, %s offen sc1' % (WS, S_DST))
            for i in range(2):
                cvt(64 + i, 16 + 2 * i)
            VQ.op('st', 'buffer_store_dwordx2 v[64:65], v6, %s, %s offen sc1' % (WS, S_DST))
        if wo:
            gemm(name, 32, 3, 1, 8, 8192, 32768, 1, SEG_O, SEG_PW, [0, 8, 16, 24], OPT['pk'], 8, 6, (), epi, late=16)
        else:
            gemm(name, 36, 3, 1, 9, 9216, 65536, 1, SEG_ACT, SEG_PF, [0, 9, 18, 27], OPT['pk'], 8, 6, (), epi, late=18)

    def role_am():
        SMF = 'v_smfmac_f32_16x16x64_bf16'
        IDX, SEL, MX, LX, AX, AQ = 6, 10, 12, 13, 13, 17
        QF, KF, VF, MF, SX, PB, O, KA, VA, KM, SM, PM, VP, OM = 24, 40, 72, 88, 124, 132, 136, 152, 160, 168, 184, 188, 192, 196
        L_QK, L_M, L_KM, L_VM = 0, 16384, 24576, 28672

        def FR(n, sub=None):
            k, b = ('a', 8 * n) if n < 32 else ('v', 224 + 8 * (n - 32))
            return vr(b, 8, k) if sub is None else vr(b + 2 * sub, 2, k)
        G.srd(16, G.P_WK, 576 * 8192)
        G.srd(20, G.P_WV, 576 * 8192)
        A('v_lshlrev_b32 v0, 4, v1')
        A('s_lshl_b32 s36, s35, 2')
        A('s_add_u32 s36, s36, %s' % S_W)
        A('s_mul_i32 s30, %s, 36864' % S_W)
        A('v_lshrrev_b32 v7, 2, v1')
        A('v_and_b32 v5, 3, v1')
        A('v_lshlrev_b32 v8, 13, v7')
        A('v_lshl_add_u32 v8, v5, 4, v8')
        A('s_lshl_b32 s33, s36, 6')
        A('v_add_u32 v8, s33, v8')
        VQ = Q(A, 'vmcnt')

        def dma(n):
            for i in range(4):
                A('s_add_u32 m0, s30, %d' % ((n % 9) * 4096 + i * 1024))
                if i:
                    A('s_add_u32 s31, s31, %d' % (16 * 8192))
                elif n % 9 < 8:
                    A('s_xor_b32 s31, %s, %d' % (S_W, n % 9))
                    A('s_lshl_b32 s31, s31, 19')
                else:
                    A('s_mov_b32 s31, %d' % (8 << 19))
                VQ.op(n, 'buffer_load_dwordx4 v8, %s, s31 offen lds' % ('s[16:19]', 's[20:23]')[n // 9])
        A('s_mov_b32 s51, 0x%x' % SENT)
        for i in range(4):
            A('v_mov_b32 v%d, s51' % (16 + i))
        A('s_mul_i32 s33, s36, 4608')
        A('s_add_u32 s33, s33, 0x%x' % W_ME)
        for o in (0, 1024, 2048, 3072, 3584):
            VQ.op('z', 'buffer_store_dwordx4 v[16:19], v0, %s, s33 offen offset:%d sc1' % (WS, o))
        for n in range(OPT['da']):
            dma(n)
        A('v_lshrrev_b32 v3, 5, v1')
        A('v_bfe_u32 v4, v1, 4, 1')
        A('v_lshl_add_u32 v9, v3, 3, v4')
        A('v_and_b32 v7, 3, v7')
        A('v_lshl_add_u32 v9, v7, 1, v9')
        A('v_lshlrev_b32 v9, 7, v9')
        A('v_lshl_add_u32 v9, v5, 3, v9')
        A('v_add_u32 v9, s30, v9')
        VQ.wait('z')
        A('s_barrier')
        A('s_cmp_lg_u32 %s, 0' % S_W)
        A('s_cbranch_scc1 AM_NA')
        A('v_mov_b32 v3, 1')
        A('v_mov_b32 v7, %d' % (D_CBAR * 4))
        A('s_mov_b64 exec, 1')
        A('buffer_atomic_add v3, v7, %s, 0 offen sc1' % G.DBG)
        A('s_mov_b64 exec, -1')
        A.label('AM_NA')
        for n in range(18):
            VQ.wait(n)
            for t in range(2):
                for z in range(2):
                    for u in range(2):
                        A('ds_read_b64_tr_b16 %s, v9 offset:%d' % (FR(2 * n + t, 2 * z + u), (n % 9) * 4096 + z * 2048 + u * 64 + t * 32))
            if n + OPT['da'] < 18:
                A('s_waitcnt lgkmcnt(0)')
                dma(n + OPT['da'])
        A('v_and_b32 v7, 8, v1')
        A('v_mov_b32 v%d, 0x4444' % IDX)
        A('v_mov_b32 v3, 0xeeee')
        A('v_cmp_ne_u32 vcc, 0, v7')
        A('v_cndmask_b32 v%d, v%d, v3, vcc' % (IDX, IDX))
        A('v_and_b32 v7, 7, v1')
        A('v_lshlrev_b32 v4, 2, v4')
        A('v_sub_u32 v7, v7, v4')
        A('v_mov_b32 v5, 0x3f80')
        A('v_mov_b32 v4, 0x3f800000')
        for i in range(2):
            A('v_mov_b32 v%d, 0' % (SEL + i))
            A('v_cmp_eq_u32 vcc, %d, v7' % (2 * i))
            A('v_cndmask_b32 v%d, v%d, v5, vcc' % (SEL + i, SEL + i))
            A('v_cmp_eq_u32 vcc, %d, v7' % (2 * i + 1))
            A('v_cndmask_b32 v%d, v%d, v4, vcc' % (SEL + i, SEL + i))
        A('v_and_b32 v7, 15, v1')
        A('v_lshrrev_b32 v5, 4, v1')
        A('v_lshlrev_b32 v5, 2, v5')
        A('v_sub_u32 v7, v7, v5')
        for r in range(4):
            A('v_cmp_le_i32 s[%d:%d], %d, v7' % (52 + 2 * r, 53 + 2 * r, r))
        A('v_mov_b32 v3, %s' % G.fbits(-1e9 * G.LOG2E))
        A('v_mov_b32 v%d, 0' % (PB + 2))
        A('v_mov_b32 v%d, 0' % (PB + 3))
        A('s_mov_b32 s50, %s' % G.fbits(G.LOG2E / math.sqrt(128.0)))
        A('s_add_u32 s45, s36, %d' % F_ATT)
        A('s_lshl_b32 s45, s45, 7')
        A('s_lshl_b32 s41, s35, 21')
        A('s_lshl_b32 s33, %s, 11' % S_W)
        A('s_add_u32 s41, s41, s33')
        A('s_add_u32 s41, s41, 0x%x' % W_QKV)
        A('s_add_u32 s46, s33, 8192')
        A('s_lshl_b32 s42, s36, 10')
        A('s_and_b32 s37, %s, 1' % S_W)
        A('s_lshl_b32 s33, s37, 17')
        A('s_add_u32 s42, s42, s33')
        A('s_add_u32 s42, s42, 0x%x' % W_O)
        A('s_lshl_b32 s43, %s, 10' % S_W)
        A('v_add_u32 v8, s43, v0')
        A('v_add_u32 v%d, s43, v8' % AQ)
        for j in range(1, 4):
            A('v_xor_b32 v%d, %d, v8' % (AX + j, 1024 * j))
            A('v_xor_b32 v%d, %d, v%d' % (AQ + j, 2048 * j, AQ))
        A('s_mov_b32 s43, 0x%x' % W_ME)
        A('s_and_b32 s44, s35, 8')
        A('s_mul_i32 s44, s44, 3')
        A('s_add_u32 s44, s44, s35')
        A('s_and_b32 s44, s44, 0x27')
        A('s_lshl_b32 s33, %s, 3' % S_W)
        A('s_add_u32 s44, s44, s33')
        A('s_lshl_b32 s44, s44, 7')
        A('s_mov_b32 s40, 0')
        A('s_waitcnt lgkmcnt(0)')
        A('v_and_b32 v9, 0x300, v0')
        A('v_and_b32 v4, 7, v1')
        A('v_lshl_add_u32 v9, v4, 5, v9')
        A('v_and_b32 v4, 8, v1')
        A('v_lshl_add_u32 v9, v4, 1, v9')
        G.ts()
        G.wait_ready('v4', 'v5')
        A('v_mov_b32 v4, %d' % (D_CBAR * 4))
        G.spin('v4', 'v5', '64', 25, G.DBG, op='ushort')
        A('v_and_b32 v4, 0x23, v1')
        A('v_lshlrev_b32 v4, 2, v4')
        A('s_lshl_b32 s33, s35, 8')
        A('s_add_u32 s33, s33, %d' % (F_QKV * 128))
        G.spin('v4', 'v5', '2', 24, WS, 's33')
        A('v_mov_b32 v4, s44')
        A('s_barrier')

        def loads():
            o = ['s_add_u32 s47, s41, s46', 's_lshl_b32 m0, %s, 11' % S_W]
            o += ['buffer_load_dwordx4 v0, %s, s41 offen offset:%d sc1 lds' % (WS, T * 1024) for T in range(2)]
            o += ['s_add_u32 m0, m0, 8192', 's_xor_b32 s48, s47, 4096']
            o += ['buffer_load_dwordx4 v0, %s, s47 offen offset:%d sc1 lds' % (WS, T * 1024) for T in range(2)]
            o += ['buffer_load_dwordx4 %s, v0, %s, s%d offen offset:%d sc1' % (vr(VF + 4 * i, 4), WS, 47 + (i >> 1), 2048 + (i & 1) * 1024) for i in range(4)]
            return o + ['s_add_u32 s41, s41, %d' % SEG_QKV]

        def xred(r, t, op, sw):
            return ['v_mov_b32 v%d, v%d' % (t, r), 'v_permlane%d_swap_b32 v%d, v%d' % (sw, r, t), '%s v%d, v%d, v%d' % (op, r, r, t)]

        def emit(l):
            for x in l:
                A(x)

        def poll():
            A('v_mov_b32 v5, 0')
            A('s_mov_b64 exec, 1')
            A('buffer_atomic_or v5, v4, %s, s43 offen sc0 sc1' % WS)
            A('s_mov_b64 exec, -1')
        SP = 212

        def mloads():
            return ['s_lshl_b32 s47, %s, 10' % S_W, 's_add_u32 s47, s47, s43', 's_add_u32 s48, s47, 4096',
                    'buffer_load_dwordx4 %s, v9, %s, s47 offen sc1' % (vr(SP, 4), WS), 's_add_u32 s47, s43, 8192',
                    'buffer_load_dwordx4 %s, v9, %s, s48 offen sc1' % (vr(SP + 4, 4), WS),
                    'buffer_load_dwordx4 %s, v9, %s, s47 offen sc1' % (vr(SP + 8, 4), WS)]

        def bound():
            A('s_add_u32 s27, s27, 1')
            A('s_cmp_ge_u32 s27, %d' % G.SPIN_MAX)
            A('s_cbranch_scc1 FAIL')

        def step(T):
            P = 'AM%d_' % T
            A.label(P + 'L')
            A('s_barrier')
            LQ = Q(A, 'lgkmcnt')
            for j in range(4):
                LQ.op(j, 'ds_read_b128 %s, v%d offset:%d' % (vr(QF + 4 * j, 4), AQ + j, L_QK + 1024 * T))
                for tk in range(T + 1):
                    LQ.op(j, 'ds_read_b128 %s, v%d offset:%d' % (vr(KF + 8 * j + 4 * tk, 4), AQ + j, L_QK + 8192 + 1024 * tk))
            for r in range(KA, KA + 16, 2):
                A('v_mov_b64 %s, 0' % vr(r, 2))
            for j in range(4):
                LQ.wait(j)
                for tk in range(T + 1):
                    d = vr(SX + 4 * tk, 4)
                    A('%s %s, %s, %s, %s' % (M32, d, vr(KF + 8 * j + 4 * tk, 4), vr(QF + 4 * j, 4), '0' if j == 0 else d))
            D = SX + 4 * T
            if T:
                A('v_max3_f32 v%d, v%d, v%d, v%d' % (MX, SX, SX + 1, SX + 2))
            for r in range(4):
                A('v_cndmask_b32 v%d, v3, v%d, s[%d:%d]' % (D + r, D + r, 52 + 2 * r, 53 + 2 * r))
            if T:
                A('v_max3_f32 v%d, v%d, v%d, v%d' % (MX, MX, SX + 3, D))
            A('v_max3_f32 v%d, v%d, v%d, v%d' % (MX, MX if T else D, D + 1, D + 2))
            A('v_max_f32 v%d, v%d, v%d' % (MX, MX, D + 3))
            emit(xred(MX, LX, 'v_max_f32', 16) + xred(MX, LX, 'v_max_f32', 32))
            for r in range(SX, D + 4):
                A('v_sub_f32 v%d, v%d, v%d' % (r, r, MX))
            for r in range(SX, D + 4):
                A('v_exp_f32 v%d, v%d' % (r, r))
            for i in range(2 * T + 2):
                cvt(PB + i, SX + 2 * i)
            sm = ['v_pk_add_f32 %s, %s, %s' % (vr(SX, 2), vr(SX, 2), vr(SX + 2 * i, 2)) for i in range(1, 2 * T + 2)]
            sm += ['v_add_f32 v%d, v%d, v%d' % (LX, SX, SX + 1)] + xred(LX, SX, 'v_add_f32', 16) + xred(LX, SX, 'v_add_f32', 32)
            A('s_waitcnt vmcnt(5)')
            for i in range(4):
                A('%s %s, %s, %s, 0' % (M32, vr(O + 4 * i, 4), vr(VF + 4 * i, 4), vr(PB, 4)))
                emit(sm[2 * i:2 * i + 2])
            emit(sm[8:])
            A('s_mov_b32 s27, 0')
            A('s_waitcnt vmcnt(0)')
            publish('s45', 's40')
            A('s_branch %sC' % P)
            A.label(P + 'X')
            for i in range(12):
                A('v_cmp_eq_u32 %s, s51, v%d' % ('s[38:39]' if i else 'vcc', SP + i))
                if i:
                    A('s_or_b64 vcc, vcc, s[38:39]')
            A('s_cbranch_vccz %sK' % P)
            A('s_cmp_ge_u32 s40, %d' % OPT['amd'])
            A('s_cbranch_scc1 %sM' % P)
            A.label(P + 'R')
            poll()
            bound()
            A('s_waitcnt vmcnt(0)')
            A('v_readfirstlane_b32 s49, v5')
            A('s_cmp_eq_u32 s49, s51')
            A('s_cbranch_scc1 %sR' % P)
            A.label(P + 'M')
            emit(mloads())
            bound()
            A('s_waitcnt vmcnt(0)')
            A.label(P + 'C')
            a, b, c = SP, SP + 4, SP + 8
            mx = 'v_maximum3_f32 v%d, v%%d, v%%d, v%%d' % SM
            A('ds_write_b128 v8, %s offset:%d' % (vr(a, 4), L_M))
            A(mx % (a, a + 1, a + 2))
            A('ds_write_b128 v8, %s offset:%d' % (vr(b, 4), L_M + 4096))
            A(mx % (SM, a + 3, b))
            A(mx % (SM, b + 1, b + 2))
            A(mx % (SM, b + 3, c))
            A(mx % (SM, c + 1, c + 2))
            A('v_cmp_u_f32 vcc, v%d, v%d' % (SM, c + 3))
            A('s_cbranch_vccnz %sX' % P)
            A.label(P + 'K')
            G.tsx(1, 's40')
            G.ts()
            LQ = Q(A, 'lgkmcnt')
            F = {}

            def L(tag, text):
                return lambda: LQ.op(tag, text)
            oth = [(1, 0), (1, 4), (2, 0), (2, 4), (3, 0), (3, 4)]
            rd = [L(j + u, 'ds_read_b128 %s, v%d offset:%d' % (vr(MF + 4 * (j + u), 4), AX + j, L_M + 1024 * u)) for j, u in oth]
            ks = [(0, f, t) for f in (8, 0, 4, 1, 5, 2, 6) for t in range(2)] + [(0, f, t) for t in range(2) for f in (3, 7)]
            vs = [(1, f, t) for f in (8, 0, 4, 1, 5, 2, 6) for t in range(2)] + [(1, f, t) for t in range(2) for f in (3, 7)]
            seq = ks[:6] + vs[:2] + ks[6:] + vs[2:4] + ['T0'] + vs[4:5] + ['T1'] + vs[5:8] + ['S0'] + vs[8:16] + ['S1', 'S2'] + vs[16:17] + ['S3'] + vs[17:]
            F[0] = ['s_waitcnt lgkmcnt(0)', 's_barrier'] + rd[:1]
            F[1], F[2] = rd[1:4], rd[4:] + ['s_add_u32 s40, s40, 1']
            ld = loads() + ['s_add_u32 s43, s43, %d' % SEG_ME] + mloads()
            k = 3
            for x in ld:
                F.setdefault(k - (x[0] == 's'), []).append(x)
                k += OPT['sp'] * (x[0] == 'b')
            for i in range(4):
                F.setdefault(1 + i, []).append('v_mov_b64 %s, %s' % (vr(MF + 16 * (i >> 1) + 2 * (i & 1), 2), vr(SP + 2 * i, 2)))
            ck = [lambda r=KA + 4 * t + i, q=KA + 4 * t + 2 * i: cvt(r, q) for t in range(2) for i in range(2)]
            cm = [lambda i=i: cvt(KM + i, KM + 2 * i) for i in range(4)]
            for k, x in ((20, ck[:1]), (21, ck[1:2]), (22, ck[2:]), (25, cm[:2]), (26, cm[2:]),
                         (27, [L('kw', 'ds_write_b128 v8, %s offset:%d' % (vr(KM, 4), L_KM))]), (32, [lambda: LQ.wait('kw'), 's_barrier']),
                         (33, [L('k%d' % j, 'ds_read_b128 %s, v%d offset:%d' % (vr(KM + 4 * j, 4), AX + j, L_KM)) for j in range(1, 4)]),
                         (39, [lambda: cvt(VA, VA)]), (40, [lambda: cvt(VA + 1, VA + 2)])):
                F[k] = x + F.get(k, [])
            for i, x in enumerate(seq):
                if x[0] == 'T':
                    t = int(x[1])
                    A('%s %s, %s, %s, 0' % (M16, vr(KM + 4 * t, 4), vr(KA + 4 * t, 2), vr(SEL, 2)))
                elif x[0] == 'S':
                    j = int(x[1])
                    LQ.wait('k%d' % j)
                    A('%s %s, %s, %s, %s' % (M32, vr(SM, 4), vr(KM + 4 * j, 4), vr(QF + 4 * j, 4), vr(SM, 4) if j else '0'))
                else:
                    kind, f, t = x
                    LQ.wait(f)
                    A('%s %s, %s, %s, v%d' % (SMF, vr((KA, VA)[kind] + 4 * t, 4), vr(SP + f if i < 8 else MF + 4 * f, 4), FR(18 * kind + 2 * f + t), IDX))
                for y in F.pop(i, []):
                    y() if callable(y) else A(y)
            assert not F
            s, m, a = SM, SX, SX + 2
            emit(['v_max3_f32 v%d, v%d, v%d, v%d' % (m, s, s + 1, s + 2), 'v_max_f32 v%d, v%d, v%d' % (m, m, s + 3)])
            x = xred(m, a, 'v_max_f32', 16)
            A(x[0])
            cvt(VA + 2, VA + 4)
            cvt(VA + 3, VA + 6)
            A('ds_write_b128 v8, %s offset:%d' % (vr(VA, 4), L_VM))
            emit(x[1:])
            emit(['v_mul_f32 v%d, s50, v%d' % (m, m), 'v_max_f32 v%d, v%d, v%d' % (m, m, MX)])
            emit(['v_fma_f32 v%d, v%d, s50, -v%d' % (r, r, m) for r in range(s, s + 4)])
            A('v_sub_f32 v%d, v%d, v%d' % (a, MX, m))
            emit(['v_exp_f32 v%d, v%d' % (r, r) for r in range(s, s + 4)])
            A('s_waitcnt lgkmcnt(0)')
            A('s_barrier')
            A('ds_read_b128 %s, v%d offset:%d' % (vr(VP, 4), AX + 1, L_VM))
            A('v_exp_f32 v%d, v%d' % (a, a))
            cvt(PM, s)
            cvt(PM + 1, s + 2)

            def pv(i):
                A('%s %s, %s, %s, 0' % (M16, vr(OM + 4 * i, 4), vr((VA, VP)[i >> 1] + 2 * (i & 1), 2), vr(PM, 2)))
            A('v_pk_add_f32 %s, %s, %s' % (vr(s, 2), vr(s, 2), vr(s + 2, 2)))
            A('v_add_f32 v%d, v%d, v%d' % (m, s, s + 1))
            pv(0)
            x = xred(m, a + 1, 'v_add_f32', 16)
            A(x[0])
            pv(1)
            emit(x[1:])
            emit(['v_fmac_f32 v%d, v%d, v%d' % (m, a, LX), 'v_rcp_f32 v%d, v%d' % (m, m)])
            A('s_waitcnt lgkmcnt(0)')
            pv(2)
            A('v_mul_f32 v%d, v%d, v%d' % (a, a, m))
            pv(3)
            A('s_xor_b32 s47, s42, 1024')
            for j in range(2):
                rs = range(8 * j, 8 * j + 8, 2)
                emit(['v_pk_mul_f32 %s, %s, %s op_sel_hi:[1,0]' % (vr(O + r, 2), vr(O + r, 2), vr(a, 2)) for r in rs])
                emit(['v_pk_fma_f32 %s, %s, %s, %s op_sel_hi:[1,0,1]' % (vr(O + r, 2), vr(OM + r, 2), vr(m, 2), vr(O + r, 2)) for r in rs])
                for i in range(4):
                    cvt(KM + 4 * j + i, O + 8 * j + 2 * i)
                A('buffer_store_dwordx4 %s, v0, %s, %s offen sc1' % (vr(KM + 4 * j, 4), WS, ('s42', 's47')[j]))
            G.tsx(2, 's40', 1)
            A('s_add_u32 s42, s42, %d' % SEG_O)
            A('s_waitcnt vmcnt(9)')
            A('s_cmp_lt_u32 s40, 64')
            A('s_cbranch_scc1 %sL' % P)
        emit(loads() + mloads())
        A('s_waitcnt vmcnt(0)')
        A('s_cmp_eq_u32 s37, 0')
        A('s_cbranch_scc1 AM0_L')
        step(1)
        A('s_branch AM_E')
        step(0)
        A.label('AM_E')
        A('s_waitcnt vmcnt(0)')
        publish('s45', 's40')

    A('s_cmp_eq_u32 %s, 1' % S_X)
    A('s_cbranch_scc1 R_LN')
    A('s_sub_u32 s32, %s, 2' % S_X)
    A('s_cmp_lt_u32 %s, 6' % S_T)
    A('s_cbranch_scc1 R_TRIP')
    A('s_and_b32 s37, %s, 1' % S_T)
    A('s_lshr_b32 s33, %s, 1' % S_T)
    A('s_mul_i32 s34, s32, 5')
    A('s_add_u32 s36, s34, s33')
    A('s_sub_u32 s36, s36, 3')
    A('s_cmp_lt_u32 %s, 16' % S_T)
    A('s_cbranch_scc1 R_QKV')
    A('s_lshl_b32 s36, s32, 2')
    A('s_add_u32 s36, s36, s33')
    A('s_sub_u32 s36, s36, 8')
    A('s_cmp_lt_u32 %s, 24' % S_T)
    A('s_cbranch_scc1 R_F1')
    A('s_add_u32 s35, s34, %s' % S_T)
    A('s_sub_u32 s35, s35, 24')
    A('s_cmp_lt_u32 %s, 29' % S_T)
    A('s_cbranch_scc1 R_AM')
    A('s_cmp_lt_u32 s32, 4')
    A('s_cbranch_scc1 R_TRIP1')
    A('s_add_u32 s35, s32, 26')
    A('s_mov_b32 s36, s35')
    A('s_cmp_eq_u32 %s, 31' % S_T)
    A('s_cbranch_scc1 R_AM')
    A('s_branch R_QKV')
    A.label('R_F1')
    role_f1()
    G.finish()
    A.label('R_TRIP1')
    A('s_sub_u32 s38, %s, 29' % S_T)
    A('s_and_b32 s33, s32, 1')
    A('s_lshr_b32 s32, s32, 1')
    A('s_add_u32 s32, s32, 6')
    A('s_branch R_TRIP2')
    A.label('R_TRIP')
    A('s_cmp_ge_u32 %s, 3' % S_T)
    A('s_cselect_b32 s33, 1, 0')
    A('s_cselect_b32 s38, 3, 0')
    A('s_sub_u32 s38, %s, s38' % S_T)
    A.label('R_TRIP2')
    A('s_and_b32 s34, s32, 6')
    A('s_add_u32 s34, s34, s33')
    A('s_lshl_b32 s34, s34, 1')
    A('s_and_b32 s32, s32, 1')
    A('s_add_u32 s34, s34, s32')
    A('s_mul_i32 s30, s34, 3')
    A('s_add_u32 s30, s30, s38')
    A('s_add_u32 s30, s30, 48')
    pull()
    if OPT['pre']:
        A('s_cmp_eq_u32 s38, 1')
        A('s_cselect_b32 s12, s%d, s%d' % (G.P_WK, G.P_WQ))
        A('s_cselect_b32 s13, s%d, s%d' % (G.P_WK + 1, G.P_WQ + 1))
        A('s_cmp_eq_u32 s38, 2')
        A('s_cselect_b32 s12, s%d, s12' % G.P_WV)
        A('s_cselect_b32 s13, s%d, s13' % (G.P_WV + 1))
        A('s_mov_b32 s14, %d' % (576 * 8192))
        A('s_mov_b32 s15, 0x20000')
        A('v_lshrrev_b32 v5, 4, v1')
        A('v_and_b32 v6, 15, v1')
        A('v_lshlrev_b32 v6, 4, v6')
        A('v_lshl_add_u32 v7, v5, 10, v6')
        A('v_lshl_add_u32 v6, v5, 13, v6')
        A('s_lshl_b32 s30, s34, 2')
        A('s_add_u32 s30, s30, %s' % S_W)
        A('s_mul_i32 s30, s30, %d' % (9 * 8192))
        A('s_add_u32 s31, s30, 4096')
        for i in range(18):
            A('buffer_load_dwordx4 %s, v7, s[12:15], s30 offen offset:256' % vr(12 + 4 * i, 4))
            A('s_add_u32 s30, s30, 4096')
        for i in range(3):
            A('buffer_load_dwordx4 %s, v6, s[12:15], s31 offen offset:3840' % vr(84 + 4 * i, 4))
            A('s_add_u32 s31, s31, %d' % (3 * 8192))
        A('s_waitcnt vmcnt(0)')
    A('s_bfe_u32 s37, s34, 0x10001')
    A('s_lshr_b32 s36, s34, 2')
    A('s_bitcmp1_b32 s34, 0')
    A('s_cbranch_scc1 R_WO')
    role_part('F2')
    G.finish()
    A.label('R_WO')
    role_part('WO')
    G.finish()
    A.label('R_QKV')
    role_qkv()
    role_fin()
    G.finish()
    A.label('R_LN')
    A('s_mov_b32 s35, %s' % S_T)
    ln1()
    A('s_sub_u32 s35, %s, 24' % S_T)
    A('s_cbranch_scc0 R_LN2')
    G.finish()
    A.label('R_LN2')
    role_ln2()
    G.finish()
    A.label('R_AM')
    role_am()
    G.finish()
```

```python
import math
from asmlib import *
from layout import *
from chain import Q

M16 = 'v_mfma_f32_16x16x16_bf16'
M32 = 'v_mfma_f32_16x16x32_bf16'


def roles(G):
    A, WS, OPT = G.A, G.WS, G.OPT
    S_W, S_X, S_T = G.S_W, G.S_X, G.S_T

    def cvt(d, s, s2=None):
        A('v_cvt_pk_bf16_f32 v%d, v%d, v%d' % (d, s, s + 1 if s2 is None else s2))

    def publish(soff, sval, q=None, d=1):
        G.tsx(3, sval, d)
        A('v_mov_b32 v7, %s' % sval)
        A('s_mov_b64 exec, 1')
        t = 'buffer_store_dword v7, off, %s, %s sc1' % (WS, soff)
        if q is None:
            A(t)
        else:
            q.op('pub', t)
        A('s_mov_b64 exec, -1')

    def wreg(f, nf, sub=None):
        k, b = ('a', 4 * f) if f < 64 else ('v', 256 - 4 * (nf - f))
        return vr(b, 4, k) if sub is None else vr(b + 2 * sub, 2, k)

    def load_weights(units, nf, stride, krow, NS=20):
        VQ = Q(A, 'vmcnt')
        A('s_mul_i32 s30, %s, %d' % (S_W, 20 * 2048))

        def dma(n):
            sd, vo, col, k, _ = units[n]
            for i in range(2):
                A('s_add_u32 m0, s30, %d' % ((n % NS) * 2048 + i * 1024))
                A('s_mov_b32 s31, %d' % ((32 * k + 16 * i) * stride + col))
                VQ.op(n, 'buffer_load_dwordx4 %s, %s, s31 offen lds' % (vo, sd))
        for n in range(min(NS, len(units))):
            dma(n)
        GR = 3 if NS > 5 else 1
        usep = 256 if krow == 'N' else 1024
        for n0 in range(0, len(units), GR):
            ns = list(range(n0, min(n0 + GR, len(units))))
            VQ.wait(ns[-1])
            for n in ns:
                for f, va, off in units[n][4]:
                    for u in range(2):
                        A('ds_read_b64_tr_b16 %s, %s offset:%d' % (wreg(f, nf, u), va, (n % NS) * 2048 + u * usep + off))
            A('s_waitcnt lgkmcnt(0)')
            for n in ns:
                if n + NS < len(units):
                    dma(n + NS)

    def w_lane(stride, krow, ccol):
        A('v_lshrrev_b32 v7, 2, v1')
        A('v_mul_u32_u24 v8, %d, v7' % stride)
        A('v_and_b32 v6, 3, v1')
        A('v_lshl_add_u32 v8, v6, 4, v8')
        A('v_lshrrev_b32 v5, 4, v1')
        A('v_and_b32 v7, 3, v7')
        A('v_lshl_add_u32 v7, v5, %d, v7' % (3 if krow == 'N' else 2))
        A('v_lshlrev_b32 v10, 6, v7')
        A('v_lshl_add_u32 v10, v6, %d, v10' % (4 if ccol == 'N' else 3))
        A('s_mul_i32 s30, %s, %d' % (S_W, 20 * 2048))
        A('v_add_u32 v10, s30, v10')

    def pull():
        if not OPT['pu']:
            return
        A('s_lshl_b32 s30, s30, 2')
        A('s_add_u32 s30, s30, %s' % S_W)
        A('s_lshl_b32 s30, s30, 13')
        A('s_add_u32 s31, s30, %d' % (384 << 13))
        A('v_lshlrev_b32 v5, 7, v1')
        A('v_add_u32 v6, s31, v5')
        A('v_add_u32 v5, s30, v5')
        for i, P in enumerate((G.P_WQ, G.P_WK, G.P_WV, G.P_WO, G.P_WG, G.P_WU, G.P_WD)[:4 if OPT['pu'] == 1 else 7]):
            G.srd(12, P, 576 * (8192 if i < 4 else 9216))
            if i == 4 and OPT['pu'] == 2:
                A('s_waitcnt vmcnt(0)')
            for j in range(2):
                A('buffer_load_dword v%d, v%d, s[12:15], 0 offen' % (12 + 2 * i + j, 5 + j))
        A('s_waitcnt vmcnt(0)')

    def gate(k):
        if k:
            G.wait_ready('v6', 'v7')
            A('v_mov_b32 v6, %d' % (128 * (F_XN + 127, F_QKV)[k - 1]))
            G.spin('v6', 'v7', str(k), 26, nap=(8,))

    S_U, S_DST, S_SRC, S_LDS, S_NEED, S_FLG, S_PUB = ['s%d' % i for i in range(40, 47)]

    def second(dsrc, ddst):
        A('s_add_u32 s57, s56, 63')
        h0 = OPT['h0']
        A('s_mul_i32 %s, s56, %d' % (S_U, h0))
        A('s_mul_i32 s58, s56, %d' % (62 - h0))
        A('s_add_u32 s58, s58, 1')
        A('s_mul_i32 s59, s58, %d' % dsrc)
        A('s_mul_i32 s52, s58, %d' % ddst)
        for r, d in ((S_SRC, h0 * dsrc), (S_DST, h0 * ddst), (S_FLG, 65536)):
            A('s_mul_i32 s33, s56, %d' % d)
            A('s_add_u32 %s, %s, s33' % (r, r))

    def doze():
        A('s_mul_i32 s48, s56, %d' % OPT['h0'])
        G.spin('v4', 'v5', 's48', 27, nap=(16,))

    def gemm(name, KS, NT, TS, ND, WPART, BUF, STEP, dsrc, ddst, checks, pubk, NB, PF, swaps, epi, mid=None, late=None, skew=0):
        NR = KS * TS
        NF = NR + skew
        nf = KS * NT
        ACC = 8
        RING = ACC + 4 * NT * TS
        always = not checks
        END = 's57' if OPT['hp'] and name in ('F1', 'F2') else '64'
        one = STEP == 1
        if END != '64':
            STEP, dsrc, ddst = 's58', 's59', 's52'
        A('v_lshlrev_b32 v0, 4, v1')
        A('v_mov_b32 v3, v0')
        A('v_mov_b32 v5, 0')
        A('s_mul_i32 %s, %s, %d' % (S_LDS, S_W, WPART))
        A('s_mov_b32 %s, 0' % S_PUB)
        un = OPT['un'] and late is not None
        ec = 0 if always else OPT['ec']
        if un and OPT['nl']:
            late = 99
        if un:
            A('v_and_b32 v76, 3, v1')
            A('v_cmp_eq_u32 s[54:55], %s, v76' % S_W)
            A('v_lshlrev_b32 v76, 2, v76')
            A('v_add_u32 v76, 0x20000, v76')
        A('s_barrier')
        if un:
            A('ds_write_b32 v76, v5')

        def dma(i, VQ):
            if i % 4 == 0:
                A('s_add_u32 m0, %s, %d' % (S_LDS, i * 1024))
                if i:
                    A('s_add_u32 s47, %s, %d' % (S_SRC, i * 1024))
            VQ.op('dma', 'buffer_load_dwordx4 v0, %s, %s offen offset:%d sc1 lds' % (WS, 's47' if i >= 4 else S_SRC, (i % 4) * 1024))
            if i == ND - 1:
                A('s_add_u32 %s, %s, %s' % (S_SRC, S_SRC, dsrc))
                A('s_xor_b32 %s, %s, %d' % (S_LDS, S_LDS, BUF))

        def poll(VQ):
            VQ.op('poll', 'buffer_load_dword v5, v4, %s, 0 offen sc1' % WS)

        def body(j0, VQ, LQ, issued, nst):
            pieces = {}
            if issued is not None:
                gap = max(1, min(3, (NF - 1 - j0) // ND))
                for i in range(ND):
                    pieces.setdefault(min(j0 + i * gap, NF - 1), []).append(i)
                pollk = max(max(pieces) + 1, NF - (700 // (16 * NT)) * (2 if skew else 1))
            for j in range(j0, NF):
                jf = j if j < NR else j - skew
                tiles = range(NT) if jf < NR - skew else range(NT // 2) if j < NR else range(NT // 2, NT)
                T, k = divmod(jf, KS)
                if issued is None and j in (checks or [0]) and (j > j0 or j == 0):
                    if always:
                        A('s_cmp_lt_u32 %s, 64' % S_NEED)
                        A('s_cbranch_scc1 %s_V%d' % (name, j))
                    else:
                        A('s_cbranch_vccz %s_V%d' % (name, j))
                    variants.append((j, list(VQ.q), list(LQ.q)))
                    if not always:
                        poll(VQ)
                LQ.wait('f%d' % j)
                b = vr(RING + 4 * (jf % NB), 4)
                fill = []
                if un and issued is not None and issued < late:
                    if j == j0:
                        fill.append(lambda: (A('v_mov_b32 v77, %s' % S_NEED), A('s_mov_b64 exec, s[54:55]'), LQ.op('u', 'ds_write_b32 v76, v77'), A('s_mov_b64 exec, -1')))
                    if j == NF - 1:
                        fill.append(lambda: LQ.op('u', 'ds_read_b32 v77, v76'))
                if j + PF < NR:
                    fill.append(lambda j=j: LQ.op('f%d' % (j + PF), 'ds_read_b128 %s, v3 offset:%d' % (vr(RING + 4 * ((j + PF) % NB), 4), (j + PF) * 1024)))
                for i in pieces.get(j, ()):
                    fill.append(lambda i=i: dma(i, VQ))
                if j == pubk:
                    def pub():
                        L = A.newlabel('NP')
                        A('s_cmp_eq_u32 %s, 0' % S_PUB)
                        A('s_cbranch_scc1 %s' % L)
                        VQ.wait('st')
                        publish(S_FLG, S_U)
                        A('s_mov_b32 %s, 0' % S_PUB)
                        A.label(L)
                        VQ.q.append('pub?')
                    fill.append(pub)
                if issued is not None and not always and j == pollk:
                    fill.append(lambda: poll(VQ))
                if issued is None and ec and j == NF - ec:
                    fill.append(lambda: poll(VQ))
                if mid:
                    fill += mid(j, VQ)
                if issued is None and (j + 1) in checks:
                    fill.append(lambda: A('v_cmp_ge_u32 vcc, %s, v5' % S_NEED))
                for t in tiles:
                    d = vr(ACC + 4 * (T * NT + t), 4)
                    w = wreg(k * NT + t, nf)
                    x, y = (b, w) if t in swaps else (w, b)
                    A('%s %s, %s, %s, %s' % (M32, d, x, y, '0' if k == 0 else d))
                    n = 1 if t < tiles[-1] else len(fill)
                    for f in fill[:n]:
                        f()
                    fill = fill[n:]
                    if j >= NR:
                        epi(VQ, (j - NR) * len(tiles) + t - tiles[0])
            A('v_xor_b32 v3, %d, v3' % BUF)
            epi(VQ)
            G.tsx(2, S_U)
            A('s_add_u32 %s, %s, %s' % (S_DST, S_DST, ddst))
            A('s_add_u32 %s, %s, %s' % (S_U, S_U, STEP))

        def strict(VQ, tag):
            VQ.q = [x for x in VQ.q if x != 'pub?']
            VQ.wait(tag)

        variants = []
        A.label(name + '_S')
        if not always:
            A('s_add_u32 s48, %s, 1' % S_U)
            G.spin('v4', 'v5', 's48', 20)
            G.tsx(0, S_U)
        A.label(name + '_D')
        VQ = Q(A, 'vmcnt')
        for i in range(ND):
            dma(i, VQ)
        A('s_waitcnt vmcnt(0)')
        A.label(name + '_L')
        A('s_barrier')
        G.tsx(1, S_U)
        if OPT['ts']:
            L = A.newlabel('TS')
            if one:
                A('s_cmp_lt_u32 %s, %d' % (S_U, OPT['ts0']))
                A('s_cbranch_scc1 %s' % L)
            G.ts()
            A.label(L)
        LQ = Q(A, 'lgkmcnt')
        for j in range(PF):
            LQ.op('f%d' % j, 'ds_read_b128 %s, v3 offset:%d' % (vr(RING + 4 * (j % NB), 4), j * 1024))
        A('s_add_u32 %s, %s, %s' % (S_NEED, S_U, STEP))
        if not always:
            A('s_cmp_lt_u32 %s, %s' % (S_NEED, END))
            A('s_cselect_b32 %s, %s, -1' % (S_NEED, S_NEED))
            A('v_cmp_ge_u32 vcc, %s, v5' % S_NEED)
        VQ = Q(A, 'vmcnt')
        VQ.q = ['st']
        body(0, VQ, LQ, None, 0)
        if ec:
            A('v_cmp_ge_u32 vcc, %s, v5' % S_NEED)
            A('s_cbranch_vccz %s_E1' % name)
        if not always:
            poll(VQ)
        strict(VQ, 'st')
        publish(S_FLG, S_U)
        if ec:
            A('s_waitcnt vmcnt(1)')
            A('v_cmp_ge_u32 vcc, %s, v5' % S_NEED)
            G.tsx(0, S_U)
            A('s_cbranch_vccz %s_D' % name)
        A('s_cmp_ge_u32 %s, %s' % (S_U, END))
        A('s_cbranch_scc1 %s_E' % name)
        A('s_branch %s_S' % name)
        if ec:
            A.label(name + '_E1')
            G.tsx(0, S_U)
            for i in range(ND):
                dma(i, VQ)
            A('s_waitcnt vmcnt(%d)' % ND)
            publish(S_FLG, S_U)
            A('s_waitcnt vmcnt(1)')
            A('s_branch %s_L' % name)
        if un:
            A.label(name + '_P')
            A('s_waitcnt vmcnt(0)')
            publish(S_FLG, S_U)
            A('s_branch %s_L' % name)
        for j, vq, lq in variants:
            A.label('%s_V%d' % (name, j))
            G.tsx(4, S_NEED)
            VQ = Q(A, 'vmcnt')
            VQ.q = vq
            LQ = Q(A, 'lgkmcnt')
            LQ.q = lq
            body(j, VQ, LQ, j, 0)
            if late is not None and j >= late:
                A('s_waitcnt vmcnt(0)')
                publish(S_FLG, S_U)
            else:
                if un:
                    LQ.wait('u')
                    A('v_cmp_ne_u32 vcc, %s, v77' % S_U)
                    A('s_cbranch_vccnz %s_P' % name)
                strict(VQ, 'dma')
                A('s_mov_b32 %s, 1' % S_PUB)
            A('s_branch %s_L' % name)
        A.label(name + '_E')
        G.ts()

    def red(r, t):
        A('v_add_f32_dpp v%d, v%d, v%d row_ror:8 row_mask:0xf bank_mask:0xf' % (r, r, r))
        A('v_mov_b32 v%d, v%d' % (t, r))
        A('v_permlane16_swap_b32 v%d, v%d' % (r, t))
        A('v_add_f32 v%d, v%d, v%d' % (r, r, t))
        A('v_mov_b32 v%d, v%d' % (t, r))
        A('v_permlane32_swap_b32 v%d, v%d' % (r, t))
        A('v_add_f32 v%d, v%d, v%d' % (r, r, t))

    def oct_lanes(vrow, vfrag, vhalf=None):
        A('v_and_b32 v7, 7, v1')
        A('v_bfe_u32 v6, v1, 3, 1')
        A('v_lshrrev_b32 v5, 4, v1')
        A('v_mul_u32_u24 %s, 1152, v7' % vrow)
        A('v_lshl_add_u32 %s, v6, 6, %s' % (vrow, vrow))
        A('v_lshl_add_u32 %s, v5, 4, %s' % (vrow, vrow))
        A('v_lshl_add_u32 v7, v5, 4, v7')
        A('v_lshlrev_b32 v6, 10, v6')
        A('v_lshl_add_u32 %s, v7, 4, v6' % vfrag)
        if vhalf:
            A('v_lshl_add_u32 %s, v7, 3, v6' % vhalf)

    def ln1():
        G.srd(20, G.P_X, 2048 * 1152)
        oct_lanes('v3', 'v4')
        A('s_lshl_b32 s36, s35, 2')
        A('s_add_u32 s36, s36, %s' % S_W)
        A('s_mul_i32 s32, s36, %d' % (8 * 1152))
        F = 52
        VQ = Q(A, 'vmcnt')
        for X in (16, 124):
            for i in range(9):
                VQ.op((X, i), 'buffer_load_dwordx4 %s, v3, s[20:23], s32 offen offset:%d' % (vr(X + 4 * i, 4), i * 128))
            A('s_add_u32 s32, s32, %d' % (1024 * 1152))
        A('s_lshr_b32 s33, s36, 1')
        A('s_mul_i32 s33, s33, 18432')
        A('s_and_b32 s34, %s, 1' % S_W)
        A('s_lshl_b32 s34, s34, 7')
        A('s_add_u32 s33, s33, s34')
        A('s_add_u32 s33, s33, 0x%x' % W_XN)
        A('v_mov_b32 v6, %d' % (D_READY * 4))
        for X in (16, 124):
            for i in range(9):
                VQ.wait((X, i))
                for j in range(4):
                    r = X + 4 * i + j
                    A('v_lshlrev_b32 v%d, 16, v%d' % (F + 2 * (4 * i + j), r))
                    A('v_and_b32 v%d, 0xffff0000, v%d' % (F + 2 * (4 * i + j) + 1, r))
                for j in range(4):
                    p = F + 2 * (4 * i + j)
                    acc = 8 + 2 * (j & 1)
                    if i == 0 and j < 2:
                        A('v_pk_add_f32 %s, %s, %s' % (vr(acc, 2), vr(p, 2), vr(p + 4, 2)))
                    elif i > 0:
                        A('v_pk_add_f32 %s, %s, %s' % (vr(acc, 2), vr(acc, 2), vr(p, 2)))
            if OPT['lt']:
                G.ts()
            A('v_pk_add_f32 v[8:9], v[8:9], v[10:11]')
            A('v_add_f32 v8, v8, v9')
            red(8, 9)
            A('v_mul_f32 v12, %s, v8' % G.fbits(-1.0 / 576))
            A('v_mov_b32 v13, v12')
            for i in range(36):
                p = F + 2 * i
                A('v_pk_add_f32 %s, %s, v[12:13]' % (vr(p, 2), vr(p, 2)))
            for i in range(36):
                p = F + 2 * i
                acc = 8 + 2 * (i & 1)
                if i < 2:
                    A('v_pk_mul_f32 %s, %s, %s' % (vr(acc, 2), vr(p, 2), vr(p, 2)))
                else:
                    A('v_pk_fma_f32 %s, %s, %s, %s' % (vr(acc, 2), vr(p, 2), vr(p, 2), vr(acc, 2)))
            A('v_pk_add_f32 v[8:9], v[8:9], v[10:11]')
            A('v_add_f32 v8, v8, v9')
            red(8, 9)
            A('v_mov_b32 v9, %s' % G.fbits(1e-5))
            A('v_fmac_f32 v9, %s, v8' % G.fbits(1.0 / 576))
            A('v_rsq_f32 v12, v9')
            A('v_mov_b32 v13, v12')
            for i in range(9):
                for j in range(4):
                    p = F + 2 * (4 * i + j)
                    A('v_pk_mul_f32 %s, %s, v[12:13]' % (vr(p, 2), vr(p, 2)))
                for j in range(4):
                    cvt(X + 4 * i + j, F + 2 * (4 * i + j))
                if i and i % 2 == 0:
                    A('s_add_u32 s33, s33, 4096')
                VQ.op('s', 'buffer_store_dwordx4 %s, v4, %s, s33 offen offset:%d sc1' % (vr(X + 4 * i, 4), WS, (i & 1) * 2048))
            A('s_add_u32 s33, s33, %d' % (32 * SEG_XN - 16384))
            if X == 16:
                VQ.op('r', 'buffer_load_dword v14, v6, %s, 0 offen sc1' % G.DBG)
        A('s_add_u32 s36, s36, %d' % F_XN)
        A('s_lshl_b32 s36, s36, 7')
        A('s_waitcnt vmcnt(0)')
        A('v_cmp_gt_u32 vcc, %d, v14' % G.N_READY)
        A('s_cbranch_vccz LN1_R')
        G.wait_ready('v6', 'v7')
        A.label('LN1_R')
        publish('s36', '1')
        G.ts()

    ID, RA, RB = 10, 12, 40

    def ident():
        A('v_and_b32 v7, 15, v1')
        A('v_lshrrev_b32 v6, 4, v1')
        A('v_lshlrev_b32 v6, 2, v6')
        A('v_sub_u32 v7, v7, v6')
        A('v_mov_b32 v5, 0x3f80')
        A('v_mov_b32 v6, 0x3f800000')
        for i in range(2):
            A('v_mov_b32 v%d, 0' % (ID + i))
            A('v_cmp_eq_u32 vcc, %d, v7' % (2 * i))
            A('v_cndmask_b32 v%d, v%d, v5, vcc' % (ID + i, ID + i))
            A('v_cmp_eq_u32 vcc, %d, v7' % (2 * i + 1))
            A('v_cndmask_b32 v%d, v%d, v6, vcc' % (ID + i, ID + i))

    def part_loads(VQ, np_, sbase):
        for n in range(np_):
            r = RB + 12 * (n + 1)
            if n:
                A('s_add_u32 %s, %s, 18432' % (sbase, sbase))
            for p in range(2):
                VQ.op((n + 1, p), 'buffer_load_dwordx4 %s, v8, %s, %s offen offset:%d sc1' % (vr(r + 4 * p, 4), WS, sbase, p * 2048))
            for i in range(2):
                VQ.op((n + 1, 2), 'buffer_load_dwordx2 %s, v9, %s, %s offen offset:%d sc1' % (vr(r + 8 + 2 * i, 2), WS, sbase, i * 512))

    def part_sum(VQ, np_):
        for n in range(np_ + 1):
            for p in range(3):
                VQ.wait((n, p))
                for i in range(2):
                    d = vr(RA + 8 * p + 4 * i, 4)
                    A('%s %s, %s, %s, %s' % (M16, d, vr(ID, 2), vr(RB + 12 * n + 4 * p + 2 * i, 2), '0' if n == 0 else d))

    def again(name, r, code, undo):
        A('v_cmp_u_f32 vcc, v%d, v%d' % (r, r))
        A('s_cbranch_vccz %s_K' % name)
        A('s_cmp_eq_u32 s48, 0')
        A('s_cbranch_scc1 %s_K' % name)
        A('s_waitcnt vmcnt(0)')
        A('v_cmp_ge_u32 vcc, s40, v5')
        A('s_or_b32 s48, vcc_lo, vcc_hi')
        for x in undo:
            A(x)
        A('s_add_u32 %s, %s, 1' % (G.S_SPIN, G.S_SPIN))
        A('s_cmp_lt_u32 %s, %d' % (G.S_SPIN, G.SPIN_MAX))
        A('s_cbranch_scc1 %s_R' % name)
        A('s_movk_i32 %s, %d' % (G.S_SPIN, code))
        A('s_branch FAIL')
        A.label(name + '_K')

    def role_ln2():
        G.srd(20, G.P_X, 2048 * 1152)
        A('s_cmp_eq_u32 %s, 3' % S_W)
        A('s_cbranch_scc1 %s' % ('LN2_X' if OPT['xp'] else 'EXIT'))
        ident()
        oct_lanes('v3', 'v8', 'v9')
        A('s_lshr_b32 s40, s35, 2')
        A('s_and_b32 s36, s35, 3')
        A('s_lshr_b32 s37, s36, 1')
        A('s_and_b32 s38, s36, 1')
        A('s_mul_i32 s32, s36, %d' % (8 * 1152))
        A('s_mul_i32 s33, %s, 384' % S_W)
        A('s_add_u32 s32, s32, s33')
        A('v_add_u32 v3, s32, v3')
        A('s_mul_i32 s33, %s, 6144' % S_W)
        A('s_lshl_b32 s34, s38, 7')
        A('s_add_u32 s34, s34, s33')
        A('v_add_u32 v8, s34, v8')
        A('s_lshl_b32 s34, s38, 6')
        A('s_add_u32 s34, s34, s33')
        A('s_add_u32 s34, s34, 4096')
        A('v_add_u32 v9, s34, v9')
        A('s_lshl_b32 s34, s37, 2')
        A('s_add_u32 s34, s34, %s' % S_W)
        A('s_lshl_b32 s34, s34, 4')
        A('s_add_u32 s34, s34, %d' % F_WO)
        A('v_min_u32 v4, 15, v1')
        A('v_add_u32 v4, s34, v4')
        A('v_lshlrev_b32 v4, 7, v4')
        A('s_lshl_b32 s45, s40, 1')
        A('s_add_u32 s45, s45, s38')
        A('s_mul_i32 s45, s45, 3')
        A('s_add_u32 s45, s45, %s' % S_W)
        A('s_lshl_b32 s34, s37, 5')
        A('s_add_u32 s45, s45, s34')
        A('s_add_u32 s45, s45, %d' % F_LN2)
        A('s_lshl_b32 s45, s45, 7')
        A('v_and_b32 v0, 7, v1')
        A('v_lshlrev_b32 v0, 3, v0')
        A('s_lshl_b32 s34, %s, 6' % S_W)
        A('s_mul_i32 s41, s37, %d' % (NPW * 18432))
        A('s_add_u32 s41, s41, 0x%x' % W_PW)
        A('s_mul_i32 s42, s37, 18432')
        G.wait_ready('v6', 'v7')
        A('v_add_u32 v6, s34, v0')
        A.label('LN2_L')
        VQ = Q(A, 'vmcnt')
        A('s_mul_i32 s43, s40, %d' % SEG_XN)
        for p in range(3):
            VQ.op((0, p), 'buffer_load_dwordx4 %s, v3, s[20:23], s43 offen offset:%d' % (vr(RB + 4 * p, 4), p * 128))
        A('s_mul_i32 s44, s40, %d' % SEG_PW)
        A('s_add_u32 s44, s44, s41')
        A('s_add_u32 s48, s40, 1')
        sd = OPT['sd'] & 1
        if sd:
            A('s_mov_b32 %s, 0' % G.S_SPIN)
            A('s_cmp_ge_u32 s40, %d' % OPT['sl'])
            A('s_cbranch_scc1 LN2_R')
        G.spin('v4', 'v5', 's48', 21, nap=(OPT['zl'], 54))
        if sd:
            A('s_mov_b32 s48, 0')
            A.label('LN2_R')
            VQ.op('poll', 'buffer_load_dword v5, v4, %s, 0 offen sc1' % WS)
        G.tsx(0, 's40')
        if not sd:
            G.ts()
        part_loads(VQ, NPW, 's44')
        part_sum(VQ, NPW)
        G.tsx(1, 's40')
        A('s_add_u32 s43, s43, s42')
        A('s_add_u32 s44, s43, 0x%x' % W_HB)
        A('s_add_u32 s43, s43, 0x%x' % W_HN)
        A('s_add_u32 s46, s44, 4096')
        A('s_add_u32 s47, s43, 4096')
        t = RB + 12
        for i in range(3):
            A('v_pk_add_f32 %s, %s, %s' % (vr(t + 2 * i, 2), vr(RA + 2 * i, 2), vr(RA + 6 + 2 * i, 2)))
        for i in range(6):
            A('v_pk_add_f32 %s, %s, %s' % (vr(t + 2 * (i % 3), 2), vr(t + 2 * (i % 3), 2), vr(RA + 12 + 2 * i, 2)))
        A('v_pk_add_f32 %s, %s, %s' % (vr(t, 2), vr(t, 2), vr(t + 2, 2)))
        A('v_pk_add_f32 %s, %s, %s' % (vr(t, 2), vr(t, 2), vr(t + 4, 2)))
        A('v_add_f32 v%d, v%d, v%d' % (t, t, t + 1))
        if sd:
            again('LN2', t, 23, ['s_mul_i32 s43, s40, %d' % SEG_XN, 's_mul_i32 s44, s40, %d' % SEG_PW, 's_add_u32 s44, s44, s41'])
            G.ts()
        for i in range(12):
            cvt(RB + i, RA + 2 * i)
        red(t, t + 1)
        A('v_mul_f32 v%d, %s, v%d' % (t + 8, G.fbits(1.0 / 192), t))
        A('v_mul_f32 v%d, %s, v%d' % (t + 6, G.fbits(-1.0 / 192), t))
        A('v_mov_b32 v%d, v%d' % (t + 7, t + 6))
        for i in range(12):
            A('v_pk_add_f32 %s, %s, %s' % (vr(RA + 2 * i, 2), vr(RA + 2 * i, 2), vr(t + 6, 2)))
        for i in range(12):
            a = vr(t + 2 * (i % 3), 2)
            p = vr(RA + 2 * i, 2)
            if i < 3:
                A('v_pk_mul_f32 %s, %s, %s' % (a, p, p))
            else:
                A('v_pk_fma_f32 %s, %s, %s, %s' % (a, p, p, a))
        A('v_pk_add_f32 %s, %s, %s' % (vr(t, 2), vr(t, 2), vr(t + 2, 2)))
        A('v_pk_add_f32 %s, %s, %s' % (vr(t, 2), vr(t, 2), vr(t + 4, 2)))
        A('v_add_f32 v%d, v%d, v%d' % (t + 9, t, t + 1))
        red(t + 9, t + 1)
        A('ds_write_b64 v6, %s' % vr(t + 8, 2))
        for p in range(3):
            A('buffer_store_dwordx4 %s, v8, %s, %s offen offset:%d sc1' % (vr(RB + 4 * p, 4), WS, 's44' if p < 2 else 's46', (p & 1) * 2048))
        A('s_waitcnt lgkmcnt(0)')
        A('s_barrier')
        for j in range(3):
            A('ds_read_b64 %s, v0 offset:%d' % (vr(t + 2 * j, 2), j * 64))
        A('v_xor_b32 v0, 256, v0')
        A('v_xor_b32 v6, 256, v6')
        A('s_waitcnt lgkmcnt(0)')
        m, v = t + 10, t + 11
        A('v_add_f32 v%d, v%d, v%d' % (m, t, t + 2))
        A('v_add_f32 v%d, v%d, v%d' % (v, t + 1, t + 3))
        A('v_add_f32 v%d, v%d, v%d' % (m, m, t + 4))
        A('v_add_f32 v%d, v%d, v%d' % (v, v, t + 5))
        A('v_mul_f32 v%d, %s, v%d' % (m, G.fbits(1.0 / 3), m))
        A('v_mul_f32 v%d, %s, v%d' % (v, G.fbits(1.0 / 192), v))
        for j in range(3):
            A('v_sub_f32 v%d, v%d, v%d' % (t + 2 * j, t + 2 * j, m))
        for j in range(3):
            A('v_fmac_f32 v%d, v%d, v%d' % (v, t + 2 * j, t + 2 * j))
        A('v_mov_b32 v%d, %s' % (t, G.fbits(1e-5)))
        A('v_fmac_f32 v%d, %s, v%d' % (t, G.fbits(1.0 / 3), v))
        A('v_rsq_f32 v%d, v%d' % (t, t))
        A('v_sub_f32 v%d, v%d, v%d' % (t + 2, t + 8, m))
        A('v_mov_b32 v%d, v%d' % (t + 1, t))
        A('v_mul_f32 v%d, v%d, v%d' % (t + 2, t + 2, t))
        A('v_mov_b32 v%d, v%d' % (t + 3, t + 2))
        H = RB + 24
        for p in range(3):
            for i in range(4):
                a = vr(RA + 8 * p + 2 * i, 2)
                A('v_pk_fma_f32 %s, %s, %s, %s' % (a, a, vr(t, 2), vr(t + 2, 2)))
            for i in range(4):
                cvt(H + 4 * p + i, RA + 8 * p + 2 * i)
            A('buffer_store_dwordx4 %s, v8, %s, %s offen offset:%d sc1' % (vr(H + 4 * p, 4), WS, 's43' if p < 2 else 's47', (p & 1) * 2048))
        G.tsx(2, 's40')
        A('s_add_u32 s40, s40, 2')
        A('s_waitcnt vmcnt(0)')
        publish('s45', 's40', d=2)
        G.ts()
        A('s_cmp_lt_u32 s40, 64')
        A('s_cbranch_scc1 LN2_L')
        if OPT['xp']:
            A('s_branch LN2_Z')
            A.label('LN2_X')
            A('s_lshr_b32 s40, s35, 2')
            A('s_and_b32 s36, s35, 3')
            A('s_mul_i32 s36, s36, %d' % (8 * 1152))
            A('v_lshlrev_b32 v3, 7, v1')
            A('v_add_u32 v3, s36, v3')
            A('v_add_u32 v4, 1024, v3')
            A.label('LN2_Y')
            A('s_add_u32 s40, s40, 2')
            A('s_min_u32 s43, s40, 63')
            A('s_mul_i32 s43, s43, %d' % SEG_XN)
            A('buffer_load_dword v5, v3, s[20:23], s43 offen')
            A('buffer_load_dword v6, v4, s[20:23], s43 offen')
            A('s_barrier')
            A('s_waitcnt vmcnt(0)')
            A('s_cmp_lt_u32 s40, 64')
            A('s_cbranch_scc1 LN2_Y')
            A('s_branch EXIT')
            A.label('LN2_Z')

    def role_fin():
        G.srd(20, G.P_OUT, 2048 * 1152)
        ident()
        oct_lanes('v3', 'v0', 'v4')
        A('v_add_u32 v36, 4096, v4')
        A('v_min_u32 v4, 15, v1')
        A('v_lshlrev_b32 v4, 7, v4')
        A.label('FIN_L')
        A('s_mul_i32 s40, s35, 43691')
        A('s_lshr_b32 s40, s40, 19')
        A('s_mul_i32 s36, s40, 12')
        A('s_sub_u32 s36, s35, s36')
        A('s_and_b32 s37, s36, 3')
        A('s_lshr_b32 s36, s36, 2')
        A('s_lshr_b32 s38, s37, 1')
        A('s_and_b32 s39, s37, 1')
        A('s_mul_i32 s33, s36, 6144')
        A('s_lshl_b32 s34, s39, 7')
        A('s_add_u32 s34, s34, s33')
        A('v_add_u32 v8, s34, v0')
        A('s_lshl_b32 s34, s39, 6')
        A('s_add_u32 s34, s34, s33')
        A('v_add_u32 v9, s34, v36')
        A('s_lshl_b32 s34, s38, 2')
        A('s_add_u32 s34, s34, s36')
        A('s_lshl_b32 s34, s34, 11')
        A('s_add_u32 s34, s34, %d' % (F_F2 * 128))
        if OPT['hp']:
            A('s_cmp_eq_u32 s40, 63')
            A('s_cselect_b32 s41, 65536, 0')
            A('s_add_u32 s34, s34, s41')
        A('s_lshl_b32 s41, s40, 1')
        A('s_add_u32 s41, s41, s38')
        A('s_mul_i32 s43, s41, 18432')
        A('s_add_u32 s43, s43, 0x%x' % W_HB)
        A('s_add_u32 s46, s43, 4096')
        A('s_mul_i32 s44, s41, %d' % (NPF * 18432))
        A('s_add_u32 s44, s44, 0x%x' % W_PF)
        A('s_add_u32 s48, s40, 1')
        sd = OPT['sd'] & 2
        if sd:
            A('s_sub_u32 s33, s40, %d' % OPT['sb'])
            A('s_cmp_lt_u32 s40, %d' % OPT['sf'])
            A('s_cselect_b32 s48, s48, s33')
        G.spin('v4', 'v5', 's48', 22, WS, 's34', nap=(OPT['zf'], 62))
        VQ = Q(A, 'vmcnt')
        if sd:
            A('s_mov_b32 s48, 0')
            A('s_cmp_lt_u32 s40, %d' % OPT['sf'])
            A('s_cbranch_scc1 FIN_H')
            A('s_and_b32 s48, s40, 1')
            A('s_lshl_b32 s48, s48, 1')
            A('s_add_u32 s48, s48, s39')
            A('s_mul_i32 s48, s48, 3')
            A('s_add_u32 s48, s48, s36')
            A('s_lshl_b32 s33, s38, 5')
            A('s_add_u32 s48, s48, s33')
            A('s_add_u32 s48, s48, %d' % F_LN2)
            A('s_lshl_b32 s48, s48, 7')
            A('v_mov_b32 v6, 0')
            A('s_add_u32 s33, s40, 1')
            G.spin('v6', 'v5', 's33', 24, WS, 's48')
            A.label('FIN_H')
        if not sd:
            G.ts()
        for p in range(3):
            VQ.op((0, p), 'buffer_load_dwordx4 %s, v8, %s, %s offen offset:%d sc1' % (vr(RB + 4 * p, 4), WS, 's43' if p < 2 else 's46', (p & 1) * 2048))
        if sd:
            A.label('FIN_R')
        G.tsx(0, 's40')
        part_loads(VQ, NPF, 's44')
        if sd:
            VQ.op('poll', 'buffer_load_dword v5, v4, %s, s34 offen sc1' % WS)
        A('s_lshl_b32 s41, s40, 2')
        A('s_add_u32 s41, s41, s37')
        A('s_mul_i32 s41, s41, %d' % (8 * 1152))
        A('s_mul_i32 s33, s36, 384')
        A('s_add_u32 s41, s41, s33')
        part_sum(VQ, NPF)
        if sd:
            t = RB + 12
            for i in range(4):
                A('v_pk_add_f32 %s, %s, %s' % (vr(t + 2 * i, 2), vr(RA + 2 * i, 2), vr(RA + 8 + 2 * i, 2)))
            for i in range(4):
                A('v_pk_add_f32 %s, %s, %s' % (vr(t + 2 * i, 2), vr(t + 2 * i, 2), vr(RA + 16 + 2 * i, 2)))
            for i in range(2):
                A('v_pk_add_f32 %s, %s, %s' % (vr(t + 2 * i, 2), vr(t + 2 * i, 2), vr(t + 4 + 2 * i, 2)))
            A('v_pk_add_f32 %s, %s, %s' % (vr(t, 2), vr(t, 2), vr(t + 2, 2)))
            A('v_add_f32 v%d, v%d, v%d' % (t, t, t + 1))
            again('FIN', t, 25, ['s_sub_u32 s44, s44, %d' % ((NPF - 1) * 18432)])
            G.ts()
        for p in range(3):
            for i in range(4):
                cvt(RB + 4 * p + i, RA + 8 * p + 2 * i)
            A('buffer_store_dwordx4 %s, v3, s[20:23], s41 offen offset:%d' % (vr(RB + 4 * p, 4), p * 128))
        G.tsx(5, 's40')
        A('s_add_u32 s35, s35, %d' % (64 if OPT['hp'] else 256))
        A('s_cmp_lt_u32 s35, 768')
        A('s_cbranch_scc1 FIN_L')

    def role_qkv():
        G.srd(12, G.P_WQ, 576 * 8192)
        G.srd(16, G.P_WK, 576 * 8192)
        G.srd(20, G.P_WV, 576 * 8192)
        NS, GR = 18, 3
        A('v_lshrrev_b32 v7, 3, v1')
        A('v_and_b32 v6, 3, v7')
        A('v_lshlrev_b32 v6, 1, v6')
        A('v_and_b32 v5, 7, v1')
        A('v_xor_b32 v6, v6, v5')
        A('v_lshlrev_b32 v8, 13, v7')
        A('v_lshl_add_u32 v8, v6, 4, v8')
        A('s_and_b32 s32, %s, 1' % S_W)
        A('s_and_b32 s33, %s, 2' % S_W)
        A('s_lshl_b32 s34, s36, 2')
        A('s_add_u32 s34, s34, s33')
        A('s_lshl_b32 s34, s34, 6')
        A('s_lshl_b32 s31, s32, 17')
        A('s_add_u32 s34, s34, s31')
        A('v_add_u32 v8, s34, v8')
        A('s_mul_i32 s30, %s, %d' % (S_W, NS * 2048))
        VQ = Q(A, 'vmcnt')

        def dma(n):
            for i in range(2):
                A('s_add_u32 m0, s30, %d' % ((n % NS) * 2048 + i * 1024))
                A('s_mov_b32 s31, %d' % ((32 * (n // 3) + 8 * i) * 8192))
                VQ.op(n, 'buffer_load_dwordx4 v8, %s, s31 offen lds' % sr(12 + 4 * (n % 3), 4))
        for n in range(NS):
            dma(n)
        A('v_lshrrev_b32 v5, 5, v1')
        A('v_add_u32 v5, s33, v5')
        A('v_mul_u32_u24 v10, %d, v5' % (NS * 2048))
        A('v_bfe_u32 v5, v1, 4, 1')
        A('v_bfe_u32 v6, v1, 2, 2')
        A('v_lshl_add_u32 v5, v5, 3, v6')
        A('v_lshl_add_u32 v10, v5, 7, v10')
        A('s_lshl_b32 s32, s32, 1')
        A('v_xor_b32 v6, s32, v6')
        A('v_lshl_add_u32 v10, v6, 5, v10')
        A('v_and_b32 v6, 3, v1')
        A('v_lshl_add_u32 v10, v6, 3, v10')
        A('v_xor_b32 v11, 32, v10')
        for n0 in range(0, 54, GR):
            VQ.wait(n0 + GR - 1)
            A('s_barrier')
            for n in range(n0 - GR + NS, n0 + NS):
                if NS <= n < 54:
                    dma(n)
            if OPT['qe'] and n0 == 18:
                A('v_mov_b32 v12, %d' % (D_READY * 4))
                VQ.op('r', 'buffer_load_dword v12, v12, %s, 0 offen sc1' % G.DBG)
            if OPT['qe'] and n0 == 42:
                VQ.wait('r')
                A('v_lshlrev_b32 v4, 7, v1')
                for i in range(2):
                    A('s_mov_b32 s48, %d' % (F_XN * 128 + i * 8192))
                    VQ.op('f', 'buffer_load_dword v%d, v4, %s, s48 offen sc1' % (13 + i, WS))
            for n in range(n0, n0 + GR):
                for t in range(2):
                    for u in range(2):
                        A('ds_read_b64_tr_b16 %s, v%d offset:%d' % (wreg(2 * n + t, 108, u), 10 + t, (n % NS) * 2048 + u * 512))
            A('s_waitcnt lgkmcnt(0)')
        G.ts()
        if OPT['qe']:
            A('s_waitcnt vmcnt(0)')
            A('v_cmp_gt_u32 s[48:49], %d, v12' % G.N_READY)
            A('v_min_u32 v13, v13, v14')
            A('v_cmp_gt_u32 vcc, 1, v13')
            A('s_or_b64 vcc, vcc, s[48:49]')
            A('s_cbranch_vccz QKV_GO')
        G.wait_ready('v6', 'v7')
        A('v_lshlrev_b32 v4, 7, v1')
        for i in range(2):
            A('s_mov_b32 s48, %d' % (F_XN * 128 + i * 8192))
            G.spin('v4', 'v5', '1', 23, WS, 's48')
        A.label('QKV_GO')
        if OPT['lt']:
            G.ts()
        A('s_mov_b32 %s, s37' % S_U)
        A('s_mul_i32 %s, s37, %d' % (S_DST, SEG_QKV))
        A('s_lshl_b32 s33, s36, 21')
        A('s_add_u32 %s, %s, s33' % (S_DST, S_DST))
        A('s_lshl_b32 s50, %s, 11' % S_W)
        A('s_add_u32 %s, %s, s50' % (S_DST, S_DST))
        A('s_add_u32 %s, %s, 0x%x' % (S_DST, S_DST, W_QKV))
        A('s_add_u32 s50, s50, 8192')
        A('s_mul_i32 %s, s37, %d' % (S_SRC, SEG_XN))
        A('s_mul_i32 s33, %s, 9216' % S_W)
        A('s_add_u32 %s, %s, s33' % (S_SRC, S_SRC))
        A('s_add_u32 %s, %s, 0x%x' % (S_SRC, S_SRC, W_XN))
        A('s_lshl_b32 s35, s36, 1')
        A('s_add_u32 s35, s35, s37')
        A('s_lshl_b32 s35, s35, 2')
        A('s_add_u32 s35, s35, %s' % S_W)
        A('s_lshr_b32 %s, s35, 2' % S_FLG)
        A('s_add_u32 %s, %s, %d' % (S_FLG, S_FLG, F_QKV))
        A('s_lshl_b32 %s, %s, 5' % (S_FLG, S_FLG))
        A('s_add_u32 %s, %s, %s' % (S_FLG, S_FLG, S_W))
        A('s_lshl_b32 %s, %s, 2' % (S_FLG, S_FLG))
        a, b = 8, 32
        A('s_mov_b32 s52, %s' % G.fbits(G.LOG2E / math.sqrt(128.0)))
        A('s_mov_b32 s53, s52')

        def scale(r, n):
            for i in range(r, r + n, 2):
                A('v_pk_mul_f32 %s, %s, s[52:53]' % (vr(i, 2), vr(i, 2)))

        def st(VQ, r, so, off):
            VQ.op('st', 'buffer_store_dwordx4 %s, v0, %s, %s offen offset:%d sc1' % (vr(r, 4), WS, so, off))

        def mid(j, VQ):
            if j == 19:
                return [lambda: [cvt(a + i, a + 2 * i) for i in range(2)], lambda: [cvt(a + i, a + 2 * i) for i in range(2, 4)],
                        lambda: st(VQ, a, S_DST, 0), lambda: A('s_add_u32 s49, %s, s50' % S_DST)]
            if j == 20:
                return [lambda: scale(a + 8, 4), lambda: scale(a + 12, 4)]
            if j == 21:
                return [lambda: [cvt(a + 8 + i, a + 8 + 2 * i) for i in range(2)], lambda: [cvt(a + 8 + i, a + 8 + 2 * i) for i in range(2, 4)],
                        lambda: st(VQ, a + 8, 's49', 0)]
            if j == 22:
                return [lambda: [cvt(a + 16 + i, a + 16 + 2 * i) for i in range(2)], lambda: [cvt(a + 20 + i, a + 20 + 2 * i) for i in range(2)]]
            return []

        def epi(VQ):
            for m, so in ((0, S_DST), (8, 's49')):
                if m:
                    scale(b + m, 8)
                for i in range(4):
                    cvt(b + m + i, b + m + 2 * i)
                st(VQ, b + m, so, 1024)
            for t in range(2):
                for i in range(2):
                    cvt(a + 18 + 4 * t + i, b + 16 + 4 * t + 2 * i)
                st(VQ, a + 16 + 4 * t, 's49', 2048 + 1024 * t)
        gemm('QKV', 18, 6, 2, 9, 9216, 65536, 2, 2 * SEG_XN, 2 * SEG_QKV, [], 7, 6, 4, (4, 5), epi, mid)

    def role_f1():
        A('s_lshl_b32 s30, s36, 1')
        A('s_add_u32 s30, s30, s37')
        pull()
        gate(OPT['g1w'])
        G.srd(12, G.P_WG, 576 * 9216)
        G.srd(16, G.P_WU, 576 * 9216)
        w_lane(9216, 'N', 'N')
        A('s_mul_i32 s33, s36, 384')
        A('s_lshr_b32 s34, %s, 1' % S_W)
        A('s_lshl_b32 s34, s34, 6')
        A('s_add_u32 s34, s34, s33')
        A('v_add_u32 v9, s34, v8')
        A('s_lshl_b32 s34, %s, 6' % S_W)
        A('s_add_u32 s34, s34, s33')
        A('v_add_u32 v8, s34, v8')
        A('s_and_b32 s34, %s, 1' % S_W)
        A('s_lshl_b32 s34, s34, 5')
        A('v_lshlrev_b32 v6, 3, v6')
        A('v_sub_u32 v11, v10, v6')
        A('v_add_u32 v11, s34, v11')
        units = []
        for k in range(18):
            for m in range(2):
                units.append((sr(12 + 4 * m, 4), 'v8', 0, k, [(k * 6 + 3 * m + t, 'v10', 8 * t) for t in range(2)]))
                units.append((sr(12 + 4 * m, 4), 'v9', 256, k, [(k * 6 + 3 * m + 2, 'v11', 0)]))
        load_weights(units, 108, 9216, 'N', OPT['d1'])
        G.ts()
        G.wait_ready('v6', 'v7')
        A('s_mov_b32 %s, 0' % S_U)
        A('s_mul_i32 %s, s37, 144' % S_DST)
        A('s_mul_i32 s34, s36, 6')
        A('s_add_u32 s34, s34, %s' % S_W)
        A('s_add_u32 %s, %s, s34' % (S_DST, S_DST))
        A('s_lshl_b32 s34, %s, 9' % S_W)
        A('s_sub_u32 s34, 4096, s34')
        A('v_and_b32 v6, 15, v1')
        A('v_lshlrev_b32 v6, 4, v6')
        A('v_lshrrev_b32 v5, 5, v1')
        A('v_lshl_add_u32 v6, v5, 8, v6')
        A('v_bfe_u32 v5, v1, 4, 1')
        A('v_lshl_add_u32 v6, v5, 3, v6')
        A('v_add_u32 v6, s34, v6')
        A('s_lshl_b32 s34, s36, 2')
        A('s_add_u32 s34, s34, %s' % S_W)
        A('s_lshl_b32 %s, %s, 10' % (S_DST, S_DST))
        A('s_add_u32 %s, %s, 0x%x' % (S_DST, S_DST, W_ACT))
        A('s_mul_i32 %s, s37, 18432' % S_SRC)
        A('s_mul_i32 s33, %s, 4480' % S_W)
        A('s_add_u32 %s, %s, s33' % (S_SRC, S_SRC))
        A('s_add_u32 %s, %s, 0x%x' % (S_SRC, S_SRC, W_HN))
        A('s_mul_i32 %s, s37, 160' % S_FLG)
        A('s_add_u32 %s, %s, s34' % (S_FLG, S_FLG))
        A('s_add_u32 %s, %s, %d' % (S_FLG, S_FLG, F_F1))
        A('s_lshl_b32 %s, %s, 7' % (S_FLG, S_FLG))
        A('s_lshl_b32 s33, s37, 5')
        A('s_add_u32 s33, s33, %d' % F_LN2)
        A('v_min_u32 v4, 11, v1')
        A('v_add_u32 v4, s33, v4')
        A('v_lshlrev_b32 v4, 7, v4')
        if OPT['hp']:
            second(SEG_XN, SEG_ACT)
            doze()
        A('s_mov_b32 s50, %s' % G.fbits(-G.LOG2E))

        A('s_mov_b32 s51, s50')
        g, u, t = 8, 20, 64
        sil = [[] for _ in range(24)]
        for i in range(12):
            q = i + 2 + 2 * (i >> 2)
            if not i & 1:
                sil[max(1, q - 2)].append('v_pk_mul_f32 %s, %s, s[50:51]' % (vr(t + i, 2), vr(g + i, 2)))
            sil[q].insert(0, 'v_exp_f32 v%d, v%d' % (t + i, t + i))
            if i & 1:
                sil[q + 1].append('v_pk_add_f32 %s, %s, 1.0 op_sel_hi:[1,0]' % (vr(t + i - 1, 2), vr(t + i - 1, 2)))
        rs = [6, 7, 12, 13, 18, 19, 19, 20, 20, 21, 22, 22]
        for i in range(12):
            sil[rs[i]].insert(0, 'v_rcp_f32 v%d, v%d' % (t + i, t + i))
            if i & 1:
                sil[rs[i] + 1].append('v_pk_mul_f32 %s, %s, %s' % (vr(g + i - 1, 2), vr(g + i - 1, 2), vr(t + i - 1, 2)))

        def epi(VQ, q=None):
            if q is not None:
                for x in sil[q]:
                    A(x)
                return
            for lo, n in ((0, 8), (8, 4)):
                for i in range(lo, lo + n, 2):
                    A('v_pk_mul_f32 %s, %s, %s' % (vr(g + i, 2), vr(g + i, 2), vr(u + i, 2)))
                for i in range(0, n, 2):
                    cvt(t + lo + i // 2, g + lo + i)
                VQ.op('st', 'buffer_store_dwordx%d %s, %s, %s, %s offen sc1' % (n // 2, vr(t + lo, n // 2), 'v6' if lo else 'v0', WS, S_DST))
        gemm('F1', 18, 6, 1, 5, 4480, 32768, 1, SEG_XN, SEG_ACT, [0, 5, 10, 18], OPT['pk'] // 2, 8, 4, (), epi, late=10, skew=8)

    def role_part(name):
        wo = name == 'WO'
        KS, NP = (32, NPW) if wo else (36, NPF)
        gate(OPT['gww' if wo else 'g2w'])
        G.srd(12, G.P_WO if wo else G.P_WD, NP * KS * 32 * 1152)
        krow = 'D' if wo else 'N'
        w_lane(1152, krow, 'N')
        A('s_mul_i32 s33, s36, %d' % (KS * 32 * 1152))
        A('s_mul_i32 s34, s38, 384')
        A('s_add_u32 s33, s33, s34')
        A('s_lshr_b32 s34, %s, 1' % S_W)
        A('s_lshl_b32 s34, s34, 6')
        A('s_add_u32 s34, s34, s33')
        A('v_add_u32 v9, s34, v8')
        A('s_lshl_b32 s34, %s, 6' % S_W)
        A('s_add_u32 s34, s34, s33')
        A('v_add_u32 v8, s34, v8')
        A('s_and_b32 s34, %s, 1' % S_W)
        A('s_lshl_b32 s34, s34, 3')
        A('v_add_u32 v11, s34, v10')
        units = []
        for k in range(KS):
            units.append(('s[12:15]', 'v8', 0, k, [(k * 3 + t, 'v10', 8 * t) for t in range(2)]))
            units.append(('s[12:15]', 'v9', 256, k, [(k * 3 + 2, 'v11', 0)]))
        load_weights(units, KS * 3, 1152, krow, OPT['dw' if wo else 'd2'])
        G.ts()
        G.wait_ready('v6', 'v7')
        A('s_mov_b32 %s, 0' % S_U)
        A('s_mul_i32 s33, s37, %d' % NP)
        A('s_add_u32 s33, s33, s36')
        A('s_mul_i32 %s, s33, 18432' % S_DST)
        A('s_mul_i32 s34, s38, 6144')
        A('s_add_u32 %s, %s, s34' % (S_DST, S_DST))
        A('s_lshl_b32 s34, %s, 10' % S_W)
        A('s_add_u32 %s, %s, s34' % (S_DST, S_DST))
        A('s_add_u32 %s, %s, 0x%x' % (S_DST, S_DST, W_PW if wo else W_PF))
        A('s_lshl_b32 s34, %s, 9' % S_W)
        A('s_sub_u32 s34, 4096, s34')
        A('v_lshlrev_b32 v6, 3, v1')
        A('v_add_u32 v6, s34, v6')
        A('s_lshl_b32 s33, s33, 2')
        A('s_add_u32 s33, s33, %s' % S_W)
        A('s_mul_i32 %s, s33, %d' % (S_SRC, KS * 256))
        A('s_add_u32 %s, %s, 0x%x' % (S_SRC, S_SRC, W_O if wo else W_ACT))
        A('s_lshl_b32 s33, s36, 2')
        A('s_add_u32 s33, s33, %s' % S_W)
        A('s_lshl_b32 s34, s37, 2')
        A('s_add_u32 s34, s34, s38')
        A('s_lshl_b32 s34, s34, 4')
        A('s_add_u32 %s, s34, s33' % S_FLG)
        A('s_add_u32 %s, %s, %d' % (S_FLG, S_FLG, F_WO if wo else F_F2))
        A('s_lshl_b32 %s, %s, 7' % (S_FLG, S_FLG))
        if wo:
            A('s_lshl_b32 s33, s33, 3')
            A('s_add_u32 s33, s33, %d' % F_ATT)
            A('v_min_u32 v4, 7, v1')
        else:
            A('s_mul_i32 s33, s33, 6')
            A('s_and_b32 s33, s33, -4')
            A('s_mul_i32 s34, s37, 160')
            A('s_add_u32 s33, s33, s34')
            A('s_add_u32 s33, s33, %d' % F_F1)
            A('v_min_u32 v4, 7, v1')
        A('v_add_u32 v4, s33, v4')
        A('v_lshlrev_b32 v4, 7, v4')
        hp = OPT['hp'] and not wo
        if hp:
            second(SEG_ACT, SEG_PF)
        if OPT['sd'] & (1 if wo else 2):
            A('v_lshlrev_b32 v0, 4, v1')
            for i in range(4):
                A('v_mov_b32 v%d, 0x%x' % (60 + i, SENT))
            for g in range(OPT['sl' if wo else 'sf'], 63 if hp else 64):
                if hp:
                    A('s_cmp_eq_u32 s56, 0')
                    A('s_cselect_b32 s34, %d, s52' % (g * SEG_PF))
                    A('s_add_u32 s34, s34, %s' % S_DST)
                else:
                    A('s_add_u32 s34, %s, %d' % (S_DST, g * (SEG_PW if wo else SEG_PF)))
                A('buffer_store_dwordx4 v[60:63], v0, %s, s34 offen sc1' % WS)
                A('buffer_store_dwordx2 v[60:61], v6, %s, s34 offen sc1' % WS)
        if hp:
            assert OPT['sd'] & 2 and OPT['h0'] < OPT['sf'] < 63
            A('s_waitcnt vmcnt(0)')
            publish(S_FLG, S_U)
            doze()
            A('v_add_u32 v4, s33, v4')

        def epi(VQ):
            for i in range(4):
                cvt(60 + i, 8 + 2 * i)
            VQ.op('st', 'buffer_store_dwordx4 v[60:63], v0, %s, %s offen sc1' % (WS, S_DST))
            for i in range(2):
                cvt(64 + i, 16 + 2 * i)
            VQ.op('st', 'buffer_store_dwordx2 v[64:65], v6, %s, %s offen sc1' % (WS, S_DST))
        if wo:
            gemm(name, 32, 3, 1, 8, 8192, 32768, 1, SEG_O, SEG_PW, [0, 8, 16, 24], OPT['pk'], 8, 6, (), epi, late=16)
        else:
            gemm(name, 36, 3, 1, 9, 9216, 65536, 1, SEG_ACT, SEG_PF, [0, 9, 18, 27], OPT['pk'], 8, 6, (), epi, late=18)

    def role_am():
        SMF = 'v_smfmac_f32_16x16x64_bf16'
        IDX, SEL, MX, LX, AX, AQ = 6, 10, 12, 13, 13, 17
        QF, KF, VF, MF, SX, PB, O, KA, VA, KM, SM, PM, VP, OM = 24, 40, 72, 88, 124, 132, 136, 152, 160, 168, 184, 188, 192, 196
        L_QK, L_M, L_KM, L_VM = 0, 16384, 24576, 28672

        def FR(n, sub=None):
            k, b = ('a', 8 * n) if n < 32 else ('v', 224 + 8 * (n - 32))
            return vr(b, 8, k) if sub is None else vr(b + 2 * sub, 2, k)
        G.srd(16, G.P_WK, 576 * 8192)
        G.srd(20, G.P_WV, 576 * 8192)
        A('v_lshlrev_b32 v0, 4, v1')
        A('s_lshl_b32 s36, s35, 2')
        A('s_add_u32 s36, s36, %s' % S_W)
        A('s_mul_i32 s30, %s, 36864' % S_W)
        A('v_lshrrev_b32 v7, 2, v1')
        A('v_and_b32 v5, 3, v1')
        A('v_lshlrev_b32 v8, 13, v7')
        A('v_lshl_add_u32 v8, v5, 4, v8')
        A('s_lshl_b32 s33, s36, 6')
        A('v_add_u32 v8, s33, v8')
        VQ = Q(A, 'vmcnt')

        def dma(n):
            for i in range(4):
                A('s_add_u32 m0, s30, %d' % ((n % 9) * 4096 + i * 1024))
                if i:
                    A('s_add_u32 s31, s31, %d' % (16 * 8192))
                elif n % 9 < 8:
                    A('s_xor_b32 s31, %s, %d' % (S_W, n % 9))
                    A('s_lshl_b32 s31, s31, 19')
                else:
                    A('s_mov_b32 s31, %d' % (8 << 19))
                VQ.op(n, 'buffer_load_dwordx4 v8, %s, s31 offen lds' % ('s[16:19]', 's[20:23]')[n // 9])
        A('s_mov_b32 s51, 0x%x' % SENT)
        for i in range(4):
            A('v_mov_b32 v%d, s51' % (16 + i))
        A('s_mul_i32 s33, s36, 4608')
        A('s_add_u32 s33, s33, 0x%x' % W_ME)
        for o in (0, 1024, 2048, 3072, 3584):
            VQ.op('z', 'buffer_store_dwordx4 v[16:19], v0, %s, s33 offen offset:%d sc1' % (WS, o))
        for n in range(OPT['da']):
            dma(n)
        A('v_lshrrev_b32 v3, 5, v1')
        A('v_bfe_u32 v4, v1, 4, 1')
        A('v_lshl_add_u32 v9, v3, 3, v4')
        A('v_and_b32 v7, 3, v7')
        A('v_lshl_add_u32 v9, v7, 1, v9')
        A('v_lshlrev_b32 v9, 7, v9')
        A('v_lshl_add_u32 v9, v5, 3, v9')
        A('v_add_u32 v9, s30, v9')
        VQ.wait('z')
        A('s_barrier')
        A('s_cmp_lg_u32 %s, 0' % S_W)
        A('s_cbranch_scc1 AM_NA')
        A('v_mov_b32 v3, 1')
        A('v_mov_b32 v7, %d' % (D_CBAR * 4))
        A('s_mov_b64 exec, 1')
        A('buffer_atomic_add v3, v7, %s, 0 offen sc1' % G.DBG)
        A('s_mov_b64 exec, -1')
        A.label('AM_NA')
        for n in range(18):
            VQ.wait(n)
            for t in range(2):
                for z in range(2):
                    for u in range(2):
                        A('ds_read_b64_tr_b16 %s, v9 offset:%d' % (FR(2 * n + t, 2 * z + u), (n % 9) * 4096 + z * 2048 + u * 64 + t * 32))
            if n + OPT['da'] < 18:
                A('s_waitcnt lgkmcnt(0)')
                dma(n + OPT['da'])
        A('v_and_b32 v7, 8, v1')
        A('v_mov_b32 v%d, 0x4444' % IDX)
        A('v_mov_b32 v3, 0xeeee')
        A('v_cmp_ne_u32 vcc, 0, v7')
        A('v_cndmask_b32 v%d, v%d, v3, vcc' % (IDX, IDX))
        A('v_and_b32 v7, 7, v1')
        A('v_lshlrev_b32 v4, 2, v4')
        A('v_sub_u32 v7, v7, v4')
        A('v_mov_b32 v5, 0x3f80')
        A('v_mov_b32 v4, 0x3f800000')
        for i in range(2):
            A('v_mov_b32 v%d, 0' % (SEL + i))
            A('v_cmp_eq_u32 vcc, %d, v7' % (2 * i))
            A('v_cndmask_b32 v%d, v%d, v5, vcc' % (SEL + i, SEL + i))
            A('v_cmp_eq_u32 vcc, %d, v7' % (2 * i + 1))
            A('v_cndmask_b32 v%d, v%d, v4, vcc' % (SEL + i, SEL + i))
        A('v_and_b32 v7, 15, v1')
        A('v_lshrrev_b32 v5, 4, v1')
        A('v_lshlrev_b32 v5, 2, v5')
        A('v_sub_u32 v7, v7, v5')
        for r in range(4):
            A('v_cmp_le_i32 s[%d:%d], %d, v7' % (52 + 2 * r, 53 + 2 * r, r))
        A('v_mov_b32 v3, %s' % G.fbits(-1e9 * G.LOG2E))
        A('v_mov_b32 v%d, 0' % (PB + 2))
        A('v_mov_b32 v%d, 0' % (PB + 3))
        A('s_mov_b32 s50, %s' % G.fbits(G.LOG2E / math.sqrt(128.0)))
        A('s_add_u32 s45, s36, %d' % F_ATT)
        A('s_lshl_b32 s45, s45, 7')
        A('s_lshl_b32 s41, s35, 21')
        A('s_lshl_b32 s33, %s, 11' % S_W)
        A('s_add_u32 s41, s41, s33')
        A('s_add_u32 s41, s41, 0x%x' % W_QKV)
        A('s_add_u32 s46, s33, 8192')
        A('s_lshl_b32 s42, s36, 10')
        A('s_and_b32 s37, %s, 1' % S_W)
        A('s_lshl_b32 s33, s37, 17')
        A('s_add_u32 s42, s42, s33')
        A('s_add_u32 s42, s42, 0x%x' % W_O)
        A('s_lshl_b32 s43, %s, 10' % S_W)
        A('v_add_u32 v8, s43, v0')
        A('v_add_u32 v%d, s43, v8' % AQ)
        for j in range(1, 4):
            A('v_xor_b32 v%d, %d, v8' % (AX + j, 1024 * j))
            A('v_xor_b32 v%d, %d, v%d' % (AQ + j, 2048 * j, AQ))
        A('s_mov_b32 s43, 0x%x' % W_ME)
        A('s_and_b32 s44, s35, 8')
        A('s_mul_i32 s44, s44, 3')
        A('s_add_u32 s44, s44, s35')
        A('s_and_b32 s44, s44, 0x27')
        A('s_lshl_b32 s33, %s, 3' % S_W)
        A('s_add_u32 s44, s44, s33')
        A('s_lshl_b32 s44, s44, 7')
        A('s_mov_b32 s40, 0')
        A('s_waitcnt lgkmcnt(0)')
        A('v_and_b32 v9, 0x300, v0')
        A('v_and_b32 v4, 7, v1')
        A('v_lshl_add_u32 v9, v4, 5, v9')
        A('v_and_b32 v4, 8, v1')
        A('v_lshl_add_u32 v9, v4, 1, v9')
        G.ts()
        G.wait_ready('v4', 'v5')
        A('v_mov_b32 v4, %d' % (D_CBAR * 4))
        G.spin('v4', 'v5', '64', 25, G.DBG, op='ushort')
        A('v_and_b32 v4, 0x23, v1')
        A('v_lshlrev_b32 v4, 2, v4')
        A('s_lshl_b32 s33, s35, 8')
        A('s_add_u32 s33, s33, %d' % (F_QKV * 128))
        G.spin('v4', 'v5', '2', 24, WS, 's33')
        A('v_mov_b32 v4, s44')
        A('s_barrier')

        def loads():
            o = ['s_add_u32 s47, s41, s46', 's_lshl_b32 m0, %s, 11' % S_W]
            o += ['buffer_load_dwordx4 v0, %s, s41 offen offset:%d sc1 lds' % (WS, T * 1024) for T in range(2)]
            o += ['s_add_u32 m0, m0, 8192', 's_xor_b32 s48, s47, 4096']
            o += ['buffer_load_dwordx4 v0, %s, s47 offen offset:%d sc1 lds' % (WS, T * 1024) for T in range(2)]
            o += ['buffer_load_dwordx4 %s, v0, %s, s%d offen offset:%d sc1' % (vr(VF + 4 * i, 4), WS, 47 + (i >> 1), 2048 + (i & 1) * 1024) for i in range(4)]
            return o + ['s_add_u32 s41, s41, %d' % SEG_QKV]

        def xred(r, t, op, sw):
            return ['v_mov_b32 v%d, v%d' % (t, r), 'v_permlane%d_swap_b32 v%d, v%d' % (sw, r, t), '%s v%d, v%d, v%d' % (op, r, r, t)]

        def emit(l):
            for x in l:
                A(x)

        def poll():
            A('v_mov_b32 v5, 0')
            A('s_mov_b64 exec, 1')
            A('buffer_atomic_or v5, v4, %s, s43 offen sc0 sc1' % WS)
            A('s_mov_b64 exec, -1')
        SP = 212

        def mloads():
            return ['s_lshl_b32 s47, %s, 10' % S_W, 's_add_u32 s47, s47, s43', 's_add_u32 s48, s47, 4096',
                    'buffer_load_dwordx4 %s, v9, %s, s47 offen sc1' % (vr(SP, 4), WS), 's_add_u32 s47, s43, 8192',
                    'buffer_load_dwordx4 %s, v9, %s, s48 offen sc1' % (vr(SP + 4, 4), WS),
                    'buffer_load_dwordx4 %s, v9, %s, s47 offen sc1' % (vr(SP + 8, 4), WS)]

        def bound():
            A('s_add_u32 s27, s27, 1')
            A('s_cmp_ge_u32 s27, %d' % G.SPIN_MAX)
            A('s_cbranch_scc1 FAIL')

        def step(T):
            P = 'AM%d_' % T
            A.label(P + 'L')
            A('s_barrier')
            LQ = Q(A, 'lgkmcnt')
            for j in range(4):
                LQ.op(j, 'ds_read_b128 %s, v%d offset:%d' % (vr(QF + 4 * j, 4), AQ + j, L_QK + 1024 * T))
                for tk in range(T + 1):
                    LQ.op(j, 'ds_read_b128 %s, v%d offset:%d' % (vr(KF + 8 * j + 4 * tk, 4), AQ + j, L_QK + 8192 + 1024 * tk))
            for r in range(KA, KA + 16, 2):
                A('v_mov_b64 %s, 0' % vr(r, 2))
            for j in range(4):
                LQ.wait(j)
                for tk in range(T + 1):
                    d = vr(SX + 4 * tk, 4)
                    A('%s %s, %s, %s, %s' % (M32, d, vr(KF + 8 * j + 4 * tk, 4), vr(QF + 4 * j, 4), '0' if j == 0 else d))
            D = SX + 4 * T
            if T:
                A('v_max3_f32 v%d, v%d, v%d, v%d' % (MX, SX, SX + 1, SX + 2))
            for r in range(4):
                A('v_cndmask_b32 v%d, v3, v%d, s[%d:%d]' % (D + r, D + r, 52 + 2 * r, 53 + 2 * r))
            if T:
                A('v_max3_f32 v%d, v%d, v%d, v%d' % (MX, MX, SX + 3, D))
            A('v_max3_f32 v%d, v%d, v%d, v%d' % (MX, MX if T else D, D + 1, D + 2))
            A('v_max_f32 v%d, v%d, v%d' % (MX, MX, D + 3))
            emit(xred(MX, LX, 'v_max_f32', 16) + xred(MX, LX, 'v_max_f32', 32))
            for r in range(SX, D + 4):
                A('v_sub_f32 v%d, v%d, v%d' % (r, r, MX))
            for r in range(SX, D + 4):
                A('v_exp_f32 v%d, v%d' % (r, r))
            for i in range(2 * T + 2):
                cvt(PB + i, SX + 2 * i)
            sm = ['v_pk_add_f32 %s, %s, %s' % (vr(SX, 2), vr(SX, 2), vr(SX + 2 * i, 2)) for i in range(1, 2 * T + 2)]
            sm += ['v_add_f32 v%d, v%d, v%d' % (LX, SX, SX + 1)] + xred(LX, SX, 'v_add_f32', 16) + xred(LX, SX, 'v_add_f32', 32)
            A('s_waitcnt vmcnt(5)')
            for i in range(4):
                A('%s %s, %s, %s, 0' % (M32, vr(O + 4 * i, 4), vr(VF + 4 * i, 4), vr(PB, 4)))
                emit(sm[2 * i:2 * i + 2])
            emit(sm[8:])
            A('s_mov_b32 s27, 0')
            A('s_waitcnt vmcnt(0)')
            publish('s45', 's40')
            A('s_branch %sC' % P)
            A.label(P + 'X')
            for i in range(12):
                A('v_cmp_eq_u32 %s, s51, v%d' % ('s[38:39]' if i else 'vcc', SP + i))
                if i:
                    A('s_or_b64 vcc, vcc, s[38:39]')
            A('s_cbranch_vccz %sK' % P)
            A('s_cmp_ge_u32 s40, %d' % OPT['amd'])
            A('s_cbranch_scc1 %sM' % P)
            A.label(P + 'R')
            poll()
            bound()
            A('s_waitcnt vmcnt(0)')
            A('v_readfirstlane_b32 s49, v5')
            A('s_cmp_eq_u32 s49, s51')
            A('s_cbranch_scc1 %sR' % P)
            A.label(P + 'M')
            emit(mloads())
            bound()
            A('s_waitcnt vmcnt(0)')
            A.label(P + 'C')
            a, b, c = SP, SP + 4, SP + 8
            mx = 'v_maximum3_f32 v%d, v%%d, v%%d, v%%d' % SM
            A('ds_write_b128 v8, %s offset:%d' % (vr(a, 4), L_M))
            A(mx % (a, a + 1, a + 2))
            A('ds_write_b128 v8, %s offset:%d' % (vr(b, 4), L_M + 4096))
            A(mx % (SM, a + 3, b))
            A(mx % (SM, b + 1, b + 2))
            A(mx % (SM, b + 3, c))
            A(mx % (SM, c + 1, c + 2))
            A('v_cmp_u_f32 vcc, v%d, v%d' % (SM, c + 3))
            A('s_cbranch_vccnz %sX' % P)
            A.label(P + 'K')
            G.tsx(1, 's40')
            G.ts()
            LQ = Q(A, 'lgkmcnt')
            F = {}

            def L(tag, text):
                return lambda: LQ.op(tag, text)
            oth = [(1, 0), (1, 4), (2, 0), (2, 4), (3, 0), (3, 4)]
            rd = [L(j + u, 'ds_read_b128 %s, v%d offset:%d' % (vr(MF + 4 * (j + u), 4), AX + j, L_M + 1024 * u)) for j, u in oth]
            ks = [(0, f, t) for f in (8, 0, 4, 1, 5, 2, 6) for t in range(2)] + [(0, f, t) for t in range(2) for f in (3, 7)]
            vs = [(1, f, t) for f in (8, 0, 4, 1, 5, 2, 6) for t in range(2)] + [(1, f, t) for t in range(2) for f in (3, 7)]
            seq = ks[:6] + vs[:2] + ks[6:] + vs[2:4] + ['T0'] + vs[4:5] + ['T1'] + vs[5:8] + ['S0'] + vs[8:16] + ['S1', 'S2'] + vs[16:17] + ['S3'] + vs[17:]
            F[0] = ['s_waitcnt lgkmcnt(0)', 's_barrier'] + rd[:1]
            F[1], F[2] = rd[1:4], rd[4:] + ['s_add_u32 s40, s40, 1']
            ld = loads() + ['s_add_u32 s43, s43, %d' % SEG_ME] + mloads()
            k = 3
            for x in ld:
                F.setdefault(k - (x[0] == 's'), []).append(x)
                k += OPT['sp'] * (x[0] == 'b')
            for i in range(4):
                F.setdefault(1 + i, []).append('v_mov_b64 %s, %s' % (vr(MF + 16 * (i >> 1) + 2 * (i & 1), 2), vr(SP + 2 * i, 2)))
            ck = [lambda r=KA + 4 * t + i, q=KA + 4 * t + 2 * i: cvt(r, q) for t in range(2) for i in range(2)]
            cm = [lambda i=i: cvt(KM + i, KM + 2 * i) for i in range(4)]
            for k, x in ((20, ck[:1]), (21, ck[1:2]), (22, ck[2:]), (25, cm[:2]), (26, cm[2:]),
                         (27, [L('kw', 'ds_write_b128 v8, %s offset:%d' % (vr(KM, 4), L_KM))]), (32, [lambda: LQ.wait('kw'), 's_barrier']),
                         (33, [L('k%d' % j, 'ds_read_b128 %s, v%d offset:%d' % (vr(KM + 4 * j, 4), AX + j, L_KM)) for j in range(1, 4)]),
                         (39, [lambda: cvt(VA, VA)]), (40, [lambda: cvt(VA + 1, VA + 2)])):
                F[k] = x + F.get(k, [])
            for i, x in enumerate(seq):
                if x[0] == 'T':
                    t = int(x[1])
                    A('%s %s, %s, %s, 0' % (M16, vr(KM + 4 * t, 4), vr(KA + 4 * t, 2), vr(SEL, 2)))
                elif x[0] == 'S':
                    j = int(x[1])
                    LQ.wait('k%d' % j)
                    A('%s %s, %s, %s, %s' % (M32, vr(SM, 4), vr(KM + 4 * j, 4), vr(QF + 4 * j, 4), vr(SM, 4) if j else '0'))
                else:
                    kind, f, t = x
                    LQ.wait(f)
                    A('%s %s, %s, %s, v%d' % (SMF, vr((KA, VA)[kind] + 4 * t, 4), vr(SP + f if i < 8 else MF + 4 * f, 4), FR(18 * kind + 2 * f + t), IDX))
                for y in F.pop(i, []):
                    y() if callable(y) else A(y)
            assert not F
            s, m, a = SM, SX, SX + 2
            emit(['v_max3_f32 v%d, v%d, v%d, v%d' % (m, s, s + 1, s + 2), 'v_max_f32 v%d, v%d, v%d' % (m, m, s + 3)])
            x = xred(m, a, 'v_max_f32', 16)
            A(x[0])
            cvt(VA + 2, VA + 4)
            cvt(VA + 3, VA + 6)
            A('ds_write_b128 v8, %s offset:%d' % (vr(VA, 4), L_VM))
            emit(x[1:])
            emit(['v_mul_f32 v%d, s50, v%d' % (m, m), 'v_max_f32 v%d, v%d, v%d' % (m, m, MX)])
            emit(['v_fma_f32 v%d, v%d, s50, -v%d' % (r, r, m) for r in range(s, s + 4)])
            A('v_sub_f32 v%d, v%d, v%d' % (a, MX, m))
            emit(['v_exp_f32 v%d, v%d' % (r, r) for r in range(s, s + 4)])
            A('s_waitcnt lgkmcnt(0)')
            A('s_barrier')
            A('ds_read_b128 %s, v%d offset:%d' % (vr(VP, 4), AX + 1, L_VM))
            A('v_exp_f32 v%d, v%d' % (a, a))
            cvt(PM, s)
            cvt(PM + 1, s + 2)

            def pv(i):
                A('%s %s, %s, %s, 0' % (M16, vr(OM + 4 * i, 4), vr((VA, VP)[i >> 1] + 2 * (i & 1), 2), vr(PM, 2)))
            A('v_pk_add_f32 %s, %s, %s' % (vr(s, 2), vr(s, 2), vr(s + 2, 2)))
            A('v_add_f32 v%d, v%d, v%d' % (m, s, s + 1))
            pv(0)
            x = xred(m, a + 1, 'v_add_f32', 16)
            A(x[0])
            pv(1)
            emit(x[1:])
            emit(['v_fmac_f32 v%d, v%d, v%d' % (m, a, LX), 'v_rcp_f32 v%d, v%d' % (m, m)])
            A('s_waitcnt lgkmcnt(0)')
            pv(2)
            A('v_mul_f32 v%d, v%d, v%d' % (a, a, m))
            pv(3)
            A('s_xor_b32 s47, s42, 1024')
            for j in range(2):
                rs = range(8 * j, 8 * j + 8, 2)
                emit(['v_pk_mul_f32 %s, %s, %s op_sel_hi:[1,0]' % (vr(O + r, 2), vr(O + r, 2), vr(a, 2)) for r in rs])
                emit(['v_pk_fma_f32 %s, %s, %s, %s op_sel_hi:[1,0,1]' % (vr(O + r, 2), vr(OM + r, 2), vr(m, 2), vr(O + r, 2)) for r in rs])
                for i in range(4):
                    cvt(KM + 4 * j + i, O + 8 * j + 2 * i)
                A('buffer_store_dwordx4 %s, v0, %s, %s offen sc1' % (vr(KM + 4 * j, 4), WS, ('s42', 's47')[j]))
            G.tsx(2, 's40', 1)
            A('s_add_u32 s42, s42, %d' % SEG_O)
            A('s_waitcnt vmcnt(9)')
            A('s_cmp_lt_u32 s40, 64')
            A('s_cbranch_scc1 %sL' % P)
        emit(loads() + mloads())
        A('s_waitcnt vmcnt(0)')
        A('s_cmp_eq_u32 s37, 0')
        A('s_cbranch_scc1 AM0_L')
        step(1)
        A('s_branch AM_E')
        step(0)
        A.label('AM_E')
        A('s_waitcnt vmcnt(0)')
        publish('s45', 's40')

    A('s_mov_b32 s56, 0')
    A('s_cmp_eq_u32 %s, 1' % S_X)
    A('s_cbranch_scc1 R_LN')
    A('s_sub_u32 s32, %s, 2' % S_X)
    A('s_cmp_lt_u32 %s, 6' % S_T)
    A('s_cbranch_scc1 R_TRIP')
    A('s_and_b32 s37, %s, 1' % S_T)
    A('s_lshr_b32 s33, %s, 1' % S_T)
    A('s_mul_i32 s34, s32, 5')
    A('s_add_u32 s36, s34, s33')
    A('s_sub_u32 s36, s36, 3')
    A('s_cmp_lt_u32 %s, 16' % S_T)
    A('s_cbranch_scc1 R_QKV')
    A('s_lshl_b32 s36, s32, 2')
    A('s_add_u32 s36, s36, s33')
    A('s_sub_u32 s36, s36, 8')
    A('s_cmp_lt_u32 %s, 24' % S_T)
    A('s_cbranch_scc1 R_F1')
    A('s_add_u32 s35, s34, %s' % S_T)
    A('s_sub_u32 s35, s35, 24')
    A('s_cmp_lt_u32 %s, 29' % S_T)
    A('s_cbranch_scc1 R_AM')
    A('s_cmp_lt_u32 s32, 4')
    A('s_cbranch_scc1 R_TRIP1')
    A('s_add_u32 s35, s32, 26')
    A('s_mov_b32 s36, s35')
    A('s_cmp_eq_u32 %s, 31' % S_T)
    A('s_cbranch_scc1 R_AM')
    A('s_branch R_QKV')
    A.label('R_F1')
    role_f1()
    G.finish()
    A.label('R_TRIP1')
    A('s_sub_u32 s38, %s, 29' % S_T)
    A('s_and_b32 s33, s32, 1')
    A('s_lshr_b32 s32, s32, 1')
    A('s_add_u32 s32, s32, 6')
    A('s_branch R_TRIP2')
    A.label('R_TRIP')
    A('s_cmp_ge_u32 %s, 3' % S_T)
    A('s_cselect_b32 s33, 1, 0')
    A('s_cselect_b32 s38, 3, 0')
    A('s_sub_u32 s38, %s, s38' % S_T)
    A.label('R_TRIP2')
    A('s_and_b32 s34, s32, 6')
    A('s_add_u32 s34, s34, s33')
    A('s_lshl_b32 s34, s34, 1')
    A('s_and_b32 s32, s32, 1')
    A('s_add_u32 s34, s34, s32')
    A('s_mul_i32 s30, s34, 3')
    A('s_add_u32 s30, s30, s38')
    A('s_add_u32 s30, s30, 48')
    pull()
    if OPT['pre']:
        A('s_cmp_eq_u32 s38, 1')
        A('s_cselect_b32 s12, s%d, s%d' % (G.P_WK, G.P_WQ))
        A('s_cselect_b32 s13, s%d, s%d' % (G.P_WK + 1, G.P_WQ + 1))
        A('s_cmp_eq_u32 s38, 2')
        A('s_cselect_b32 s12, s%d, s12' % G.P_WV)
        A('s_cselect_b32 s13, s%d, s13' % (G.P_WV + 1))
        A('s_mov_b32 s14, %d' % (576 * 8192))
        A('s_mov_b32 s15, 0x20000')
        A('v_lshrrev_b32 v5, 4, v1')
        A('v_and_b32 v6, 15, v1')
        A('v_lshlrev_b32 v6, 4, v6')
        A('v_lshl_add_u32 v7, v5, 10, v6')
        A('v_lshl_add_u32 v6, v5, 13, v6')
        A('s_lshl_b32 s30, s34, 2')
        A('s_add_u32 s30, s30, %s' % S_W)
        A('s_mul_i32 s30, s30, %d' % (9 * 8192))
        A('s_add_u32 s31, s30, 4096')
        for i in range(18):
            A('buffer_load_dwordx4 %s, v7, s[12:15], s30 offen offset:256' % vr(12 + 4 * i, 4))
            A('s_add_u32 s30, s30, 4096')
        for i in range(3):
            A('buffer_load_dwordx4 %s, v6, s[12:15], s31 offen offset:3840' % vr(84 + 4 * i, 4))
            A('s_add_u32 s31, s31, %d' % (3 * 8192))
        A('s_waitcnt vmcnt(0)')
    A('s_bfe_u32 s37, s34, 0x10001')
    A('s_lshr_b32 s36, s34, 2')
    A('s_bitcmp1_b32 s34, 0')
    A('s_cbranch_scc1 R_WO')
    A.label('R_F2')
    role_part('F2')
    G.finish()
    A.label('R_WO')
    role_part('WO')
    G.finish()
    A.label('R_QKV')
    role_qkv()
    if OPT['hp']:
        A('s_cmp_lt_u32 s35, 64')
        A('s_cbranch_scc1 R_FIN')
        A('s_lshr_b32 s36, s35, 3')
        A('s_sub_u32 s36, s36, 8')
        A('s_bfe_u32 s37, s35, 0x10002')
        A('s_mov_b32 s56, 1')
        A('s_waitcnt vmcnt(0) lgkmcnt(0)')
        A('s_barrier')
        A('s_branch R_F1')
        A.label('R_FIN')
    role_fin()
    G.finish()
    A.label('R_LN')
    A('s_mov_b32 s35, %s' % S_T)
    ln1()
    A('s_sub_u32 s35, %s, 24' % S_T)
    A('s_cbranch_scc0 R_LN2')
    if OPT['hp']:
        G.wait_ready('v6', 'v7')
        A('v_mov_b32 v6, %d' % (128 * F_F1))
        G.spin('v6', 'v7', str(OPT['hg']), 28, nap=(64,))
        A('s_and_b32 s36, %s, 3' % S_T)
        A('s_bfe_u32 s37, %s, 0x10002' % S_T)
        A('s_lshr_b32 s38, %s, 3' % S_T)
        A('s_mov_b32 s56, 1')
        A('s_barrier')
        A('s_branch R_F2')
    G.finish()
    A.label('R_LN2')
    role_ln2()
    G.finish()
    A.label('R_AM')
    role_am()
    G.finish()
```

```python
import math
from asmlib import *
from layout import *
from chain import Q

M16 = 'v_mfma_f32_16x16x16_bf16'
M32 = 'v_mfma_f32_16x16x32_bf16'


def roles(G):
    A, WS, OPT = G.A, G.WS, G.OPT
    S_W, S_X, S_T = G.S_W, G.S_X, G.S_T

    def cvt(d, s, s2=None):
        A('v_cvt_pk_bf16_f32 v%d, v%d, v%d' % (d, s, s + 1 if s2 is None else s2))

    def publish(soff, sval, q=None, d=1):
        G.tsx(3, sval, d)
        A('v_mov_b32 v7, %s' % sval)
        A('s_mov_b64 exec, 1')
        t = 'buffer_store_dword v7, off, %s, %s sc1' % (WS, soff)
        if q is None:
            A(t)
        else:
            q.op('pub', t)
        A('s_mov_b64 exec, -1')

    def wreg(f, nf, sub=None):
        k, b = ('a', 4 * f) if f < 64 else ('v', 256 - 4 * (nf - f))
        return vr(b, 4, k) if sub is None else vr(b + 2 * sub, 2, k)

    def load_weights(units, nf, stride, krow, NS=20):
        VQ = Q(A, 'vmcnt')
        A('s_mul_i32 s30, %s, %d' % (S_W, 20 * 2048))

        def dma(n):
            sd, vo, col, k, _ = units[n]
            for i in range(2):
                A('s_add_u32 m0, s30, %d' % ((n % NS) * 2048 + i * 1024))
                A('s_mov_b32 s31, %d' % ((32 * k + 16 * i) * stride + col))
                VQ.op(n, 'buffer_load_dwordx4 %s, %s, s31 offen lds' % (vo, sd))
        for n in range(min(NS, len(units))):
            dma(n)
        GR = 3 if NS > 5 else 1
        usep = 256 if krow == 'N' else 1024
        for n0 in range(0, len(units), GR):
            ns = list(range(n0, min(n0 + GR, len(units))))
            VQ.wait(ns[-1])
            for n in ns:
                for f, va, off in units[n][4]:
                    for u in range(2):
                        A('ds_read_b64_tr_b16 %s, %s offset:%d' % (wreg(f, nf, u), va, (n % NS) * 2048 + u * usep + off))
            A('s_waitcnt lgkmcnt(0)')
            for n in ns:
                if n + NS < len(units):
                    dma(n + NS)

    def w_lane(stride, krow, ccol):
        A('v_lshrrev_b32 v7, 2, v1')
        A('v_mul_u32_u24 v8, %d, v7' % stride)
        A('v_and_b32 v6, 3, v1')
        A('v_lshl_add_u32 v8, v6, 4, v8')
        A('v_lshrrev_b32 v5, 4, v1')
        A('v_and_b32 v7, 3, v7')
        A('v_lshl_add_u32 v7, v5, %d, v7' % (3 if krow == 'N' else 2))
        A('v_lshlrev_b32 v10, 6, v7')
        A('v_lshl_add_u32 v10, v6, %d, v10' % (4 if ccol == 'N' else 3))
        A('s_mul_i32 s30, %s, %d' % (S_W, 20 * 2048))
        A('v_add_u32 v10, s30, v10')

    def pull():
        if not OPT['pu']:
            return
        A('s_lshl_b32 s30, s30, 2')
        A('s_add_u32 s30, s30, %s' % S_W)
        A('s_lshl_b32 s30, s30, 13')
        A('s_add_u32 s31, s30, %d' % (384 << 13))
        A('v_lshlrev_b32 v5, 7, v1')
        A('v_add_u32 v6, s31, v5')
        A('v_add_u32 v5, s30, v5')
        for i, P in enumerate((G.P_WQ, G.P_WK, G.P_WV, G.P_WO, G.P_WG, G.P_WU, G.P_WD)[:4 if OPT['pu'] == 1 else 7]):
            G.srd(12, P, 576 * (8192 if i < 4 else 9216))
            if i == 4 and OPT['pu'] == 2:
                A('s_waitcnt vmcnt(0)')
            for j in range(2):
                A('buffer_load_dword v%d, v%d, s[12:15], 0 offen' % (12 + 2 * i + j, 5 + j))
        A('s_waitcnt vmcnt(0)')

    def gate(k):
        if k:
            G.wait_ready('v6', 'v7')
            A('v_mov_b32 v6, %d' % (128 * (F_XN + 127, F_QKV)[k - 1]))
            G.spin('v6', 'v7', str(k), 26, nap=(8,))

    S_U, S_DST, S_SRC, S_LDS, S_NEED, S_FLG, S_PUB = ['s%d' % i for i in range(40, 47)]

    def second(dsrc, ddst, fo=65536):
        A('s_add_u32 s57, s56, 63')
        h0 = OPT['h0']
        A('s_mul_i32 %s, s56, %d' % (S_U, h0))
        A('s_mul_i32 s58, s56, %d' % (62 - h0))
        A('s_add_u32 s58, s58, 1')
        A('s_mul_i32 s59, s58, %d' % dsrc)
        A('s_mul_i32 s52, s58, %d' % ddst)
        for r, d in ((S_SRC, h0 * dsrc), (S_DST, h0 * ddst), (S_FLG, fo)):
            A('s_mul_i32 s33, s56, %d' % d)
            A('s_add_u32 %s, %s, s33' % (r, r))

    def doze():
        A('s_mul_i32 s48, s56, %d' % OPT['h0'])
        G.spin('v4', 'v5', 's48', 27, nap=(16,))

    def gemm(name, KS, NT, TS, ND, WPART, BUF, STEP, dsrc, ddst, checks, pubk, NB, PF, swaps, epi, mid=None, late=None, skew=0):
        NR = KS * TS
        NF = NR + skew
        nf = KS * NT
        ACC = 8
        RING = ACC + 4 * NT * TS
        always = not checks
        END = 's57' if (OPT['hp'] and name in ('F1', 'F2')) or (OPT['hw'] and name == 'WO') else '64'
        one = STEP == 1
        if END != '64':
            STEP, dsrc, ddst = 's58', 's59', 's52'
        A('v_lshlrev_b32 v0, 4, v1')
        A('v_mov_b32 v3, v0')
        A('v_mov_b32 v5, 0')
        A('s_mul_i32 %s, %s, %d' % (S_LDS, S_W, WPART))
        A('s_mov_b32 %s, 0' % S_PUB)
        un = OPT['un'] and late is not None
        ec = 0 if always else OPT['ec']
        if un and OPT['nl']:
            late = 99
        if un:
            A('v_and_b32 v76, 3, v1')
            A('v_cmp_eq_u32 s[54:55], %s, v76' % S_W)
            A('v_lshlrev_b32 v76, 2, v76')
            A('v_add_u32 v76, 0x20000, v76')
        A('s_barrier')
        if un:
            A('ds_write_b32 v76, v5')

        def dma(i, VQ):
            if i % 4 == 0:
                A('s_add_u32 m0, %s, %d' % (S_LDS, i * 1024))
                if i:
                    A('s_add_u32 s47, %s, %d' % (S_SRC, i * 1024))
            VQ.op('dma', 'buffer_load_dwordx4 v0, %s, %s offen offset:%d sc1 lds' % (WS, 's47' if i >= 4 else S_SRC, (i % 4) * 1024))
            if i == ND - 1:
                A('s_add_u32 %s, %s, %s' % (S_SRC, S_SRC, dsrc))
                A('s_xor_b32 %s, %s, %d' % (S_LDS, S_LDS, BUF))

        def poll(VQ):
            VQ.op('poll', 'buffer_load_dword v5, v4, %s, 0 offen sc1' % WS)

        def body(j0, VQ, LQ, issued, nst):
            pieces = {}
            if issued is not None:
                gap = max(1, min(3, (NF - 1 - j0) // ND))
                for i in range(ND):
                    pieces.setdefault(min(j0 + i * gap, NF - 1), []).append(i)
                pollk = max(max(pieces) + 1, NF - (700 // (16 * NT)) * (2 if skew else 1))
            for j in range(j0, NF):
                jf = j if j < NR else j - skew
                tiles = range(NT) if jf < NR - skew else range(NT // 2) if j < NR else range(NT // 2, NT)
                T, k = divmod(jf, KS)
                if issued is None and j in (checks or [0]) and (j > j0 or j == 0):
                    if always:
                        A('s_cmp_lt_u32 %s, 64' % S_NEED)
                        A('s_cbranch_scc1 %s_V%d' % (name, j))
                    else:
                        A('s_cbranch_vccz %s_V%d' % (name, j))
                    variants.append((j, list(VQ.q), list(LQ.q)))
                    if not always:
                        poll(VQ)
                LQ.wait('f%d' % j)
                b = vr(RING + 4 * (jf % NB), 4)
                fill = []
                if un and issued is not None and issued < late:
                    if j == j0:
                        fill.append(lambda: (A('v_mov_b32 v77, %s' % S_NEED), A('s_mov_b64 exec, s[54:55]'), LQ.op('u', 'ds_write_b32 v76, v77'), A('s_mov_b64 exec, -1')))
                    if j == NF - 1:
                        fill.append(lambda: LQ.op('u', 'ds_read_b32 v77, v76'))
                if j + PF < NR:
                    fill.append(lambda j=j: LQ.op('f%d' % (j + PF), 'ds_read_b128 %s, v3 offset:%d' % (vr(RING + 4 * ((j + PF) % NB), 4), (j + PF) * 1024)))
                for i in pieces.get(j, ()):
                    fill.append(lambda i=i: dma(i, VQ))
                if j == pubk:
                    def pub():
                        L = A.newlabel('NP')
                        A('s_cmp_eq_u32 %s, 0' % S_PUB)
                        A('s_cbranch_scc1 %s' % L)
                        VQ.wait('st')
                        publish(S_FLG, S_U)
                        A('s_mov_b32 %s, 0' % S_PUB)
                        A.label(L)
                        VQ.q.append('pub?')
                    fill.append(pub)
                if issued is not None and not always and j == pollk:
                    fill.append(lambda: poll(VQ))
                if issued is None and ec and j == NF - ec:
                    fill.append(lambda: poll(VQ))
                if mid:
                    fill += mid(j, VQ)
                if issued is None and (j + 1) in checks:
                    fill.append(lambda: A('v_cmp_ge_u32 vcc, %s, v5' % S_NEED))
                for t in tiles:
                    d = vr(ACC + 4 * (T * NT + t), 4)
                    w = wreg(k * NT + t, nf)
                    x, y = (b, w) if t in swaps else (w, b)
                    A('%s %s, %s, %s, %s' % (M32, d, x, y, '0' if k == 0 else d))
                    n = 1 if t < tiles[-1] else len(fill)
                    for f in fill[:n]:
                        f()
                    fill = fill[n:]
                    if j >= NR:
                        epi(VQ, (j - NR) * len(tiles) + t - tiles[0])
            A('v_xor_b32 v3, %d, v3' % BUF)
            epi(VQ)
            G.tsx(2, S_U)
            A('s_add_u32 %s, %s, %s' % (S_DST, S_DST, ddst))
            A('s_add_u32 %s, %s, %s' % (S_U, S_U, STEP))

        def strict(VQ, tag):
            VQ.q = [x for x in VQ.q if x != 'pub?']
            VQ.wait(tag)

        variants = []
        A.label(name + '_S')
        if not always:
            A('s_add_u32 s48, %s, 1' % S_U)
            G.spin('v4', 'v5', 's48', 20)
            G.tsx(0, S_U)
        A.label(name + '_D')
        VQ = Q(A, 'vmcnt')
        for i in range(ND):
            dma(i, VQ)
        A('s_waitcnt vmcnt(0)')
        A.label(name + '_L')
        A('s_barrier')
        G.tsx(1, S_U)
        if OPT['ts']:
            L = A.newlabel('TS')
            if one:
                A('s_cmp_lt_u32 %s, %d' % (S_U, OPT['ts0']))
                A('s_cbranch_scc1 %s' % L)
            G.ts()
            A.label(L)
        LQ = Q(A, 'lgkmcnt')
        for j in range(PF):
            LQ.op('f%d' % j, 'ds_read_b128 %s, v3 offset:%d' % (vr(RING + 4 * (j % NB), 4), j * 1024))
        A('s_add_u32 %s, %s, %s' % (S_NEED, S_U, STEP))
        if not always:
            A('s_cmp_lt_u32 %s, %s' % (S_NEED, END))
            A('s_cselect_b32 %s, %s, -1' % (S_NEED, S_NEED))
            A('v_cmp_ge_u32 vcc, %s, v5' % S_NEED)
        VQ = Q(A, 'vmcnt')
        VQ.q = ['st']
        body(0, VQ, LQ, None, 0)
        if ec:
            A('v_cmp_ge_u32 vcc, %s, v5' % S_NEED)
            A('s_cbranch_vccz %s_E1' % name)
        if not always:
            poll(VQ)
        strict(VQ, 'st')
        publish(S_FLG, S_U)
        if ec:
            A('s_waitcnt vmcnt(1)')
            A('v_cmp_ge_u32 vcc, %s, v5' % S_NEED)
            G.tsx(0, S_U)
            A('s_cbranch_vccz %s_D' % name)
        A('s_cmp_ge_u32 %s, %s' % (S_U, END))
        A('s_cbranch_scc1 %s_E' % name)
        A('s_branch %s_S' % name)
        if ec:
            A.label(name + '_E1')
            G.tsx(0, S_U)
            for i in range(ND):
                dma(i, VQ)
            A('s_waitcnt vmcnt(%d)' % ND)
            publish(S_FLG, S_U)
            A('s_waitcnt vmcnt(1)')
            A('s_branch %s_L' % name)
        if un:
            A.label(name + '_P')
            A('s_waitcnt vmcnt(0)')
            publish(S_FLG, S_U)
            A('s_branch %s_L' % name)
        for j, vq, lq in variants:
            A.label('%s_V%d' % (name, j))
            G.tsx(4, S_NEED)
            VQ = Q(A, 'vmcnt')
            VQ.q = vq
            LQ = Q(A, 'lgkmcnt')
            LQ.q = lq
            body(j, VQ, LQ, j, 0)
            if late is not None and j >= late:
                A('s_waitcnt vmcnt(0)')
                publish(S_FLG, S_U)
            else:
                if un:
                    LQ.wait('u')
                    A('v_cmp_ne_u32 vcc, %s, v77' % S_U)
                    A('s_cbranch_vccnz %s_P' % name)
                strict(VQ, 'dma')
                A('s_mov_b32 %s, 1' % S_PUB)
            A('s_branch %s_L' % name)
        A.label(name + '_E')
        G.ts()

    def red(r, t):
        A('v_add_f32_dpp v%d, v%d, v%d row_ror:8 row_mask:0xf bank_mask:0xf' % (r, r, r))
        A('v_mov_b32 v%d, v%d' % (t, r))
        A('v_permlane16_swap_b32 v%d, v%d' % (r, t))
        A('v_add_f32 v%d, v%d, v%d' % (r, r, t))
        A('v_mov_b32 v%d, v%d' % (t, r))
        A('v_permlane32_swap_b32 v%d, v%d' % (r, t))
        A('v_add_f32 v%d, v%d, v%d' % (r, r, t))

    def oct_lanes(vrow, vfrag, vhalf=None):
        A('v_and_b32 v7, 7, v1')
        A('v_bfe_u32 v6, v1, 3, 1')
        A('v_lshrrev_b32 v5, 4, v1')
        A('v_mul_u32_u24 %s, 1152, v7' % vrow)
        A('v_lshl_add_u32 %s, v6, 6, %s' % (vrow, vrow))
        A('v_lshl_add_u32 %s, v5, 4, %s' % (vrow, vrow))
        A('v_lshl_add_u32 v7, v5, 4, v7')
        A('v_lshlrev_b32 v6, 10, v6')
        A('v_lshl_add_u32 %s, v7, 4, v6' % vfrag)
        if vhalf:
            A('v_lshl_add_u32 %s, v7, 3, v6' % vhalf)

    def ln1():
        G.srd(20, G.P_X, 2048 * 1152)
        oct_lanes('v3', 'v4')
        A('s_lshl_b32 s36, s35, 2')
        A('s_add_u32 s36, s36, %s' % S_W)
        A('s_mul_i32 s32, s36, %d' % (8 * 1152))
        F = 52
        VQ = Q(A, 'vmcnt')
        for X in (16, 124):
            for i in range(9):
                VQ.op((X, i), 'buffer_load_dwordx4 %s, v3, s[20:23], s32 offen offset:%d' % (vr(X + 4 * i, 4), i * 128))
            A('s_add_u32 s32, s32, %d' % (1024 * 1152))
        A('s_lshr_b32 s33, s36, 1')
        A('s_mul_i32 s33, s33, 18432')
        A('s_and_b32 s34, %s, 1' % S_W)
        A('s_lshl_b32 s34, s34, 7')
        A('s_add_u32 s33, s33, s34')
        A('s_add_u32 s33, s33, 0x%x' % W_XN)
        A('v_mov_b32 v6, %d' % (D_READY * 4))
        for X in (16, 124):
            for i in range(9):
                VQ.wait((X, i))
                for j in range(4):
                    r = X + 4 * i + j
                    A('v_lshlrev_b32 v%d, 16, v%d' % (F + 2 * (4 * i + j), r))
                    A('v_and_b32 v%d, 0xffff0000, v%d' % (F + 2 * (4 * i + j) + 1, r))
                for j in range(4):
                    p = F + 2 * (4 * i + j)
                    acc = 8 + 2 * (j & 1)
                    if i == 0 and j < 2:
                        A('v_pk_add_f32 %s, %s, %s' % (vr(acc, 2), vr(p, 2), vr(p + 4, 2)))
                    elif i > 0:
                        A('v_pk_add_f32 %s, %s, %s' % (vr(acc, 2), vr(acc, 2), vr(p, 2)))
            if OPT['lt']:
                G.ts()
            A('v_pk_add_f32 v[8:9], v[8:9], v[10:11]')
            A('v_add_f32 v8, v8, v9')
            red(8, 9)
            A('v_mul_f32 v12, %s, v8' % G.fbits(-1.0 / 576))
            A('v_mov_b32 v13, v12')
            for i in range(36):
                p = F + 2 * i
                A('v_pk_add_f32 %s, %s, v[12:13]' % (vr(p, 2), vr(p, 2)))
            for i in range(36):
                p = F + 2 * i
                acc = 8 + 2 * (i & 1)
                if i < 2:
                    A('v_pk_mul_f32 %s, %s, %s' % (vr(acc, 2), vr(p, 2), vr(p, 2)))
                else:
                    A('v_pk_fma_f32 %s, %s, %s, %s' % (vr(acc, 2), vr(p, 2), vr(p, 2), vr(acc, 2)))
            A('v_pk_add_f32 v[8:9], v[8:9], v[10:11]')
            A('v_add_f32 v8, v8, v9')
            red(8, 9)
            A('v_mov_b32 v9, %s' % G.fbits(1e-5))
            A('v_fmac_f32 v9, %s, v8' % G.fbits(1.0 / 576))
            A('v_rsq_f32 v12, v9')
            A('v_mov_b32 v13, v12')
            for i in range(9):
                for j in range(4):
                    p = F + 2 * (4 * i + j)
                    A('v_pk_mul_f32 %s, %s, v[12:13]' % (vr(p, 2), vr(p, 2)))
                for j in range(4):
                    cvt(X + 4 * i + j, F + 2 * (4 * i + j))
                if i and i % 2 == 0:
                    A('s_add_u32 s33, s33, 4096')
                VQ.op('s', 'buffer_store_dwordx4 %s, v4, %s, s33 offen offset:%d sc1' % (vr(X + 4 * i, 4), WS, (i & 1) * 2048))
            A('s_add_u32 s33, s33, %d' % (32 * SEG_XN - 16384))
            if X == 16:
                VQ.op('r', 'buffer_load_dword v14, v6, %s, 0 offen sc1' % G.DBG)
        A('s_add_u32 s36, s36, %d' % F_XN)
        A('s_lshl_b32 s36, s36, 7')
        A('s_waitcnt vmcnt(0)')
        A('v_cmp_gt_u32 vcc, %d, v14' % G.N_READY)
        A('s_cbranch_vccz LN1_R')
        G.wait_ready('v6', 'v7')
        A.label('LN1_R')
        publish('s36', '1')
        G.ts()

    ID, RA, RB = 10, 12, 40

    def ident():
        A('v_and_b32 v7, 15, v1')
        A('v_lshrrev_b32 v6, 4, v1')
        A('v_lshlrev_b32 v6, 2, v6')
        A('v_sub_u32 v7, v7, v6')
        A('v_mov_b32 v5, 0x3f80')
        A('v_mov_b32 v6, 0x3f800000')
        for i in range(2):
            A('v_mov_b32 v%d, 0' % (ID + i))
            A('v_cmp_eq_u32 vcc, %d, v7' % (2 * i))
            A('v_cndmask_b32 v%d, v%d, v5, vcc' % (ID + i, ID + i))
            A('v_cmp_eq_u32 vcc, %d, v7' % (2 * i + 1))
            A('v_cndmask_b32 v%d, v%d, v6, vcc' % (ID + i, ID + i))

    def part_loads(VQ, np_, sbase):
        for n in range(np_):
            r = RB + 12 * (n + 1)
            if n:
                A('s_add_u32 %s, %s, 18432' % (sbase, sbase))
            for p in range(2):
                VQ.op((n + 1, p), 'buffer_load_dwordx4 %s, v8, %s, %s offen offset:%d sc1' % (vr(r + 4 * p, 4), WS, sbase, p * 2048))
            for i in range(2):
                VQ.op((n + 1, 2), 'buffer_load_dwordx2 %s, v9, %s, %s offen offset:%d sc1' % (vr(r + 8 + 2 * i, 2), WS, sbase, i * 512))

    def part_sum(VQ, np_):
        for n in range(np_ + 1):
            for p in range(3):
                VQ.wait((n, p))
                for i in range(2):
                    d = vr(RA + 8 * p + 4 * i, 4)
                    A('%s %s, %s, %s, %s' % (M16, d, vr(ID, 2), vr(RB + 12 * n + 4 * p + 2 * i, 2), '0' if n == 0 else d))

    def again(name, r, code, undo):
        A('v_cmp_u_f32 vcc, v%d, v%d' % (r, r))
        A('s_cbranch_vccz %s_K' % name)
        A('s_cmp_eq_u32 s48, 0')
        A('s_cbranch_scc1 %s_K' % name)
        A('s_waitcnt vmcnt(0)')
        A('v_cmp_ge_u32 vcc, s40, v5')
        A('s_or_b32 s48, vcc_lo, vcc_hi')
        for x in undo:
            A(x)
        A('s_add_u32 %s, %s, 1' % (G.S_SPIN, G.S_SPIN))
        A('s_cmp_lt_u32 %s, %d' % (G.S_SPIN, G.SPIN_MAX))
        A('s_cbranch_scc1 %s_R' % name)
        A('s_movk_i32 %s, %d' % (G.S_SPIN, code))
        A('s_branch FAIL')
        A.label(name + '_K')

    def role_ln2():
        G.srd(20, G.P_X, 2048 * 1152)
        A('s_cmp_eq_u32 %s, 3' % S_W)
        A('s_cbranch_scc1 %s' % ('LN2_X' if OPT['xp'] else 'EXIT'))
        ident()
        oct_lanes('v3', 'v8', 'v9')
        A('s_lshr_b32 s40, s35, 2')
        A('s_and_b32 s36, s35, 3')
        A('s_lshr_b32 s37, s36, 1')
        A('s_and_b32 s38, s36, 1')
        A('s_mul_i32 s32, s36, %d' % (8 * 1152))
        A('s_mul_i32 s33, %s, 384' % S_W)
        A('s_add_u32 s32, s32, s33')
        A('v_add_u32 v3, s32, v3')
        A('s_mul_i32 s33, %s, 6144' % S_W)
        A('s_lshl_b32 s34, s38, 7')
        A('s_add_u32 s34, s34, s33')
        A('v_add_u32 v8, s34, v8')
        A('s_lshl_b32 s34, s38, 6')
        A('s_add_u32 s34, s34, s33')
        A('s_add_u32 s34, s34, 4096')
        A('v_add_u32 v9, s34, v9')
        A('s_lshl_b32 s34, s37, 2')
        A('s_add_u32 s34, s34, %s' % S_W)
        A('s_lshl_b32 s34, s34, 4')
        A('s_add_u32 s34, s34, %d' % F_WO)
        A('v_min_u32 v4, 15, v1')
        A('v_add_u32 v4, s34, v4')
        A('v_lshlrev_b32 v4, 7, v4')
        A('s_lshl_b32 s45, s40, 1')
        A('s_add_u32 s45, s45, s38')
        A('s_mul_i32 s45, s45, 3')
        A('s_add_u32 s45, s45, %s' % S_W)
        A('s_lshl_b32 s34, s37, 5')
        A('s_add_u32 s45, s45, s34')
        A('s_add_u32 s45, s45, %d' % F_LN2)
        A('s_lshl_b32 s45, s45, 7')
        A('v_and_b32 v0, 7, v1')
        A('v_lshlrev_b32 v0, 3, v0')
        A('s_lshl_b32 s34, %s, 6' % S_W)
        A('s_mul_i32 s41, s37, %d' % (NPW * 18432))
        A('s_add_u32 s41, s41, 0x%x' % W_PW)
        A('s_mul_i32 s42, s37, 18432')
        G.wait_ready('v6', 'v7')
        A('v_add_u32 v6, s34, v0')
        A.label('LN2_L')
        VQ = Q(A, 'vmcnt')
        A('s_mul_i32 s43, s40, %d' % SEG_XN)
        for p in range(3):
            VQ.op((0, p), 'buffer_load_dwordx4 %s, v3, s[20:23], s43 offen offset:%d' % (vr(RB + 4 * p, 4), p * 128))
        A('s_mul_i32 s44, s40, %d' % SEG_PW)
        A('s_add_u32 s44, s44, s41')
        A('s_add_u32 s48, s40, 1')
        sd = OPT['sd'] & 1
        if sd:
            if OPT['hw']:
                A('s_cmp_lg_u32 s40, 55')
                A('s_cbranch_scc1 LN2_N')
                A('s_mov_b32 s33, %d' % (704 * 128))
                G.spin('v4', 'v5', '1', 29, WS, 's33')
                A.label('LN2_N')
                A('s_cmp_eq_u32 s40, 63')
                A('s_cselect_b32 s33, %d, 0' % (704 * 128))
                A('v_add_u32 v4, s33, v4')
            A('s_mov_b32 %s, 0' % G.S_SPIN)
            A('s_cmp_ge_u32 s40, %d' % OPT['sl'])
            A('s_cbranch_scc1 LN2_R')
        G.spin('v4', 'v5', 's48', 21, nap=(OPT['zl'], 54))
        if sd:
            A('s_mov_b32 s48, 0')
            A.label('LN2_R')
            VQ.op('poll', 'buffer_load_dword v5, v4, %s, 0 offen sc1' % WS)
        G.tsx(0, 's40')
        if not sd:
            G.ts()
        part_loads(VQ, NPW, 's44')
        part_sum(VQ, NPW)
        G.tsx(1, 's40')
        A('s_add_u32 s43, s43, s42')
        A('s_add_u32 s44, s43, 0x%x' % W_HB)
        A('s_add_u32 s43, s43, 0x%x' % W_HN)
        A('s_add_u32 s46, s44, 4096')
        A('s_add_u32 s47, s43, 4096')
        t = RB + 12
        for i in range(3):
            A('v_pk_add_f32 %s, %s, %s' % (vr(t + 2 * i, 2), vr(RA + 2 * i, 2), vr(RA + 6 + 2 * i, 2)))
        for i in range(6):
            A('v_pk_add_f32 %s, %s, %s' % (vr(t + 2 * (i % 3), 2), vr(t + 2 * (i % 3), 2), vr(RA + 12 + 2 * i, 2)))
        A('v_pk_add_f32 %s, %s, %s' % (vr(t, 2), vr(t, 2), vr(t + 2, 2)))
        A('v_pk_add_f32 %s, %s, %s' % (vr(t, 2), vr(t, 2), vr(t + 4, 2)))
        A('v_add_f32 v%d, v%d, v%d' % (t, t, t + 1))
        if sd:
            again('LN2', t, 23, ['s_mul_i32 s43, s40, %d' % SEG_XN, 's_mul_i32 s44, s40, %d' % SEG_PW, 's_add_u32 s44, s44, s41'])
            G.ts()
        for i in range(12):
            cvt(RB + i, RA + 2 * i)
        red(t, t + 1)
        A('v_mul_f32 v%d, %s, v%d' % (t + 8, G.fbits(1.0 / 192), t))
        A('v_mul_f32 v%d, %s, v%d' % (t + 6, G.fbits(-1.0 / 192), t))
        A('v_mov_b32 v%d, v%d' % (t + 7, t + 6))
        for i in range(12):
            A('v_pk_add_f32 %s, %s, %s' % (vr(RA + 2 * i, 2), vr(RA + 2 * i, 2), vr(t + 6, 2)))
        for i in range(12):
            a = vr(t + 2 * (i % 3), 2)
            p = vr(RA + 2 * i, 2)
            if i < 3:
                A('v_pk_mul_f32 %s, %s, %s' % (a, p, p))
            else:
                A('v_pk_fma_f32 %s, %s, %s, %s' % (a, p, p, a))
        A('v_pk_add_f32 %s, %s, %s' % (vr(t, 2), vr(t, 2), vr(t + 2, 2)))
        A('v_pk_add_f32 %s, %s, %s' % (vr(t, 2), vr(t, 2), vr(t + 4, 2)))
        A('v_add_f32 v%d, v%d, v%d' % (t + 9, t, t + 1))
        red(t + 9, t + 1)
        A('ds_write_b64 v6, %s' % vr(t + 8, 2))
        for p in range(3):
            A('buffer_store_dwordx4 %s, v8, %s, %s offen offset:%d sc1' % (vr(RB + 4 * p, 4), WS, 's44' if p < 2 else 's46', (p & 1) * 2048))
        A('s_waitcnt lgkmcnt(0)')
        A('s_barrier')
        for j in range(3):
            A('ds_read_b64 %s, v0 offset:%d' % (vr(t + 2 * j, 2), j * 64))
        A('v_xor_b32 v0, 256, v0')
        A('v_xor_b32 v6, 256, v6')
        A('s_waitcnt lgkmcnt(0)')
        m, v = t + 10, t + 11
        A('v_add_f32 v%d, v%d, v%d' % (m, t, t + 2))
        A('v_add_f32 v%d, v%d, v%d' % (v, t + 1, t + 3))
        A('v_add_f32 v%d, v%d, v%d' % (m, m, t + 4))
        A('v_add_f32 v%d, v%d, v%d' % (v, v, t + 5))
        A('v_mul_f32 v%d, %s, v%d' % (m, G.fbits(1.0 / 3), m))
        A('v_mul_f32 v%d, %s, v%d' % (v, G.fbits(1.0 / 192), v))
        for j in range(3):
            A('v_sub_f32 v%d, v%d, v%d' % (t + 2 * j, t + 2 * j, m))
        for j in range(3):
            A('v_fmac_f32 v%d, v%d, v%d' % (v, t + 2 * j, t + 2 * j))
        A('v_mov_b32 v%d, %s' % (t, G.fbits(1e-5)))
        A('v_fmac_f32 v%d, %s, v%d' % (t, G.fbits(1.0 / 3), v))
        A('v_rsq_f32 v%d, v%d' % (t, t))
        A('v_sub_f32 v%d, v%d, v%d' % (t + 2, t + 8, m))
        A('v_mov_b32 v%d, v%d' % (t + 1, t))
        A('v_mul_f32 v%d, v%d, v%d' % (t + 2, t + 2, t))
        A('v_mov_b32 v%d, v%d' % (t + 3, t + 2))
        H = RB + 24
        for p in range(3):
            for i in range(4):
                a = vr(RA + 8 * p + 2 * i, 2)
                A('v_pk_fma_f32 %s, %s, %s, %s' % (a, a, vr(t, 2), vr(t + 2, 2)))
            for i in range(4):
                cvt(H + 4 * p + i, RA + 8 * p + 2 * i)
            A('buffer_store_dwordx4 %s, v8, %s, %s offen offset:%d sc1' % (vr(H + 4 * p, 4), WS, 's43' if p < 2 else 's47', (p & 1) * 2048))
        G.tsx(2, 's40')
        A('s_add_u32 s40, s40, 2')
        A('s_waitcnt vmcnt(0)')
        publish('s45', 's40', d=2)
        G.ts()
        A('s_cmp_lt_u32 s40, 64')
        A('s_cbranch_scc1 LN2_L')
        if OPT['xp']:
            A('s_branch LN2_Z')
            A.label('LN2_X')
            A('s_lshr_b32 s40, s35, 2')
            A('s_and_b32 s36, s35, 3')
            A('s_mul_i32 s36, s36, %d' % (8 * 1152))
            A('v_lshlrev_b32 v3, 7, v1')
            A('v_add_u32 v3, s36, v3')
            A('v_add_u32 v4, 1024, v3')
            A.label('LN2_Y')
            A('s_add_u32 s40, s40, 2')
            A('s_min_u32 s43, s40, 63')
            A('s_mul_i32 s43, s43, %d' % SEG_XN)
            A('buffer_load_dword v5, v3, s[20:23], s43 offen')
            A('buffer_load_dword v6, v4, s[20:23], s43 offen')
            A('s_barrier')
            A('s_waitcnt vmcnt(0)')
            A('s_cmp_lt_u32 s40, 64')
            A('s_cbranch_scc1 LN2_Y')
            A('s_branch EXIT')
            A.label('LN2_Z')

    def role_fin():
        G.srd(20, G.P_OUT, 2048 * 1152)
        ident()
        oct_lanes('v3', 'v0', 'v4')
        A('v_add_u32 v36, 4096, v4')
        A('v_min_u32 v4, 15, v1')
        A('v_lshlrev_b32 v4, 7, v4')
        A.label('FIN_L')
        A('s_mul_i32 s40, s35, 43691')
        A('s_lshr_b32 s40, s40, 19')
        A('s_mul_i32 s36, s40, 12')
        A('s_sub_u32 s36, s35, s36')
        A('s_and_b32 s37, s36, 3')
        A('s_lshr_b32 s36, s36, 2')
        A('s_lshr_b32 s38, s37, 1')
        A('s_and_b32 s39, s37, 1')
        A('s_mul_i32 s33, s36, 6144')
        A('s_lshl_b32 s34, s39, 7')
        A('s_add_u32 s34, s34, s33')
        A('v_add_u32 v8, s34, v0')
        A('s_lshl_b32 s34, s39, 6')
        A('s_add_u32 s34, s34, s33')
        A('v_add_u32 v9, s34, v36')
        A('s_lshl_b32 s34, s38, 2')
        A('s_add_u32 s34, s34, s36')
        A('s_lshl_b32 s34, s34, 11')
        A('s_add_u32 s34, s34, %d' % (F_F2 * 128))
        if OPT['hp']:
            A('s_cmp_eq_u32 s40, 63')
            A('s_cselect_b32 s41, 65536, 0')
            A('s_add_u32 s34, s34, s41')
        A('s_lshl_b32 s41, s40, 1')
        A('s_add_u32 s41, s41, s38')
        A('s_mul_i32 s43, s41, 18432')
        A('s_add_u32 s43, s43, 0x%x' % W_HB)
        A('s_add_u32 s46, s43, 4096')
        A('s_mul_i32 s44, s41, %d' % (NPF * 18432))
        A('s_add_u32 s44, s44, 0x%x' % W_PF)
        A('s_add_u32 s48, s40, 1')
        sd = OPT['sd'] & 2
        if sd:
            A('s_sub_u32 s33, s40, %d' % OPT['sb'])
            A('s_cmp_lt_u32 s40, %d' % OPT['sf'])
            A('s_cselect_b32 s48, s48, s33')
        G.spin('v4', 'v5', 's48', 22, WS, 's34', nap=(OPT['zf'], 62))
        VQ = Q(A, 'vmcnt')
        if sd:
            A('s_mov_b32 s48, 0')
            A('s_cmp_lt_u32 s40, %d' % OPT['sf'])
            A('s_cbranch_scc1 FIN_H')
            A('s_and_b32 s48, s40, 1')
            A('s_lshl_b32 s48, s48, 1')
            A('s_add_u32 s48, s48, s39')
            A('s_mul_i32 s48, s48, 3')
            A('s_add_u32 s48, s48, s36')
            A('s_lshl_b32 s33, s38, 5')
            A('s_add_u32 s48, s48, s33')
            A('s_add_u32 s48, s48, %d' % F_LN2)
            A('s_lshl_b32 s48, s48, 7')
            A('v_mov_b32 v6, 0')
            A('s_add_u32 s33, s40, 1')
            G.spin('v6', 'v5', 's33', 24, WS, 's48')
            A.label('FIN_H')
        if not sd:
            G.ts()
        for p in range(3):
            VQ.op((0, p), 'buffer_load_dwordx4 %s, v8, %s, %s offen offset:%d sc1' % (vr(RB + 4 * p, 4), WS, 's43' if p < 2 else 's46', (p & 1) * 2048))
        if sd:
            A.label('FIN_R')
        G.tsx(0, 's40')
        part_loads(VQ, NPF, 's44')
        if sd:
            VQ.op('poll', 'buffer_load_dword v5, v4, %s, s34 offen sc1' % WS)
        A('s_lshl_b32 s41, s40, 2')
        A('s_add_u32 s41, s41, s37')
        A('s_mul_i32 s41, s41, %d' % (8 * 1152))
        A('s_mul_i32 s33, s36, 384')
        A('s_add_u32 s41, s41, s33')
        part_sum(VQ, NPF)
        if sd:
            t = RB + 12
            for i in range(4):
                A('v_pk_add_f32 %s, %s, %s' % (vr(t + 2 * i, 2), vr(RA + 2 * i, 2), vr(RA + 8 + 2 * i, 2)))
            for i in range(4):
                A('v_pk_add_f32 %s, %s, %s' % (vr(t + 2 * i, 2), vr(t + 2 * i, 2), vr(RA + 16 + 2 * i, 2)))
            for i in range(2):
                A('v_pk_add_f32 %s, %s, %s' % (vr(t + 2 * i, 2), vr(t + 2 * i, 2), vr(t + 4 + 2 * i, 2)))
            A('v_pk_add_f32 %s, %s, %s' % (vr(t, 2), vr(t, 2), vr(t + 2, 2)))
            A('v_add_f32 v%d, v%d, v%d' % (t, t, t + 1))
            again('FIN', t, 25, ['s_sub_u32 s44, s44, %d' % ((NPF - 1) * 18432)])
            G.ts()
        for p in range(3):
            for i in range(4):
                cvt(RB + 4 * p + i, RA + 8 * p + 2 * i)
            A('buffer_store_dwordx4 %s, v3, s[20:23], s41 offen offset:%d' % (vr(RB + 4 * p, 4), p * 128))
        G.tsx(5, 's40')
        A('s_add_u32 s35, s35, %d' % (64 if OPT['hp'] else 256))
        A('s_cmp_lt_u32 s35, 768')
        A('s_cbranch_scc1 FIN_L')

    def role_qkv():
        G.srd(12, G.P_WQ, 576 * 8192)
        G.srd(16, G.P_WK, 576 * 8192)
        G.srd(20, G.P_WV, 576 * 8192)
        NS, GR = 18, 3
        A('v_lshrrev_b32 v7, 3, v1')
        A('v_and_b32 v6, 3, v7')
        A('v_lshlrev_b32 v6, 1, v6')
        A('v_and_b32 v5, 7, v1')
        A('v_xor_b32 v6, v6, v5')
        A('v_lshlrev_b32 v8, 13, v7')
        A('v_lshl_add_u32 v8, v6, 4, v8')
        A('s_and_b32 s32, %s, 1' % S_W)
        A('s_and_b32 s33, %s, 2' % S_W)
        A('s_lshl_b32 s34, s36, 2')
        A('s_add_u32 s34, s34, s33')
        A('s_lshl_b32 s34, s34, 6')
        A('s_lshl_b32 s31, s32, 17')
        A('s_add_u32 s34, s34, s31')
        A('v_add_u32 v8, s34, v8')
        A('s_mul_i32 s30, %s, %d' % (S_W, NS * 2048))
        VQ = Q(A, 'vmcnt')

        def dma(n):
            for i in range(2):
                A('s_add_u32 m0, s30, %d' % ((n % NS) * 2048 + i * 1024))
                A('s_mov_b32 s31, %d' % ((32 * (n // 3) + 8 * i) * 8192))
                VQ.op(n, 'buffer_load_dwordx4 v8, %s, s31 offen lds' % sr(12 + 4 * (n % 3), 4))
        for n in range(NS):
            dma(n)
        A('v_lshrrev_b32 v5, 5, v1')
        A('v_add_u32 v5, s33, v5')
        A('v_mul_u32_u24 v10, %d, v5' % (NS * 2048))
        A('v_bfe_u32 v5, v1, 4, 1')
        A('v_bfe_u32 v6, v1, 2, 2')
        A('v_lshl_add_u32 v5, v5, 3, v6')
        A('v_lshl_add_u32 v10, v5, 7, v10')
        A('s_lshl_b32 s32, s32, 1')
        A('v_xor_b32 v6, s32, v6')
        A('v_lshl_add_u32 v10, v6, 5, v10')
        A('v_and_b32 v6, 3, v1')
        A('v_lshl_add_u32 v10, v6, 3, v10')
        A('v_xor_b32 v11, 32, v10')
        for n0 in range(0, 54, GR):
            VQ.wait(n0 + GR - 1)
            A('s_barrier')
            for n in range(n0 - GR + NS, n0 + NS):
                if NS <= n < 54:
                    dma(n)
            if OPT['qe'] and n0 == 18:
                A('v_mov_b32 v12, %d' % (D_READY * 4))
                VQ.op('r', 'buffer_load_dword v12, v12, %s, 0 offen sc1' % G.DBG)
            if OPT['qe'] and n0 == 42:
                VQ.wait('r')
                A('v_lshlrev_b32 v4, 7, v1')
                for i in range(2):
                    A('s_mov_b32 s48, %d' % (F_XN * 128 + i * 8192))
                    VQ.op('f', 'buffer_load_dword v%d, v4, %s, s48 offen sc1' % (13 + i, WS))
            for n in range(n0, n0 + GR):
                for t in range(2):
                    for u in range(2):
                        A('ds_read_b64_tr_b16 %s, v%d offset:%d' % (wreg(2 * n + t, 108, u), 10 + t, (n % NS) * 2048 + u * 512))
            A('s_waitcnt lgkmcnt(0)')
        G.ts()
        if OPT['qe']:
            A('s_waitcnt vmcnt(0)')
            A('v_cmp_gt_u32 s[48:49], %d, v12' % G.N_READY)
            A('v_min_u32 v13, v13, v14')
            A('v_cmp_gt_u32 vcc, 1, v13')
            A('s_or_b64 vcc, vcc, s[48:49]')
            A('s_cbranch_vccz QKV_GO')
        G.wait_ready('v6', 'v7')
        A('v_lshlrev_b32 v4, 7, v1')
        for i in range(2):
            A('s_mov_b32 s48, %d' % (F_XN * 128 + i * 8192))
            G.spin('v4', 'v5', '1', 23, WS, 's48')
        A.label('QKV_GO')
        if OPT['lt']:
            G.ts()
        A('s_mov_b32 %s, s37' % S_U)
        A('s_mul_i32 %s, s37, %d' % (S_DST, SEG_QKV))
        A('s_lshl_b32 s33, s36, 21')
        A('s_add_u32 %s, %s, s33' % (S_DST, S_DST))
        A('s_lshl_b32 s50, %s, 11' % S_W)
        A('s_add_u32 %s, %s, s50' % (S_DST, S_DST))
        A('s_add_u32 %s, %s, 0x%x' % (S_DST, S_DST, W_QKV))
        A('s_add_u32 s50, s50, 8192')
        A('s_mul_i32 %s, s37, %d' % (S_SRC, SEG_XN))
        A('s_mul_i32 s33, %s, 9216' % S_W)
        A('s_add_u32 %s, %s, s33' % (S_SRC, S_SRC))
        A('s_add_u32 %s, %s, 0x%x' % (S_SRC, S_SRC, W_XN))
        A('s_lshl_b32 s35, s36, 1')
        A('s_add_u32 s35, s35, s37')
        A('s_lshl_b32 s35, s35, 2')
        A('s_add_u32 s35, s35, %s' % S_W)
        A('s_lshr_b32 %s, s35, 2' % S_FLG)
        A('s_add_u32 %s, %s, %d' % (S_FLG, S_FLG, F_QKV))
        A('s_lshl_b32 %s, %s, 5' % (S_FLG, S_FLG))
        A('s_add_u32 %s, %s, %s' % (S_FLG, S_FLG, S_W))
        A('s_lshl_b32 %s, %s, 2' % (S_FLG, S_FLG))
        a, b = 8, 32
        A('s_mov_b32 s52, %s' % G.fbits(G.LOG2E / math.sqrt(128.0)))
        A('s_mov_b32 s53, s52')

        def scale(r, n):
            for i in range(r, r + n, 2):
                A('v_pk_mul_f32 %s, %s, s[52:53]' % (vr(i, 2), vr(i, 2)))

        def st(VQ, r, so, off):
            VQ.op('st', 'buffer_store_dwordx4 %s, v0, %s, %s offen offset:%d sc1' % (vr(r, 4), WS, so, off))

        def mid(j, VQ):
            if j == 19:
                return [lambda: [cvt(a + i, a + 2 * i) for i in range(2)], lambda: [cvt(a + i, a + 2 * i) for i in range(2, 4)],
                        lambda: st(VQ, a, S_DST, 0), lambda: A('s_add_u32 s49, %s, s50' % S_DST)]
            if j == 20:
                return [lambda: scale(a + 8, 4), lambda: scale(a + 12, 4)]
            if j == 21:
                return [lambda: [cvt(a + 8 + i, a + 8 + 2 * i) for i in range(2)], lambda: [cvt(a + 8 + i, a + 8 + 2 * i) for i in range(2, 4)],
                        lambda: st(VQ, a + 8, 's49', 0)]
            if j == 22:
                return [lambda: [cvt(a + 16 + i, a + 16 + 2 * i) for i in range(2)], lambda: [cvt(a + 20 + i, a + 20 + 2 * i) for i in range(2)]]
            return []

        def epi(VQ):
            for m, so in ((0, S_DST), (8, 's49')):
                if m:
                    scale(b + m, 8)
                for i in range(4):
                    cvt(b + m + i, b + m + 2 * i)
                st(VQ, b + m, so, 1024)
            for t in range(2):
                for i in range(2):
                    cvt(a + 18 + 4 * t + i, b + 16 + 4 * t + 2 * i)
                st(VQ, a + 16 + 4 * t, 's49', 2048 + 1024 * t)
        gemm('QKV', 18, 6, 2, 9, 9216, 65536, 2, 2 * SEG_XN, 2 * SEG_QKV, [], 7, 6, 4, (4, 5), epi, mid)

    def role_f1():
        A('s_lshl_b32 s30, s36, 1')
        A('s_add_u32 s30, s30, s37')
        pull()
        gate(OPT['g1w'])
        G.srd(12, G.P_WG, 576 * 9216)
        G.srd(16, G.P_WU, 576 * 9216)
        w_lane(9216, 'N', 'N')
        A('s_mul_i32 s33, s36, 384')
        A('s_lshr_b32 s34, %s, 1' % S_W)
        A('s_lshl_b32 s34, s34, 6')
        A('s_add_u32 s34, s34, s33')
        A('v_add_u32 v9, s34, v8')
        A('s_lshl_b32 s34, %s, 6' % S_W)
        A('s_add_u32 s34, s34, s33')
        A('v_add_u32 v8, s34, v8')
        A('s_and_b32 s34, %s, 1' % S_W)
        A('s_lshl_b32 s34, s34, 5')
        A('v_lshlrev_b32 v6, 3, v6')
        A('v_sub_u32 v11, v10, v6')
        A('v_add_u32 v11, s34, v11')
        units = []
        for k in range(18):
            for m in range(2):
                units.append((sr(12 + 4 * m, 4), 'v8', 0, k, [(k * 6 + 3 * m + t, 'v10', 8 * t) for t in range(2)]))
                units.append((sr(12 + 4 * m, 4), 'v9', 256, k, [(k * 6 + 3 * m + 2, 'v11', 0)]))
        load_weights(units, 108, 9216, 'N', OPT['d1'])
        G.ts()
        G.wait_ready('v6', 'v7')
        A('s_mov_b32 %s, 0' % S_U)
        A('s_mul_i32 %s, s37, 144' % S_DST)
        A('s_mul_i32 s34, s36, 6')
        A('s_add_u32 s34, s34, %s' % S_W)
        A('s_add_u32 %s, %s, s34' % (S_DST, S_DST))
        A('s_lshl_b32 s34, %s, 9' % S_W)
        A('s_sub_u32 s34, 4096, s34')
        A('v_and_b32 v6, 15, v1')
        A('v_lshlrev_b32 v6, 4, v6')
        A('v_lshrrev_b32 v5, 5, v1')
        A('v_lshl_add_u32 v6, v5, 8, v6')
        A('v_bfe_u32 v5, v1, 4, 1')
        A('v_lshl_add_u32 v6, v5, 3, v6')
        A('v_add_u32 v6, s34, v6')
        A('s_lshl_b32 s34, s36, 2')
        A('s_add_u32 s34, s34, %s' % S_W)
        A('s_lshl_b32 %s, %s, 10' % (S_DST, S_DST))
        A('s_add_u32 %s, %s, 0x%x' % (S_DST, S_DST, W_ACT))
        A('s_mul_i32 %s, s37, 18432' % S_SRC)
        A('s_mul_i32 s33, %s, 4480' % S_W)
        A('s_add_u32 %s, %s, s33' % (S_SRC, S_SRC))
        A('s_add_u32 %s, %s, 0x%x' % (S_SRC, S_SRC, W_HN))
        A('s_mul_i32 %s, s37, 160' % S_FLG)
        A('s_add_u32 %s, %s, s34' % (S_FLG, S_FLG))
        A('s_add_u32 %s, %s, %d' % (S_FLG, S_FLG, F_F1))
        A('s_lshl_b32 %s, %s, 7' % (S_FLG, S_FLG))
        A('s_lshl_b32 s33, s37, 5')
        A('s_add_u32 s33, s33, %d' % F_LN2)
        A('v_min_u32 v4, 11, v1')
        A('v_add_u32 v4, s33, v4')
        A('v_lshlrev_b32 v4, 7, v4')
        if OPT['hp']:
            second(SEG_XN, SEG_ACT)
            doze()
        A('s_mov_b32 s50, %s' % G.fbits(-G.LOG2E))

        A('s_mov_b32 s51, s50')
        g, u, t = 8, 20, 64
        sil = [[] for _ in range(24)]
        for i in range(12):
            q = i + 2 + 2 * (i >> 2)
            if not i & 1:
                sil[max(1, q - 2)].append('v_pk_mul_f32 %s, %s, s[50:51]' % (vr(t + i, 2), vr(g + i, 2)))
            sil[q].insert(0, 'v_exp_f32 v%d, v%d' % (t + i, t + i))
            if i & 1:
                sil[q + 1].append('v_pk_add_f32 %s, %s, 1.0 op_sel_hi:[1,0]' % (vr(t + i - 1, 2), vr(t + i - 1, 2)))
        rs = [6, 7, 12, 13, 18, 19, 19, 20, 20, 21, 22, 22]
        for i in range(12):
            sil[rs[i]].insert(0, 'v_rcp_f32 v%d, v%d' % (t + i, t + i))
            if i & 1:
                sil[rs[i] + 1].append('v_pk_mul_f32 %s, %s, %s' % (vr(g + i - 1, 2), vr(g + i - 1, 2), vr(t + i - 1, 2)))

        def epi(VQ, q=None):
            if q is not None:
                for x in sil[q]:
                    A(x)
                return
            for lo, n in ((0, 8), (8, 4)):
                for i in range(lo, lo + n, 2):
                    A('v_pk_mul_f32 %s, %s, %s' % (vr(g + i, 2), vr(g + i, 2), vr(u + i, 2)))
                for i in range(0, n, 2):
                    cvt(t + lo + i // 2, g + lo + i)
                VQ.op('st', 'buffer_store_dwordx%d %s, %s, %s, %s offen sc1' % (n // 2, vr(t + lo, n // 2), 'v6' if lo else 'v0', WS, S_DST))
        gemm('F1', 18, 6, 1, 5, 4480, 32768, 1, SEG_XN, SEG_ACT, [0, 5, 10, 18], OPT['pk'] // 2, 8, 4, (), epi, late=10, skew=8)

    def role_part(name):
        wo = name == 'WO'
        KS, NP = (32, NPW) if wo else (36, NPF)
        gate(OPT['gww' if wo else 'g2w'])
        G.srd(12, G.P_WO if wo else G.P_WD, NP * KS * 32 * 1152)
        krow = 'D' if wo else 'N'
        w_lane(1152, krow, 'N')
        A('s_mul_i32 s33, s36, %d' % (KS * 32 * 1152))
        A('s_mul_i32 s34, s38, 384')
        A('s_add_u32 s33, s33, s34')
        A('s_lshr_b32 s34, %s, 1' % S_W)
        A('s_lshl_b32 s34, s34, 6')
        A('s_add_u32 s34, s34, s33')
        A('v_add_u32 v9, s34, v8')
        A('s_lshl_b32 s34, %s, 6' % S_W)
        A('s_add_u32 s34, s34, s33')
        A('v_add_u32 v8, s34, v8')
        A('s_and_b32 s34, %s, 1' % S_W)
        A('s_lshl_b32 s34, s34, 3')
        A('v_add_u32 v11, s34, v10')
        units = []
        for k in range(KS):
            units.append(('s[12:15]', 'v8', 0, k, [(k * 3 + t, 'v10', 8 * t) for t in range(2)]))
            units.append(('s[12:15]', 'v9', 256, k, [(k * 3 + 2, 'v11', 0)]))
        load_weights(units, KS * 3, 1152, krow, OPT['dw' if wo else 'd2'])
        G.ts()
        G.wait_ready('v6', 'v7')
        A('s_mov_b32 %s, 0' % S_U)
        A('s_mul_i32 s33, s37, %d' % NP)
        A('s_add_u32 s33, s33, s36')
        A('s_mul_i32 %s, s33, 18432' % S_DST)
        A('s_mul_i32 s34, s38, 6144')
        A('s_add_u32 %s, %s, s34' % (S_DST, S_DST))
        A('s_lshl_b32 s34, %s, 10' % S_W)
        A('s_add_u32 %s, %s, s34' % (S_DST, S_DST))
        A('s_add_u32 %s, %s, 0x%x' % (S_DST, S_DST, W_PW if wo else W_PF))
        A('s_lshl_b32 s34, %s, 9' % S_W)
        A('s_sub_u32 s34, 4096, s34')
        A('v_lshlrev_b32 v6, 3, v1')
        A('v_add_u32 v6, s34, v6')
        A('s_lshl_b32 s33, s33, 2')
        A('s_add_u32 s33, s33, %s' % S_W)
        A('s_mul_i32 %s, s33, %d' % (S_SRC, KS * 256))
        A('s_add_u32 %s, %s, 0x%x' % (S_SRC, S_SRC, W_O if wo else W_ACT))
        A('s_lshl_b32 s33, s36, 2')
        A('s_add_u32 s33, s33, %s' % S_W)
        A('s_lshl_b32 s34, s37, 2')
        A('s_add_u32 s34, s34, s38')
        A('s_lshl_b32 s34, s34, 4')
        A('s_add_u32 %s, s34, s33' % S_FLG)
        A('s_add_u32 %s, %s, %d' % (S_FLG, S_FLG, F_WO if wo else F_F2))
        A('s_lshl_b32 %s, %s, 7' % (S_FLG, S_FLG))
        if wo:
            A('s_lshl_b32 s33, s33, 3')
            A('s_add_u32 s33, s33, %d' % F_ATT)
            A('v_min_u32 v4, 7, v1')
        else:
            A('s_mul_i32 s33, s33, 6')
            A('s_and_b32 s33, s33, -4')
            A('s_mul_i32 s34, s37, 160')
            A('s_add_u32 s33, s33, s34')
            A('s_add_u32 s33, s33, %d' % F_F1)
            A('v_min_u32 v4, 7, v1')
        A('v_add_u32 v4, s33, v4')
        A('v_lshlrev_b32 v4, 7, v4')
        hp = OPT['hw'] if wo else OPT['hp']
        if hp:
            second(*((SEG_O, SEG_PW, 704 * 128) if wo else (SEG_ACT, SEG_PF)))
        if OPT['sd'] & (1 if wo else 2):
            A('v_lshlrev_b32 v0, 4, v1')
            for i in range(4):
                A('v_mov_b32 v%d, 0x%x' % (60 + i, SENT))
            for g in range(OPT['sl' if wo else 'sf'], 63 if hp else 64):
                if hp:
                    A('s_cmp_eq_u32 s56, 0')
                    A('s_cselect_b32 s34, %d, s52' % (g * (SEG_PW if wo else SEG_PF)))
                    A('s_add_u32 s34, s34, %s' % S_DST)
                else:
                    A('s_add_u32 s34, %s, %d' % (S_DST, g * (SEG_PW if wo else SEG_PF)))
                A('buffer_store_dwordx4 v[60:63], v0, %s, s34 offen sc1' % WS)
                A('buffer_store_dwordx2 v[60:61], v6, %s, s34 offen sc1' % WS)
        if hp:
            assert OPT['sd'] == 3 and (wo or OPT['h0'] < OPT['sf'] < 63)
            A('s_waitcnt vmcnt(0)')
            publish(S_FLG, S_U)
            doze()
            if not wo:
                A('v_add_u32 v4, s33, v4')

        def epi(VQ):
            for i in range(4):
                cvt(60 + i, 8 + 2 * i)
            VQ.op('st', 'buffer_store_dwordx4 v[60:63], v0, %s, %s offen sc1' % (WS, S_DST))
            for i in range(2):
                cvt(64 + i, 16 + 2 * i)
            VQ.op('st', 'buffer_store_dwordx2 v[64:65], v6, %s, %s offen sc1' % (WS, S_DST))
        if wo:
            gemm(name, 32, 3, 1, 8, 8192, 32768, 1, SEG_O, SEG_PW, [0, 8, 16, 24], OPT['pk'], 8, 6, (), epi, late=16)
        else:
            gemm(name, 36, 3, 1, 9, 9216, 65536, 1, SEG_ACT, SEG_PF, [0, 9, 18, 27], OPT['pk'], 8, 6, (), epi, late=18)

    def role_am():
        SMF = 'v_smfmac_f32_16x16x64_bf16'
        IDX, SEL, MX, LX, AX, AQ = 6, 10, 12, 13, 13, 17
        QF, KF, VF, MF, SX, PB, O, KA, VA, KM, SM, PM, VP, OM = 24, 40, 72, 88, 124, 132, 136, 152, 160, 168, 184, 188, 192, 196
        L_QK, L_M, L_KM, L_VM = 0, 16384, 24576, 28672

        def FR(n, sub=None):
            k, b = ('a', 8 * n) if n < 32 else ('v', 224 + 8 * (n - 32))
            return vr(b, 8, k) if sub is None else vr(b + 2 * sub, 2, k)
        G.srd(16, G.P_WK, 576 * 8192)
        G.srd(20, G.P_WV, 576 * 8192)
        A('v_lshlrev_b32 v0, 4, v1')
        A('s_lshl_b32 s36, s35, 2')
        A('s_add_u32 s36, s36, %s' % S_W)
        A('s_mul_i32 s30, %s, 36864' % S_W)
        A('v_lshrrev_b32 v7, 2, v1')
        A('v_and_b32 v5, 3, v1')
        A('v_lshlrev_b32 v8, 13, v7')
        A('v_lshl_add_u32 v8, v5, 4, v8')
        A('s_lshl_b32 s33, s36, 6')
        A('v_add_u32 v8, s33, v8')
        VQ = Q(A, 'vmcnt')

        def dma(n):
            for i in range(4):
                A('s_add_u32 m0, s30, %d' % ((n % 9) * 4096 + i * 1024))
                if i:
                    A('s_add_u32 s31, s31, %d' % (16 * 8192))
                elif n % 9 < 8:
                    A('s_xor_b32 s31, %s, %d' % (S_W, n % 9))
                    A('s_lshl_b32 s31, s31, 19')
                else:
                    A('s_mov_b32 s31, %d' % (8 << 19))
                VQ.op(n, 'buffer_load_dwordx4 v8, %s, s31 offen lds' % ('s[16:19]', 's[20:23]')[n // 9])
        A('s_mov_b32 s51, 0x%x' % SENT)
        for i in range(4):
            A('v_mov_b32 v%d, s51' % (16 + i))
        A('s_mul_i32 s33, s36, 4608')
        A('s_add_u32 s33, s33, 0x%x' % W_ME)
        for o in (0, 1024, 2048, 3072, 3584):
            VQ.op('z', 'buffer_store_dwordx4 v[16:19], v0, %s, s33 offen offset:%d sc1' % (WS, o))
        for n in range(OPT['da']):
            dma(n)
        A('v_lshrrev_b32 v3, 5, v1')
        A('v_bfe_u32 v4, v1, 4, 1')
        A('v_lshl_add_u32 v9, v3, 3, v4')
        A('v_and_b32 v7, 3, v7')
        A('v_lshl_add_u32 v9, v7, 1, v9')
        A('v_lshlrev_b32 v9, 7, v9')
        A('v_lshl_add_u32 v9, v5, 3, v9')
        A('v_add_u32 v9, s30, v9')
        VQ.wait('z')
        A('s_barrier')
        A('s_cmp_lg_u32 %s, 0' % S_W)
        A('s_cbranch_scc1 AM_NA')
        A('v_mov_b32 v3, 1')
        A('v_mov_b32 v7, %d' % (D_CBAR * 4))
        A('s_mov_b64 exec, 1')
        A('buffer_atomic_add v3, v7, %s, 0 offen sc1' % G.DBG)
        A('s_mov_b64 exec, -1')
        A.label('AM_NA')
        for n in range(18):
            VQ.wait(n)
            for t in range(2):
                for z in range(2):
                    for u in range(2):
                        A('ds_read_b64_tr_b16 %s, v9 offset:%d' % (FR(2 * n + t, 2 * z + u), (n % 9) * 4096 + z * 2048 + u * 64 + t * 32))
            if n + OPT['da'] < 18:
                A('s_waitcnt lgkmcnt(0)')
                dma(n + OPT['da'])
        A('v_and_b32 v7, 8, v1')
        A('v_mov_b32 v%d, 0x4444' % IDX)
        A('v_mov_b32 v3, 0xeeee')
        A('v_cmp_ne_u32 vcc, 0, v7')
        A('v_cndmask_b32 v%d, v%d, v3, vcc' % (IDX, IDX))
        A('v_and_b32 v7, 7, v1')
        A('v_lshlrev_b32 v4, 2, v4')
        A('v_sub_u32 v7, v7, v4')
        A('v_mov_b32 v5, 0x3f80')
        A('v_mov_b32 v4, 0x3f800000')
        for i in range(2):
            A('v_mov_b32 v%d, 0' % (SEL + i))
            A('v_cmp_eq_u32 vcc, %d, v7' % (2 * i))
            A('v_cndmask_b32 v%d, v%d, v5, vcc' % (SEL + i, SEL + i))
            A('v_cmp_eq_u32 vcc, %d, v7' % (2 * i + 1))
            A('v_cndmask_b32 v%d, v%d, v4, vcc' % (SEL + i, SEL + i))
        A('v_and_b32 v7, 15, v1')
        A('v_lshrrev_b32 v5, 4, v1')
        A('v_lshlrev_b32 v5, 2, v5')
        A('v_sub_u32 v7, v7, v5')
        for r in range(4):
            A('v_cmp_le_i32 s[%d:%d], %d, v7' % (52 + 2 * r, 53 + 2 * r, r))
        A('v_mov_b32 v3, %s' % G.fbits(-1e9 * G.LOG2E))
        A('v_mov_b32 v%d, 0' % (PB + 2))
        A('v_mov_b32 v%d, 0' % (PB + 3))
        A('s_mov_b32 s50, %s' % G.fbits(G.LOG2E / math.sqrt(128.0)))
        A('s_add_u32 s45, s36, %d' % F_ATT)
        A('s_lshl_b32 s45, s45, 7')
        A('s_lshl_b32 s41, s35, 21')
        A('s_lshl_b32 s33, %s, 11' % S_W)
        A('s_add_u32 s41, s41, s33')
        A('s_add_u32 s41, s41, 0x%x' % W_QKV)
        A('s_add_u32 s46, s33, 8192')
        A('s_lshl_b32 s42, s36, 10')
        A('s_and_b32 s37, %s, 1' % S_W)
        A('s_lshl_b32 s33, s37, 17')
        A('s_add_u32 s42, s42, s33')
        A('s_add_u32 s42, s42, 0x%x' % W_O)
        A('s_lshl_b32 s43, %s, 10' % S_W)
        A('v_add_u32 v8, s43, v0')
        A('v_add_u32 v%d, s43, v8' % AQ)
        for j in range(1, 4):
            A('v_xor_b32 v%d, %d, v8' % (AX + j, 1024 * j))
            A('v_xor_b32 v%d, %d, v%d' % (AQ + j, 2048 * j, AQ))
        A('s_mov_b32 s43, 0x%x' % W_ME)
        A('s_and_b32 s44, s35, 8')
        A('s_mul_i32 s44, s44, 3')
        A('s_add_u32 s44, s44, s35')
        A('s_and_b32 s44, s44, 0x27')
        A('s_lshl_b32 s33, %s, 3' % S_W)
        A('s_add_u32 s44, s44, s33')
        A('s_lshl_b32 s44, s44, 7')
        A('s_mov_b32 s40, 0')
        A('s_waitcnt lgkmcnt(0)')
        A('v_and_b32 v9, 0x300, v0')
        A('v_and_b32 v4, 7, v1')
        A('v_lshl_add_u32 v9, v4, 5, v9')
        A('v_and_b32 v4, 8, v1')
        A('v_lshl_add_u32 v9, v4, 1, v9')
        G.ts()
        G.wait_ready('v4', 'v5')
        A('v_mov_b32 v4, %d' % (D_CBAR * 4))
        G.spin('v4', 'v5', '64', 25, G.DBG, op='ushort')
        A('v_and_b32 v4, 0x23, v1')
        A('v_lshlrev_b32 v4, 2, v4')
        A('s_lshl_b32 s33, s35, 8')
        A('s_add_u32 s33, s33, %d' % (F_QKV * 128))
        G.spin('v4', 'v5', '2', 24, WS, 's33')
        A('v_mov_b32 v4, s44')
        A('s_barrier')

        def loads():
            o = ['s_add_u32 s47, s41, s46', 's_lshl_b32 m0, %s, 11' % S_W]
            o += ['buffer_load_dwordx4 v0, %s, s41 offen offset:%d sc1 lds' % (WS, T * 1024) for T in range(2)]
            o += ['s_add_u32 m0, m0, 8192', 's_xor_b32 s48, s47, 4096']
            o += ['buffer_load_dwordx4 v0, %s, s47 offen offset:%d sc1 lds' % (WS, T * 1024) for T in range(2)]
            o += ['buffer_load_dwordx4 %s, v0, %s, s%d offen offset:%d sc1' % (vr(VF + 4 * i, 4), WS, 47 + (i >> 1), 2048 + (i & 1) * 1024) for i in range(4)]
            return o + ['s_add_u32 s41, s41, %d' % SEG_QKV]

        def xred(r, t, op, sw):
            return ['v_mov_b32 v%d, v%d' % (t, r), 'v_permlane%d_swap_b32 v%d, v%d' % (sw, r, t), '%s v%d, v%d, v%d' % (op, r, r, t)]

        def emit(l):
            for x in l:
                A(x)

        def poll():
            A('v_mov_b32 v5, 0')
            A('s_mov_b64 exec, 1')
            A('buffer_atomic_or v5, v4, %s, s43 offen sc0 sc1' % WS)
            A('s_mov_b64 exec, -1')
        SP = 212

        def mloads():
            return ['s_lshl_b32 s47, %s, 10' % S_W, 's_add_u32 s47, s47, s43', 's_add_u32 s48, s47, 4096',
                    'buffer_load_dwordx4 %s, v9, %s, s47 offen sc1' % (vr(SP, 4), WS), 's_add_u32 s47, s43, 8192',
                    'buffer_load_dwordx4 %s, v9, %s, s48 offen sc1' % (vr(SP + 4, 4), WS),
                    'buffer_load_dwordx4 %s, v9, %s, s47 offen sc1' % (vr(SP + 8, 4), WS)]

        def bound():
            A('s_add_u32 s27, s27, 1')
            A('s_cmp_ge_u32 s27, %d' % G.SPIN_MAX)
            A('s_cbranch_scc1 FAIL')

        def step(T):
            P = 'AM%d_' % T
            A.label(P + 'L')
            A('s_barrier')
            LQ = Q(A, 'lgkmcnt')
            for j in range(4):
                LQ.op(j, 'ds_read_b128 %s, v%d offset:%d' % (vr(QF + 4 * j, 4), AQ + j, L_QK + 1024 * T))
                for tk in range(T + 1):
                    LQ.op(j, 'ds_read_b128 %s, v%d offset:%d' % (vr(KF + 8 * j + 4 * tk, 4), AQ + j, L_QK + 8192 + 1024 * tk))
            for r in range(KA, KA + 16, 2):
                A('v_mov_b64 %s, 0' % vr(r, 2))
            for j in range(4):
                LQ.wait(j)
                for tk in range(T + 1):
                    d = vr(SX + 4 * tk, 4)
                    A('%s %s, %s, %s, %s' % (M32, d, vr(KF + 8 * j + 4 * tk, 4), vr(QF + 4 * j, 4), '0' if j == 0 else d))
            D = SX + 4 * T
            if T:
                A('v_max3_f32 v%d, v%d, v%d, v%d' % (MX, SX, SX + 1, SX + 2))
            for r in range(4):
                A('v_cndmask_b32 v%d, v3, v%d, s[%d:%d]' % (D + r, D + r, 52 + 2 * r, 53 + 2 * r))
            if T:
                A('v_max3_f32 v%d, v%d, v%d, v%d' % (MX, MX, SX + 3, D))
            A('v_max3_f32 v%d, v%d, v%d, v%d' % (MX, MX if T else D, D + 1, D + 2))
            A('v_max_f32 v%d, v%d, v%d' % (MX, MX, D + 3))
            emit(xred(MX, LX, 'v_max_f32', 16) + xred(MX, LX, 'v_max_f32', 32))
            for r in range(SX, D + 4):
                A('v_sub_f32 v%d, v%d, v%d' % (r, r, MX))
            for r in range(SX, D + 4):
                A('v_exp_f32 v%d, v%d' % (r, r))
            for i in range(2 * T + 2):
                cvt(PB + i, SX + 2 * i)
            sm = ['v_pk_add_f32 %s, %s, %s' % (vr(SX, 2), vr(SX, 2), vr(SX + 2 * i, 2)) for i in range(1, 2 * T + 2)]
            sm += ['v_add_f32 v%d, v%d, v%d' % (LX, SX, SX + 1)] + xred(LX, SX, 'v_add_f32', 16) + xred(LX, SX, 'v_add_f32', 32)
            A('s_waitcnt vmcnt(5)')
            for i in range(4):
                A('%s %s, %s, %s, 0' % (M32, vr(O + 4 * i, 4), vr(VF + 4 * i, 4), vr(PB, 4)))
                emit(sm[2 * i:2 * i + 2])
            emit(sm[8:])
            A('s_mov_b32 s27, 0')
            A('s_waitcnt vmcnt(0)')
            publish('s45', 's40')
            A('s_branch %sC' % P)
            A.label(P + 'X')
            for i in range(12):
                A('v_cmp_eq_u32 %s, s51, v%d' % ('s[38:39]' if i else 'vcc', SP + i))
                if i:
                    A('s_or_b64 vcc, vcc, s[38:39]')
            A('s_cbranch_vccz %sK' % P)
            A('s_cmp_ge_u32 s40, %d' % OPT['amd'])
            A('s_cbranch_scc1 %sM' % P)
            A.label(P + 'R')
            poll()
            bound()
            A('s_waitcnt vmcnt(0)')
            A('v_readfirstlane_b32 s49, v5')
            A('s_cmp_eq_u32 s49, s51')
            A('s_cbranch_scc1 %sR' % P)
            A.label(P + 'M')
            emit(mloads())
            bound()
            A('s_waitcnt vmcnt(0)')
            A.label(P + 'C')
            a, b, c = SP, SP + 4, SP + 8
            mx = 'v_maximum3_f32 v%d, v%%d, v%%d, v%%d' % SM
            A('ds_write_b128 v8, %s offset:%d' % (vr(a, 4), L_M))
            A(mx % (a, a + 1, a + 2))
            A('ds_write_b128 v8, %s offset:%d' % (vr(b, 4), L_M + 4096))
            A(mx % (SM, a + 3, b))
            A(mx % (SM, b + 1, b + 2))
            A(mx % (SM, b + 3, c))
            A(mx % (SM, c + 1, c + 2))
            A('v_cmp_u_f32 vcc, v%d, v%d' % (SM, c + 3))
            A('s_cbranch_vccnz %sX' % P)
            A.label(P + 'K')
            G.tsx(1, 's40')
            G.ts()
            LQ = Q(A, 'lgkmcnt')
            F = {}

            def L(tag, text):
                return lambda: LQ.op(tag, text)
            oth = [(1, 0), (1, 4), (2, 0), (2, 4), (3, 0), (3, 4)]
            rd = [L(j + u, 'ds_read_b128 %s, v%d offset:%d' % (vr(MF + 4 * (j + u), 4), AX + j, L_M + 1024 * u)) for j, u in oth]
            ks = [(0, f, t) for f in (8, 0, 4, 1, 5, 2, 6) for t in range(2)] + [(0, f, t) for t in range(2) for f in (3, 7)]
            vs = [(1, f, t) for f in (8, 0, 4, 1, 5, 2, 6) for t in range(2)] + [(1, f, t) for t in range(2) for f in (3, 7)]
            seq = ks[:6] + vs[:2] + ks[6:] + vs[2:4] + ['T0'] + vs[4:5] + ['T1'] + vs[5:8] + ['S0'] + vs[8:16] + ['S1', 'S2'] + vs[16:17] + ['S3'] + vs[17:]
            F[0] = ['s_waitcnt lgkmcnt(0)', 's_barrier'] + rd[:1]
            F[1], F[2] = rd[1:4], rd[4:] + ['s_add_u32 s40, s40, 1']
            ld = loads() + ['s_add_u32 s43, s43, %d' % SEG_ME] + mloads()
            k = 3
            for x in ld:
                F.setdefault(k - (x[0] == 's'), []).append(x)
                k += OPT['sp'] * (x[0] == 'b')
            for i in range(4):
                F.setdefault(1 + i, []).append('v_mov_b64 %s, %s' % (vr(MF + 16 * (i >> 1) + 2 * (i & 1), 2), vr(SP + 2 * i, 2)))
            ck = [lambda r=KA + 4 * t + i, q=KA + 4 * t + 2 * i: cvt(r, q) for t in range(2) for i in range(2)]
            cm = [lambda i=i: cvt(KM + i, KM + 2 * i) for i in range(4)]
            for k, x in ((20, ck[:1]), (21, ck[1:2]), (22, ck[2:]), (25, cm[:2]), (26, cm[2:]),
                         (27, [L('kw', 'ds_write_b128 v8, %s offset:%d' % (vr(KM, 4), L_KM))]), (32, [lambda: LQ.wait('kw'), 's_barrier']),
                         (33, [L('k%d' % j, 'ds_read_b128 %s, v%d offset:%d' % (vr(KM + 4 * j, 4), AX + j, L_KM)) for j in range(1, 4)]),
                         (39, [lambda: cvt(VA, VA)]), (40, [lambda: cvt(VA + 1, VA + 2)])):
                F[k] = x + F.get(k, [])
            for i, x in enumerate(seq):
                if x[0] == 'T':
                    t = int(x[1])
                    A('%s %s, %s, %s, 0' % (M16, vr(KM + 4 * t, 4), vr(KA + 4 * t, 2), vr(SEL, 2)))
                elif x[0] == 'S':
                    j = int(x[1])
                    LQ.wait('k%d' % j)
                    A('%s %s, %s, %s, %s' % (M32, vr(SM, 4), vr(KM + 4 * j, 4), vr(QF + 4 * j, 4), vr(SM, 4) if j else '0'))
                else:
                    kind, f, t = x
                    LQ.wait(f)
                    A('%s %s, %s, %s, v%d' % (SMF, vr((KA, VA)[kind] + 4 * t, 4), vr(SP + f if i < 8 else MF + 4 * f, 4), FR(18 * kind + 2 * f + t), IDX))
                for y in F.pop(i, []):
                    y() if callable(y) else A(y)
            assert not F
            s, m, a = SM, SX, SX + 2
            emit(['v_max3_f32 v%d, v%d, v%d, v%d' % (m, s, s + 1, s + 2), 'v_max_f32 v%d, v%d, v%d' % (m, m, s + 3)])
            x = xred(m, a, 'v_max_f32', 16)
            A(x[0])
            cvt(VA + 2, VA + 4)
            cvt(VA + 3, VA + 6)
            A('ds_write_b128 v8, %s offset:%d' % (vr(VA, 4), L_VM))
            emit(x[1:])
            emit(['v_mul_f32 v%d, s50, v%d' % (m, m), 'v_max_f32 v%d, v%d, v%d' % (m, m, MX)])
            emit(['v_fma_f32 v%d, v%d, s50, -v%d' % (r, r, m) for r in range(s, s + 4)])
            A('v_sub_f32 v%d, v%d, v%d' % (a, MX, m))
            emit(['v_exp_f32 v%d, v%d' % (r, r) for r in range(s, s + 4)])
            A('s_waitcnt lgkmcnt(0)')
            A('s_barrier')
            A('ds_read_b128 %s, v%d offset:%d' % (vr(VP, 4), AX + 1, L_VM))
            A('v_exp_f32 v%d, v%d' % (a, a))
            cvt(PM, s)
            cvt(PM + 1, s + 2)

            def pv(i):
                A('%s %s, %s, %s, 0' % (M16, vr(OM + 4 * i, 4), vr((VA, VP)[i >> 1] + 2 * (i & 1), 2), vr(PM, 2)))
            A('v_pk_add_f32 %s, %s, %s' % (vr(s, 2), vr(s, 2), vr(s + 2, 2)))
            A('v_add_f32 v%d, v%d, v%d' % (m, s, s + 1))
            pv(0)
            x = xred(m, a + 1, 'v_add_f32', 16)
            A(x[0])
            pv(1)
            emit(x[1:])
            emit(['v_fmac_f32 v%d, v%d, v%d' % (m, a, LX), 'v_rcp_f32 v%d, v%d' % (m, m)])
            A('s_waitcnt lgkmcnt(0)')
            pv(2)
            A('v_mul_f32 v%d, v%d, v%d' % (a, a, m))
            pv(3)
            A('s_xor_b32 s47, s42, 1024')
            for j in range(2):
                rs = range(8 * j, 8 * j + 8, 2)
                emit(['v_pk_mul_f32 %s, %s, %s op_sel_hi:[1,0]' % (vr(O + r, 2), vr(O + r, 2), vr(a, 2)) for r in rs])
                emit(['v_pk_fma_f32 %s, %s, %s, %s op_sel_hi:[1,0,1]' % (vr(O + r, 2), vr(OM + r, 2), vr(m, 2), vr(O + r, 2)) for r in rs])
                for i in range(4):
                    cvt(KM + 4 * j + i, O + 8 * j + 2 * i)
                A('buffer_store_dwordx4 %s, v0, %s, %s offen sc1' % (vr(KM + 4 * j, 4), WS, ('s42', 's47')[j]))
            G.tsx(2, 's40', 1)
            A('s_add_u32 s42, s42, %d' % SEG_O)
            A('s_waitcnt vmcnt(9)')
            A('s_cmp_lt_u32 s40, 64')
            A('s_cbranch_scc1 %sL' % P)
        emit(loads() + mloads())
        A('s_waitcnt vmcnt(0)')
        A('s_cmp_eq_u32 s37, 0')
        A('s_cbranch_scc1 AM0_L')
        step(1)
        A('s_branch AM_E')
        step(0)
        A.label('AM_E')
        A('s_waitcnt vmcnt(0)')
        publish('s45', 's40')

    A('s_mov_b32 s56, 0')
    A('s_cmp_eq_u32 %s, 1' % S_X)
    A('s_cbranch_scc1 R_LN')
    A('s_sub_u32 s32, %s, 2' % S_X)
    A('s_cmp_lt_u32 %s, 6' % S_T)
    A('s_cbranch_scc1 R_TRIP')
    A('s_and_b32 s37, %s, 1' % S_T)
    A('s_lshr_b32 s33, %s, 1' % S_T)
    A('s_mul_i32 s34, s32, 5')
    A('s_add_u32 s36, s34, s33')
    A('s_sub_u32 s36, s36, 3')
    A('s_cmp_lt_u32 %s, 16' % S_T)
    A('s_cbranch_scc1 R_QKV')
    A('s_lshl_b32 s36, s32, 2')
    A('s_add_u32 s36, s36, s33')
    A('s_sub_u32 s36, s36, 8')
    A('s_cmp_lt_u32 %s, 24' % S_T)
    A('s_cbranch_scc1 R_F1')
    A('s_add_u32 s35, s34, %s' % S_T)
    A('s_sub_u32 s35, s35, 24')
    A('s_cmp_lt_u32 %s, 29' % S_T)
    A('s_cbranch_scc1 R_AM')
    A('s_cmp_lt_u32 s32, 4')
    A('s_cbranch_scc1 R_TRIP1')
    A('s_add_u32 s35, s32, 26')
    A('s_mov_b32 s36, s35')
    A('s_cmp_eq_u32 %s, 31' % S_T)
    A('s_cbranch_scc1 R_AM')
    A('s_branch R_QKV')
    A.label('R_F1')
    role_f1()
    G.finish()
    A.label('R_TRIP1')
    A('s_sub_u32 s38, %s, 29' % S_T)
    A('s_and_b32 s33, s32, 1')
    A('s_lshr_b32 s32, s32, 1')
    A('s_add_u32 s32, s32, 6')
    A('s_branch R_TRIP2')
    A.label('R_TRIP')
    A('s_cmp_ge_u32 %s, 3' % S_T)
    A('s_cselect_b32 s33, 1, 0')
    A('s_cselect_b32 s38, 3, 0')
    A('s_sub_u32 s38, %s, s38' % S_T)
    A.label('R_TRIP2')
    A('s_and_b32 s34, s32, 6')
    A('s_add_u32 s34, s34, s33')
    A('s_lshl_b32 s34, s34, 1')
    A('s_and_b32 s32, s32, 1')
    A('s_add_u32 s34, s34, s32')
    A('s_mul_i32 s30, s34, 3')
    A('s_add_u32 s30, s30, s38')
    A('s_add_u32 s30, s30, 48')
    pull()
    if OPT['pre']:
        A('s_cmp_eq_u32 s38, 1')
        A('s_cselect_b32 s12, s%d, s%d' % (G.P_WK, G.P_WQ))
        A('s_cselect_b32 s13, s%d, s%d' % (G.P_WK + 1, G.P_WQ + 1))
        A('s_cmp_eq_u32 s38, 2')
        A('s_cselect_b32 s12, s%d, s12' % G.P_WV)
        A('s_cselect_b32 s13, s%d, s13' % (G.P_WV + 1))
        A('s_mov_b32 s14, %d' % (576 * 8192))
        A('s_mov_b32 s15, 0x20000')
        A('v_lshrrev_b32 v5, 4, v1')
        A('v_and_b32 v6, 15, v1')
        A('v_lshlrev_b32 v6, 4, v6')
        A('v_lshl_add_u32 v7, v5, 10, v6')
        A('v_lshl_add_u32 v6, v5, 13, v6')
        A('s_lshl_b32 s30, s34, 2')
        A('s_add_u32 s30, s30, %s' % S_W)
        A('s_mul_i32 s30, s30, %d' % (9 * 8192))
        A('s_add_u32 s31, s30, 4096')
        for i in range(18):
            A('buffer_load_dwordx4 %s, v7, s[12:15], s30 offen offset:256' % vr(12 + 4 * i, 4))
            A('s_add_u32 s30, s30, 4096')
        for i in range(3):
            A('buffer_load_dwordx4 %s, v6, s[12:15], s31 offen offset:3840' % vr(84 + 4 * i, 4))
            A('s_add_u32 s31, s31, %d' % (3 * 8192))
        A('s_waitcnt vmcnt(0)')
    A('s_bfe_u32 s37, s34, 0x10001')
    A('s_lshr_b32 s36, s34, 2')
    A('s_bitcmp1_b32 s34, 0')
    A('s_cbranch_scc1 R_WO')
    A.label('R_F2')
    role_part('F2')
    G.finish()
    A.label('R_WO')
    role_part('WO')
    G.finish()
    A.label('R_QKV')
    role_qkv()
    if OPT['hp']:
        A('s_cmp_lt_u32 s35, 64')
        A('s_cbranch_scc1 R_FIN')
        A('s_lshr_b32 s36, s35, 3')
        A('s_sub_u32 s36, s36, 8')
        A('s_bfe_u32 s37, s35, 0x10002')
        A('s_mov_b32 s56, 1')
        A('s_waitcnt vmcnt(0) lgkmcnt(0)')
        A('s_barrier')
        A('s_branch R_F1')
        A.label('R_FIN')
    role_fin()
    G.finish()
    A.label('R_LN')
    A('s_mov_b32 s35, %s' % S_T)
    ln1()
    A('s_sub_u32 s35, %s, 24' % S_T)
    A('s_cbranch_scc0 R_LN2')
    if OPT['hp'] or OPT['hw']:
        assert not (OPT['hp'] and OPT['hw'])
        G.wait_ready('v6', 'v7')
        A('v_mov_b32 v6, %d' % (128 * F_F1))
        G.spin('v6', 'v7', str(OPT['hg']), 28, nap=(64,))
        A('s_and_b32 s36, %s, 3' % S_T)
        A('s_bfe_u32 s37, %s, 0x10002' % S_T)
        A('s_lshr_b32 s38, %s, 3' % S_T)
        A('s_mov_b32 s56, 1')
        A('s_barrier')
        A('s_branch %s' % ('R_WO' if OPT['hw'] else 'R_F2'))
    G.finish()
    A.label('R_LN2')
    role_ln2()
    G.finish()
    A.label('R_AM')
    role_am()
    G.finish()
```
